```python
import torch

def _softmax(x, axis=-1):
    return torch.softmax(x, dim=axis)
def _gelu(x):
    return torch.nn.functional.gelu(x, approximate="tanh")
def _silu(x):
    return torch.nn.functional.silu(x)
def _sigmoid(x):
    return torch.sigmoid(x)
def _layernorm(x, axis=-1, eps=1e-5):
    m = x.mean(dim=axis, keepdim=True)
    v = x.var(dim=axis, keepdim=True, unbiased=False)
    return (x - m) / torch.sqrt(v + eps)
def _scatter_add(tgt, idx, src, axis=0):
    return tgt.clone().index_add_(axis, idx, src)
def _segment_sum(src, seg, n):
    out = torch.zeros((n,) + src.shape[1:], dtype=src.dtype)
    return out.index_add_(0, seg, src)
def _pad(x, pw):
    flat = tuple(v for pair in reversed(pw) for v in pair)
    return torch.nn.functional.pad(x, flat)

kernel_name = 'gated_mix__linear_kernel_hedgehog__linear_kernel_hedgehog__prompt'

def setup_inputs():

    _w = (lambda a: (lambda t: t.to(torch.bfloat16) if t.is_floating_point() else t)(torch.as_tensor(a)))
    def _A_setup():
        B, S, D, H = 1, 2048, 576, 32
        Dh = D // H
        return {
            "x": _w((lambda *s: torch.randn(*s, dtype=torch.bfloat16) * 0.05)(B, S, D)),
            "wqkv": _w((lambda *s: torch.randn(*s, dtype=torch.bfloat16) * 0.8)(D, 3 * D)),
            "w_phi": _w((lambda *s: torch.randn(*s, dtype=torch.bfloat16) * 0.8)(H, Dh, Dh) * (Dh ** -0.5)),
            "wo": _w((lambda *s: torch.randn(*s, dtype=torch.bfloat16) * 0.05)(D, D)),
        }
    _A_in = _A_setup()

    def _B_setup():
        B, S, D, H = 1, 2048, 576, 32
        Dh = D // H
        return {
            "x": _w((lambda *s: torch.randn(*s, dtype=torch.bfloat16) * 0.05)(B, S, D)),
            "wqkv": _w((lambda *s: torch.randn(*s, dtype=torch.bfloat16) * 0.8)(D, 3 * D)),
            "w_phi": _w((lambda *s: torch.randn(*s, dtype=torch.bfloat16) * 0.8)(H, Dh, Dh) * (Dh ** -0.5)),
            "wo": _w((lambda *s: torch.randn(*s, dtype=torch.bfloat16) * 0.05)(D, D)),
        }
    _B_in = _B_setup()

    return {
        "A_x": _A_in["x"],
        "A_wqkv": _A_in["wqkv"],
        "A_w_phi": _A_in["w_phi"],
        "A_wo": _A_in["wo"],
        "B_x": _B_in["x"],
        "B_wqkv": _B_in["wqkv"],
        "B_w_phi": _B_in["w_phi"],
        "B_wo": _B_in["wo"],
        "gate_w": _w((lambda *s: torch.randn(*s, dtype=torch.bfloat16) * 0.05)(576) * 16.0),
    }

def reference(A_x, A_wqkv, A_w_phi, A_wo, B_x, B_wqkv, B_w_phi, B_wo, gate_w):
    def _A_ref(x, wqkv, w_phi, wo):
        B, S, D = x.shape
        H = 32; Dh = D // H
        qkv = (lambda x, *d: x.permute(*d))((x @ wqkv).reshape(B, S, 3, H, Dh), 2, 0, 3, 1, 4)
        q, k, v = qkv[0], qkv[1], qkv[2]
        pq = torch.einsum("bhsd,hdf->bhsf", q, w_phi)
        pk = torch.einsum("bhsd,hdf->bhsf", k, w_phi)
        phi_q = torch.concatenate([_softmax(pq, axis=-1), _softmax(-pq, axis=-1)], axis=-1)
        phi_k = torch.concatenate([_softmax(pk, axis=-1), _softmax(-pk, axis=-1)], axis=-1)
        kv = torch.einsum("bhsf,bhsd->bhfd", phi_k, v)
        z  = torch.einsum("bhsf->bhf", phi_k)
        num = torch.einsum("bhqf,bhfd->bhqd", phi_q, kv)
        den = torch.einsum("bhqf,bhf->bhq", phi_q, z)[..., None] + 1e-6
        o = num / den
        return (lambda x, *d: x.permute(*d))(o, 0, 2, 1, 3).reshape(B, S, D) @ wo

    def _B_ref(x, wqkv, w_phi, wo):
        B, S, D = x.shape
        H = 32; Dh = D // H
        qkv = (lambda x, *d: x.permute(*d))((x @ wqkv).reshape(B, S, 3, H, Dh), 2, 0, 3, 1, 4)
        q, k, v = qkv[0], qkv[1], qkv[2]
        pq = torch.einsum("bhsd,hdf->bhsf", q, w_phi)
        pk = torch.einsum("bhsd,hdf->bhsf", k, w_phi)
        phi_q = torch.concatenate([_softmax(pq, axis=-1), _softmax(-pq, axis=-1)], axis=-1)
        phi_k = torch.concatenate([_softmax(pk, axis=-1), _softmax(-pk, axis=-1)], axis=-1)
        kv = torch.einsum("bhsf,bhsd->bhfd", phi_k, v)
        z  = torch.einsum("bhsf->bhf", phi_k)
        num = torch.einsum("bhqf,bhfd->bhqd", phi_q, kv)
        den = torch.einsum("bhqf,bhf->bhq", phi_q, z)[..., None] + 1e-6
        o = num / den
        return (lambda x, *d: x.permute(*d))(o, 0, 2, 1, 3).reshape(B, S, D) @ wo

    x = A_x
    g = _sigmoid((x * gate_w).sum(-1, keepdims=True))
    a = _A_ref(x, A_wqkv, A_w_phi, A_wo)
    b = _B_ref(x, B_wqkv, B_w_phi, B_wo)
    return g * a + (1 - g) * b
```

```python
import re
NAME = "gated_mix__linear_kernel_hedgehog__linear_kernel_hedgehog__prompt"

REG_RE = re.compile(r'\b([vsa])(\d+)\b|\b([vsa])\[(\d+):(\d+)\]|\b(vcc|exec|m0|scc)\b')
TRANS = ('v_exp_', 'v_log_', 'v_rcp_', 'v_rsq_', 'v_sqrt_', 'v_sin_', 'v_cos_')

def regs_of(op):
    out = set()
    for m in REG_RE.finditer(op):
        if m.group(1): out.add((m.group(1), int(m.group(2))))
        elif m.group(3):
            for i in range(int(m.group(4)), int(m.group(5)) + 1): out.add((m.group(3), i))
        else: out.add((m.group(6), 0))
    return out

class Ins:
    __slots__ = ('mn','kind','defs','uses','A','B','C','passes','pos','wide_store','dpp','lds_dma','data')

class Asm:
    def __init__(self):
        self.lines = []
        self.hist = []
        self.pos = 0
        self.nlabel = 0
    def raw(self, s): self.lines.append(s)
    def comment(self, s): self.lines.append('  ; ' + s)
    def label(self, name):
        self.flush()
        self.lines.append(name + ':')
    def newlabel(self, p='L'):
        self.nlabel += 1
        return f'{p}_{self.nlabel}'
    def flush(self):
        need = 0
        for p in self.hist:
            d = self.pos - p.pos - 1
            if p.kind == 'mfma': w = 8 if p.passes == 4 else 12
            elif p.kind in ('valu', 'trans'): w = 5 if any(r[0] in ('s','vcc') for r in p.defs) else 2
            elif p.kind == 'vmem' and p.wide_store: w = 2
            elif p.kind == 'salu' and ('m0',0) in p.defs: w = 1
            else: w = 0
            need = max(need, w - d)
        self._nop(need)
        self.hist = []
    def _nop(self, n):
        while n > 0:
            k = min(n, 16)
            self.lines.append(f'  s_nop {k-1}')
            self.pos += k
            n -= k
    def parse(self, text):
        t = text.split(';')[0].strip()
        parts = t.split(None, 1)
        mn = parts[0]
        rest = parts[1] if len(parts) > 1 else ''
        ops = [o.strip() for o in re.split(r',(?![^\[]*\])', rest)] if rest else []
        I = Ins(); I.mn = mn; I.defs = set(); I.uses = set(); I.A = I.B = I.C = set(); I.passes = 0
        I.wide_store = False; I.dpp = False; I.lds_dma = False; I.data = set()
        if mn.startswith('v_mfma'):
            I.kind = 'mfma'
            I.defs = regs_of(ops[0]); I.A = regs_of(ops[1]); I.B = regs_of(ops[2]); I.C = regs_of(ops[3].split()[0])
            I.uses = I.A | I.B | I.C
            I.passes = 8 if '32x32' in mn else 4
        elif mn.startswith('v_'):
            I.kind = 'trans' if mn.startswith(TRANS) else 'valu'
            if mn.startswith('v_cmp'):
                I.defs = regs_of(ops[0]); I.uses = set().union(*[regs_of(o) for o in ops[1:]])
            elif mn.startswith('v_permlane') and 'swap' in mn:
                I.defs = regs_of(ops[0]) | regs_of(ops[1]); I.uses = set(I.defs); I.dpp = True
            elif mn.startswith(('v_add_co', 'v_sub_co', 'v_addc_co', 'v_subb_co')):
                I.defs = regs_of(ops[0]) | regs_of(ops[1]); I.uses = set().union(*[regs_of(o) for o in ops[2:]])
            else:
                I.defs = regs_of(ops[0]); I.uses = set().union(*[regs_of(o) for o in ops[1:]]) if len(ops) > 1 else set()
                if mn.startswith(('v_fmac', 'v_dot2c', 'v_pk_fmac')): I.uses |= I.defs
                if mn.startswith('v_cndmask') and len(ops) == 3: I.uses.add(('vcc',0))
            if 'dpp' in mn or 'row_' in rest or 'quad_perm' in rest: I.dpp = True
        elif mn.startswith(('buffer_', 'global_')):
            I.kind = 'vmem'
            allr = set().union(*[regs_of(o) for o in ops]) if ops else set()
            if ' lds' in (' ' + rest) and re.search(r'\blds\b', rest):
                I.lds_dma = True; I.uses = allr | {('m0',0)}
            elif 'load' in mn:
                I.defs = regs_of(ops[0]); I.uses = set().union(*[regs_of(o) for o in ops[1:]])
            else:
                I.uses = allr; I.data = regs_of(ops[0]) if mn.startswith('buffer_') else regs_of(ops[1])
                if 'x4' in mn or 'x3' in mn: I.wide_store = True
                if 'atomic' in mn and 'sc0' in rest: I.defs = regs_of(ops[0])
        elif mn.startswith('ds_'):
            I.kind = 'ds'
            if mn.startswith(('ds_read', 'ds_swizzle', 'ds_bpermute', 'ds_permute')) or 'rtn' in mn:
                I.defs = regs_of(ops[0]); I.uses = set().union(*[regs_of(o) for o in ops[1:]])
            else:
                I.uses = set().union(*[regs_of(o) for o in ops])
        else:
            I.kind = 'salu'
            if mn.startswith(('s_cmp', 's_waitcnt', 's_barrier', 's_nop', 's_sleep', 's_setprio', 's_branch', 's_cbranch', 's_endpgm')):
                I.uses = set().union(*[regs_of(o) for o in ops]) if ops else set()
            elif ops:
                I.defs = regs_of(ops[0]); I.uses = set().union(*[regs_of(o) for o in ops[1:]]) if len(ops) > 1 else set()
                if 'saveexec' in mn: I.defs |= {('exec',0)}
        return I
    def need(self, P, I):
        w = 0
        vg = lambda S: {r for r in S if r[0] in ('v','a')}
        sg = lambda S: {r for r in S if r[0] in ('s','vcc')}
        if P.kind in ('valu', 'trans'):
            pd = vg(P.defs)
            if I.kind == 'mfma' and pd & I.uses: w = max(w, 2)
            if P.kind == 'trans' and I.kind == 'valu' and pd & I.uses: w = max(w, 1)
            if I.mn.startswith(('v_readfirstlane', 'v_readlane')) and pd & I.uses: w = max(w, 1)
            if I.dpp and pd & I.uses: w = max(w, 2)
            ps = sg(P.defs)
            if ps:
                if I.kind in ('valu', 'trans', 'mfma') and ps & I.uses: w = max(w, 4 if I.mn.startswith(('v_readlane','v_writelane')) else 2)
                if I.kind == 'vmem' and ps & I.uses: w = max(w, 5)
                if I.kind == 'salu' and ps & I.uses: w = max(w, 1)
        if P.kind == 'mfma':
            big = 8 if P.passes == 4 else 12
            if I.kind == 'mfma':
                if P.defs & (I.A | I.B): w = max(w, big)
                if P.defs & I.C:
                    if I.C == P.defs and I.passes == P.passes: pass
                    else: w = max(w, big - 2)
                elif P.defs & I.defs: w = max(w, big)
            elif I.kind in ('valu', 'trans', 'vmem', 'ds'):
                if P.defs & (I.uses | I.defs): w = max(w, big)
                if I.kind in ('valu', 'trans') and (P.C & I.defs): w = max(w, 3 if P.passes == 4 else 7)
        if P.kind == 'vmem' and P.wide_store:
            if P.data & I.defs: w = max(w, 2)
        if P.kind == 'salu' and ('m0',0) in P.defs and I.lds_dma: w = max(w, 1)
        return w
    def __call__(self, text):
        for line in text.strip().split('\n'):
            line = line.strip()
            if not line or line.startswith(';'):
                if line: self.lines.append('  ' + line)
                continue
            if line.endswith(':') and ' ' not in line:
                self.label(line[:-1]); continue
            I = self.parse(line)
            if I.mn.startswith(('s_branch', 's_cbranch')):
                self.flush()
            n = 0
            for P in self.hist:
                d = self.pos - P.pos - 1
                n = max(n, self.need(P, I) - d)
            self._nop(n)
            self.lines.append('  ' + line)
            I.pos = self.pos
            if I.mn == 's_nop':
                self.pos += int(line.split()[1], 0) + 1
            else:
                self.pos += 1
            self.hist.append(I)
            self.hist = [p for p in self.hist if self.pos - p.pos <= 20]
    def text(self): return '\n'.join(self.lines) + '\n'

def kernel_file(body, launch, vgpr, sgpr=102, name=NAME + '_kernel', hdr_comment=''):
    return f"""{hdr_comment}; @launch {launch}
.amdgcn_target "amdgcn-amd-amdhsa--gfx950"
.text
.globl {name}
.p2align 8
.type {name},@function
{name}:
{body}
.section .rodata,"a"
.p2align 6
.amdhsa_kernel {name}
  .amdhsa_next_free_vgpr {vgpr}
  .amdhsa_next_free_sgpr {sgpr}
  .amdhsa_accum_offset {(vgpr + 3) // 4 * 4}
  .amdhsa_group_segment_fixed_size 0
  .amdhsa_kernarg_size 96
  .amdhsa_user_sgpr_count 2
  .amdhsa_user_sgpr_kernarg_segment_ptr 1
  .amdhsa_system_sgpr_workgroup_id_x 1
.end_amdhsa_kernel
"""
```

```python
import sys
from asmlib import *

STAMPS = '--stamps' in sys.argv
DUMP = [a.split('=')[1] for a in sys.argv if a.startswith('--dump=')]

SLOT = 17408
TAB = 9 * SLOT
T2 = TAB
GW = TAB + 3840
WQ = 0
XCH = 82944
HK = XCH
VF = HK + 12288
PF = VF + 20480
WO1 = XCH
KVT = 111360
PQ = KVT + 6400
OST = PQ + 20480
assert OST + 8 * 2304 == TAB
EPI = 0
KST = 4608
wo_addr = {}
grp1 = [0, 1, 2, 18, 19, 20]
for i, kk in enumerate(grp1): wo_addr[kk] = WO1 + i * KST
rest = [kk for kk in range(36) if kk not in grp1 and kk != 35]
order = sorted(rest, key=lambda kk: (kk % 18, kk // 18))
grp2 = order[:18]
for i, kk in enumerate(grp2): wo_addr[kk] = WQ + i * KST
grp3 = order[18:]
assert len(grp3) == 11
for i, kk in enumerate(grp3): wo_addr[kk] = KVT + i * KST
assert KVT + 11 * KST <= 163840
WOSAVE = OST

WS_PART = 0
WS_O = 4 << 20
WS_GATE = 10 << 20
WS_DBG = 16 << 20
WS_DUMP = 32 << 20
BIG = 0x7FFF0000

SX, SW, SWS, SWOA, SWOB, SOUT, SDBG, SPHI, SGATE = 4, 8, 12, 16, 20, 24, 28, 32, 36
def srd(s): return f"s[{s}:{s+3}]"
sT, sG, sB, sHQ, sWV, sTG, sROLE, sK, sT0, sT1, sT2, sT3 = 40, 41, 42, 43, 44, 45, 46, 47, 48, 49, 50, 51
sMX, sMWA, sMWB, sMQ = 52, 53, 54, 55
sROT, sTB, sCB = 56, 57, 58
sL = 60
sMASK = 88
sPEND = 90
sT4, sT5 = 91, 92
sTILE = 93
sRETRY = 59

vLANE, vN, vG = 1, 2, 3
vT = [4, 5, 6, 7, 8, 9, 10, 11, 12, 13, 14, 15]
vXOFF, vWA, vWB, vWQ, vWO = 16, 17, 18, 19, 20
vRA = [21, 22, 23, 24, 25]
vRX = [26, 27]
vOST = [28, 29, 30]
vSTAMP = 31
X0 = 32
ACC = 176
WF = 216

a = Asm()
nstamp = [0]
def stamp(name):
    if not STAMPS: return
    i = nstamp[0]; nstamp[0] += 1
    a(f"s_memrealtime s[94:95]\ns_waitcnt lgkmcnt(0)\nv_writelane_b32 v{vSTAMP}, s94, {i}")
    print(f"; stamp {i}: {name}", file=sys.stderr)

def v(i, n=1): return f"v{i}" if n == 1 else f"v[{i}:{i+n-1}]"

class VM:
    def __init__(self): self.ops = []
    def add(self, tag): self.ops.append(tag)
    def wait_for(self, tag):
        idx = max(i for i, t in enumerate(self.ops) if t == tag)
        return len(self.ops) - 1 - idx
vm = VM()

a(f"""
  s_cmp_ge_u32 s2, 256
  s_cbranch_scc1 L_end
  s_load_dwordx16 s[64:79], s[0:1], 0
  s_load_dwordx8 s[80:87], s[0:1], 64
  s_getpc_b64 s[94:95]
L_pc:
  v_and_b32 v{vLANE}, 63, v0
  v_lshrrev_b32 v{vT[0]}, 6, v0
  s_lshr_b32 s{sT1}, s2, 3                 ; idx
  s_and_b32 s{sT0}, s2, 7                  ; xcd
  v_readfirstlane_b32 s{sWV}, v{vT[0]}
  ; code prefetch: wave w of WG idx loads 1KB slice (idx%CODEKB) -- only wave 7
  s_and_b32 s{sT2}, s{sWV}, 1
  s_lshl_b32 s{sT2}, s{sT2}, 5
  s_add_u32 s{sT2}, s{sT2}, s{sT1}
  s_lshl_b32 s{sT2}, s{sT2}, 10
  v_lshlrev_b32 v{vT[1]}, 4, v{vLANE}
  v_add_u32 v{vT[1]}, s{sT2}, v{vT[1]}
  v_min_u32 v{vT[1]}, L_end-L_pc, v{vT[1]}
  global_load_dword v{vT[11]}, v{vT[1]}, s[94:95]
""")
vm.add('pf')
if STAMPS: a(f"v_mov_b32 v{vSTAMP}, 0")
stamp('start')
a(f"""
  s_and_b32 s{sT}, s{sT0}, 1
  s_lshl_b32 s{sT}, s{sT}, 3
  s_and_b32 s{sT2}, s{sT1}, 7
  s_add_u32 s{sT}, s{sT}, s{sT2}
  s_lshr_b32 s{sG}, s{sT0}, 1
  s_lshl_b32 s{sG}, s{sG}, 2
  s_lshr_b32 s{sT3}, s{sT1}, 3
  s_add_u32 s{sG}, s{sG}, s{sT3}
  s_lshr_b32 s{sB}, s{sG}, 3
  s_and_b32 s{sHQ}, s{sG}, 7
  s_mul_i32 s{sT2}, s{sT2}, 9
  s_lshr_b32 s{sT2}, s{sT2}, 2
  s_mul_i32 s{sT3}, s{sT3}, 9
  s_lshr_b32 s{sT3}, s{sT3}, 1
  s_add_u32 s{sROT}, s{sT2}, s{sT3}
  s_sub_u32 s{sT2}, s{sROT}, 18
  s_cmp_ge_u32 s{sROT}, 18
  s_cselect_b32 s{sROT}, s{sT2}, s{sROT}
  s_and_b32 s{sTB}, s{sT1}, 3
  s_lshl_b32 s{sT2}, s{sT0}, 2
  s_add_u32 s{sTB}, s{sTB}, s{sT2}
  s_lshr_b32 s{sCB}, s{sT1}, 2
  s_and_b32 s{sTG}, s{sWV}, 3
  s_lshr_b32 s{sROLE}, s{sWV}, 2
  v_and_b32 v{vN}, 15, v{vLANE}
  v_lshrrev_b32 v{vG}, 4, v{vLANE}
  v_lshrrev_b32 v{vT[0]}, 2, v{vLANE}
  v_bfe_u32 v{vT[1]}, v{vLANE}, 4, 1             ; (row>>2)&1
  v_lshlrev_b32 v{vT[1]}, 1, v{vT[1]}
  v_and_b32 v{vT[2]}, 3, v{vLANE}
  v_xor_b32 v{vT[2]}, v{vT[2]}, v{vT[1]}         ; gsrc
  s_lshl_b32 s{sT2}, s{sT}, 7
  s_lshl_b32 s{sT3}, s{sWV}, 4
  s_add_u32 s{sT2}, s{sT2}, s{sT3}
  v_add_u32 v{vT[0]}, s{sT2}, v{vT[0]}           ; token
  s_movk_i32 s{sT3}, 1152
  v_mul_lo_u32 v{vT[0]}, v{vT[0]}, s{sT3}
  v_lshl_add_u32 v{vXOFF}, v{vT[2]}, 4, v{vT[0]}
  s_mul_i32 s{sT4}, s{sHQ}, 144
""")
def dma_off(dst, ci, nper, segs):
    magic = {18: (0xE38F, 20), 9: (0xE38F, 19)}[nper]
    t = vT
    a(f"""
  s_mov_b32 s{sT3}, {magic[0]}
  v_mul_u32_u24 v{t[3]}, s{sT3}, v{ci}
  v_lshrrev_b32 v{t[3]}, {magic[1]}, v{t[3]}          ; rho
  v_mul_u32_u24 v{t[4]}, {nper}, v{t[3]}
  v_sub_u32 v{t[4]}, v{ci}, v{t[4]}                    ; pos
""")
    if nper == 18:
        a(f"v_and_b32 v{t[5]}, 1, v{t[3]}\nv_xor_b32 v{t[4]}, v{t[4]}, v{t[5]}")
    a(f"""
  v_bfe_u32 v{t[5]}, v{t[3]}, 2, 2            ; g
  v_lshlrev_b32 v{t[5]}, 3, v{t[5]}
  v_lshrrev_b32 v{t[6]}, 4, v{t[3]}           ; hh
  v_lshl_add_u32 v{t[5]}, v{t[6]}, 2, v{t[5]}
  v_and_b32 v{t[6]}, 3, v{t[3]}
  v_add_u32 v{t[5]}, v{t[5]}, v{t[6]}         ; k
""")
    return t[5], t[4]
a(f"s_lshl_b32 s{sT2}, s{sWV}, 6\nv_add_u32 v{vT[7]}, s{sT2}, v{vLANE}")
def w_off(dst, ci):
    k, u = dma_off(dst, ci, 18, None)
    a(f"""
  s_movk_i32 s{sT3}, 3456
  v_mul_u32_u24 v{k}, s{sT3}, v{k}
  v_lshl_add_u32 v{k}, v{u}, 4, v{k}
  v_cmp_lt_u32 vcc, 8, v{u}
  v_mov_b32 v{vT[8]}, 1152
  v_mov_b32 v{vT[9]}, {2304-144}
  v_cndmask_b32 v{vT[8]}, v{vT[8]}, v{vT[9]}, vcc
  v_add3_u32 v{dst}, v{k}, v{vT[8]}, s{sT4}
""")
w_off(vWA, vT[7])
a(f"s_lshl_b32 s{sT2}, s{sWV}, 3\ns_add_u32 s{sT2}, s{sT2}, 512\nv_add_u32 v{vT[7]}, s{sT2}, v{vLANE}\nv_min_u32 v{vT[7]}, 575, v{vT[7]}")
w_off(vWB, vT[7])
a(f"""
  s_waitcnt lgkmcnt(0)
  s_mov_b32 s{SX}, s64
  s_mov_b32 s{SX+1}, s65
  s_mov_b32 s{SX+2}, {2048*1152}
  s_mov_b32 s{SX+3}, 0x00020000
  s_cmp_eq_u32 s{sB}, 1
  s_cselect_b32 s{SW}, s74, s66
  s_cselect_b32 s{SW+1}, s75, s67
  s_mov_b32 s{SW+2}, {576*3456}
  s_mov_b32 s{SW+3}, 0x00020000
  s_cselect_b32 s{SPHI}, s76, s68
  s_cselect_b32 s{SPHI+1}, s77, s69
  s_mov_b32 s{SPHI+2}, {32*648}
  s_mov_b32 s{SPHI+3}, 0x00020000
  s_lshl_b32 s{sMX}, s{sWV}, 10
  s_add_u32 s{sMWA}, s{sMX}, 8192
  s_lshl_b32 s{sMWB}, s{sWV}, 7
  s_add_u32 s{sMWB}, s{sMWB}, 16384
  s_mov_b32 s{sK}, s{sROT}
""")
def issue_p1(ks):
    sl = (ks % 9) * SLOT
    a(f"""
  s_lshl_b32 s{sT2}, s{sK}, 6
  s_mul_i32 s{sT3}, s{sK}, {32*3456}
  s_add_u32 m0, s{sMX}, {sl}
  buffer_load_dwordx4 v{vXOFF}, {srd(SX)}, s{sT2} offen lds
  s_add_u32 m0, s{sMWA}, {sl}
  buffer_load_dwordx4 v{vWA}, {srd(SW)}, s{sT3} offen lds
  s_mov_b64 exec, 0xff
  s_add_u32 m0, s{sMWB}, {sl}
  buffer_load_dwordx4 v{vWB}, {srd(SW)}, s{sT3} offen lds
  s_mov_b64 exec, -1
  s_add_u32 s{sK}, s{sK}, 1
  s_cmp_eq_u32 s{sK}, 18
  s_cselect_b32 s{sK}, 0, s{sK}
""")
    for _ in range(3): vm.add(('p1', ks))
issue_p1(0); issue_p1(1)
a(f"""
  s_mov_b32 s{SWS}, s86
  s_mov_b32 s{SWS+1}, s87
  s_mov_b32 s{SWS+2}, 0x10000000
  s_mov_b32 s{SWS+3}, 0x00020000
  s_mov_b32 s{SWOA}, s70
  s_mov_b32 s{SWOA+1}, s71
  s_mov_b32 s{SWOA+2}, {576*1152}
  s_mov_b32 s{SWOA+3}, 0x00020000
  s_mov_b32 s{SWOB}, s78
  s_mov_b32 s{SWOB+1}, s79
  s_mov_b32 s{SWOB+2}, {576*1152}
  s_mov_b32 s{SWOB+3}, 0x00020000
  s_mov_b32 s{SOUT}, s82
  s_mov_b32 s{SOUT+1}, s83
  s_mov_b32 s{SOUT+2}, {2048*1152}
  s_mov_b32 s{SOUT+3}, 0x00020000
  s_mov_b32 s{SDBG}, s84
  s_mov_b32 s{SDBG+1}, s85
  s_mov_b32 s{SDBG+2}, 256
  s_mov_b32 s{SDBG+3}, 0x00020000
  s_mov_b32 s{SGATE}, s80
  s_mov_b32 s{SGATE+1}, s81
  s_mov_b32 s{SGATE+2}, 1152
  s_mov_b32 s{SGATE+3}, 0x00020000
  s_mul_i32 s{sT2}, s{sHQ}, {4*648}
  v_lshlrev_b32 v{vT[0]}, 1, v0
  buffer_load_ushort v{WF+0}, v{vT[0]}, {srd(SPHI)}, s{sT2} offen
  buffer_load_ushort v{WF+1}, v{vT[0]}, {srd(SPHI)}, s{sT2} offen offset:1024
  buffer_load_ushort v{WF+2}, v{vT[0]}, {srd(SPHI)}, s{sT2} offen offset:2048
  v_lshlrev_b32 v{vT[0]}, 2, v0
  buffer_load_dword v{WF+3}, v{vT[0]}, {srd(SGATE)}, 0 offen
""")
for _ in range(4): vm.add('small')
for ks in range(2, 9): issue_p1(ks)
stamp('burst issued')
a(f"""
  v_mov_b32 v{vT[0]}, 0
  v_mov_b32 v{vT[1]}, 0
  v_lshlrev_b32 v{vT[2]}, 3, v0
  v_cmp_gt_u32 vcc, 480, v0
  s_and_saveexec_b64 s[94:95], vcc
  ds_write_b64 v{vT[2]}, v[{vT[0]}:{vT[1]}] offset:{T2 - 131072 if False else 0}
  s_mov_b64 exec, -1
""".replace(f"v_lshlrev_b32 v{vT[2]}, 3, v0", f"v_lshlrev_b32 v{vT[2]}, 3, v0\n  v_add_u32 v{vT[2]}, {T2}, v{vT[2]}"))
a(f"""
  s_lshl_b32 s{sTILE}, s{sT}, 3
  s_lshl_b32 s{sT2}, s{sTG}, 1
  s_add_u32 s{sTILE}, s{sTILE}, s{sT2}
  s_add_u32 s{sTILE}, s{sTILE}, s{sROLE}
  s_lshl_b32 s{sT2}, s{sB}, 7
  s_add_u32 s{sT2}, s{sT2}, s{sTILE}
  s_mul_i32 s{sT2}, s{sT2}, 18432
  s_add_u32 s{sT2}, s{sT2}, {WS_O}
  s_mul_i32 s{sT3}, s{sHQ}, 9
""")
for j in range(3):
    a(f"""
  v_add_u32 v{vT[0]}, {4*j}, v{vG}              ; i
  v_add_u32 v{vT[1]}, s{sT3}, v{vT[0]}          ; cglob
  v_lshlrev_b32 v{vT[1]}, 8, v{vT[1]}
  v_lshl_add_u32 v{vT[1]}, v{vN}, 4, v{vT[1]}
  v_add_u32 v{vOST[j]}, s{sT2}, v{vT[1]}
""")
a(f"""
  v_cmp_lt_u32 vcc, 0, v{vG}
  v_mov_b32 v{vT[0]}, {BIG}
  v_cndmask_b32 v{vOST[2]}, v{vOST[2]}, v{vT[0]}, vcc
  ; clears
  v_mov_b32 v{vT[4]}, -1
  v_mov_b32 v{vT[5]}, -1
  v_mov_b32 v{vT[6]}, -1
  v_mov_b32 v{vT[7]}, -1
  buffer_store_dwordx4 v[{vT[4]}:{vT[7]}], v{vOST[0]}, {srd(SWS)}, 0 offen sc1
  buffer_store_dwordx4 v[{vT[4]}:{vT[7]}], v{vOST[1]}, {srd(SWS)}, 0 offen sc1
  buffer_store_dwordx4 v[{vT[4]}:{vT[7]}], v{vOST[2]}, {srd(SWS)}, 0 offen sc1
  s_lshl_b32 s{sT2}, s{sG}, 4
  s_add_u32 s{sT2}, s{sT2}, s{sT}
  s_lshl_b32 s{sT2}, s{sT2}, 14
  v_lshlrev_b32 v{vT[0]}, 4, v0
  buffer_store_dwordx4 v[{vT[4]}:{vT[7]}], v{vT[0]}, {srd(SWS)}, s{sT2} offen sc1
  s_add_u32 s{sT2}, s{sT2}, 8192
  buffer_store_dwordx4 v[{vT[4]}:{vT[7]}], v{vT[0]}, {srd(SWS)}, s{sT2} offen sc1
  s_lshl_b32 s{sT2}, s{sT}, 9
  s_add_u32 s{sT2}, s{sT2}, {WS_GATE}
  s_cmp_eq_u32 s{sG}, 0
  s_cselect_b32 s{sT2}, s{sT2}, {BIG}
  v_lshlrev_b32 v{vT[0]}, 2, v0
  v_cmp_gt_u32 vcc, 128, v0
  v_mov_b32 v{vT[1]}, {BIG}
  v_cndmask_b32 v{vT[0]}, v{vT[1]}, v{vT[0]}, vcc
  buffer_store_dword v{vT[4]}, v{vT[0]}, {srd(SWS)}, s{sT2} offen sc1
""")
for _ in range(6): vm.add('clear')
a(f"s_mul_i32 s{sT2}, s{sWV}, 36\nv_add_u32 v{vT[7]}, s{sT2}, v{vLANE}\nv_min_u32 v{vT[7]}, 287, v{vT[7]}")
k, u = dma_off(None, vT[7], 9, None)
a(f"""
  s_movk_i32 s{sT3}, 3456
  v_mul_u32_u24 v{vT[8]}, s{sT3}, v{k}
  v_lshl_add_u32 v{vT[8]}, v{u}, 4, v{vT[8]}
  v_add_u32 v{vWQ}, s{sT4}, v{vT[8]}
  s_movk_i32 s{sT3}, 1152
  v_mul_u32_u24 v{vT[8]}, s{sT3}, v{k}
  v_lshl_add_u32 v{vT[8]}, v{u}, 4, v{vT[8]}
  s_mul_i32 s{sT3}, s{sCB}, 144
  v_add_u32 v{vWO}, s{sT3}, v{vT[8]}
  s_mul_i32 s{sMQ}, s{sWV}, 576
  s_mov_b32 s{sL}, 0x3fb8aa3b
  s_mov_b32 s{sL+1}, 0x3fb8aa3b
  s_mov_b32 s{sL+2}, 0xbfb8aa3b
  s_mov_b32 s{sL+3}, 0xbfb8aa3b
  s_mov_b32 s{sMASK}, 0x00f0000f
  s_mov_b32 s{sMASK+1}, 0xf0000f00
  v_bfe_u32 v{vT[0]}, v{vN}, 2, 1
  v_lshlrev_b32 v{vT[0]}, 1, v{vT[0]}
  v_xor_b32 v{vT[0]}, v{vT[0]}, v{vG}
  v_lshlrev_b32 v{vT[0]}, 4, v{vT[0]}
  v_lshl_add_u32 v{vT[0]}, v{vN}, 6, v{vT[0]}
  s_lshl_b32 s{sT2}, s{sTG}, 11
  v_add_u32 v{vRX[0]}, s{sT2}, v{vT[0]}
  v_add_u32 v{vRX[1]}, 1024, v{vRX[0]}
  v_bfe_u32 v{vT[0]}, v{vLANE}, 2, 2           ; r
  v_lshl_add_u32 v{vT[1]}, v{vG}, 2, v{vT[0]}
  v_and_b32 v{vT[2]}, 3, v{vLANE}              ; c
  v_and_b32 v{vT[3]}, 1, v{vT[0]}
  v_lshlrev_b32 v{vT[3]}, 1, v{vT[3]}
  s_movk_i32 s{sT3}, 288
  v_mul_u32_u24 v{vT[4]}, s{sT3}, v{vT[1]}
  v_add_u32 v{vT[4]}, 8192, v{vT[4]}
""")
def table_writes():
    for j in range(3):
        a(f"""
  v_add_u32 v{vT[5]}, {512*j}, v0                 ; e
  s_mov_b32 s{sT3}, 0xCA46
  v_mul_u32_u24 v{vT[6]}, s{sT3}, v{vT[5]}
  v_lshrrev_b32 v{vT[6]}, 24, v{vT[6]}            ; h = e/324
  s_movk_i32 s{sT3}, 324
  v_mul_u32_u24 v{vT[7]}, s{sT3}, v{vT[6]}
  v_sub_u32 v{vT[7]}, v{vT[5]}, v{vT[7]}          ; rem
  s_mov_b32 s{sT3}, 0xE38F
  v_mul_u32_u24 v{vT[8]}, s{sT3}, v{vT[7]}
  v_lshrrev_b32 v{vT[8]}, 20, v{vT[8]}            ; d
  v_mul_u32_u24 v{vT[9]}, 18, v{vT[8]}
  v_sub_u32 v{vT[9]}, v{vT[7]}, v{vT[9]}          ; fo
  v_mul_u32_u24 v{vT[10]}, 20, v{vT[6]}
  v_add_u32 v{vT[10]}, v{vT[10]}, v{vT[9]}
  v_mul_u32_u24 v{vT[10]}, 48, v{vT[10]}
  v_and_b32 v{vT[6]}, 1, v{vT[6]}
  v_lshl_add_u32 v{vT[8]}, v{vT[6]}, 1, v{vT[8]}  ; slot
  v_lshl_add_u32 v{vT[10]}, v{vT[8]}, 1, v{vT[10]}
  v_add_u32 v{vT[10]}, {T2}, v{vT[10]}
""")
        if j == 2:
            a(f"""
  v_cmp_gt_u32 vcc, {1296-1024}, v0
  s_and_saveexec_b64 s[94:95], vcc
  ds_write_b16 v{vT[10]}, v{WF+j}
  s_mov_b64 exec, -1
""")
        else:
            a(f"ds_write_b16 v{vT[10]}, v{WF+j}")
    a(f"""
  v_lshlrev_b32 v{vT[5]}, 2, v0
  v_add_u32 v{vT[5]}, {GW}, v{vT[5]}
  v_cmp_gt_u32 vcc, 288, v0
  s_and_saveexec_b64 s[94:95], vcc
  ds_write_b32 v{vT[5]}, v{WF+3}
  s_mov_b64 exec, -1
""")

def issue_wq(i):
    a(f"""
  s_mul_i32 s{sT3}, s{sK}, {32*3456}
  s_add_u32 m0, s{sMQ}, {WQ + i*KST}
  buffer_load_dwordx4 v{vWQ}, {srd(SW)}, s{sT3} offen lds
  s_add_u32 s{sK}, s{sK}, 1
  s_cmp_eq_u32 s{sK}, 18
  s_cselect_b32 s{sK}, 0, s{sK}
""")
EX36 = "s_mov_b32 exec_lo, -1\n  s_mov_b32 exec_hi, 0xf"
def issue_wo(kks):
    a(EX36)
    for kk in kks:
        addr = wo_addr[kk] if kk != 35 else WOSAVE
        s_ = SWOA if kk < 18 else SWOB
        a(f"""
  s_mov_b32 s{sT3}, {(kk % 18) * 32 * 1152}
  s_add_u32 m0, s{sMQ}, {addr}
  buffer_load_dwordx4 v{vWO}, {srd(s_)}, s{sT3} offen lds
""")
    a("s_mov_b64 exec, -1")

wq_sched = {}
for i in range(18):
    sl = ((i + 1) * KST - 1) // SLOT
    wq_sched.setdefault(10 + sl, []).append(i)

KOFF8 = [0, 4, 9, 13]
TILEV = [[20,21,22,23],[18,19,24,25],[26,27,24,25],[28,29,30,31],[32,33,34,35]]

def pass1(role):
    global vm
    vmr = VM(); vmr.ops = list(vm.ops)
    for t in range(5):
        units = [KOFF8[c] + t for c in range(4)] if role == 0 else TILEV[t]
        packed = sum(u << (8 * c) for c, u in enumerate(units))
        a(f"""
  s_mov_b32 s{sT3}, {packed}
  v_lshlrev_b32 v{vT[5]}, 3, v{vT[2]}
  v_lshrrev_b32 v{vT[5]}, v{vT[5]}, s{sT3}
  v_and_b32 v{vT[5]}, 0xff, v{vT[5]}
  v_xor_b32 v{vT[5]}, v{vT[5]}, v{vT[3]}
  v_lshl_add_u32 v{vRA[t]}, v{vT[5]}, 3, v{vT[4]}
""")
    base = [0]
    def setbase(sl):
        want = (sl // 4) * 4 * SLOT
        if want != base[0]:
            d = want - base[0]
            for r in vRA + vRX:
                if d > 0: a(f"v_add_u32 v{r}, {d}, v{r}")
                else: a(f"v_subrev_u32 v{r}, {-d}, v{r}")
            base[0] = want
    def xregs(ks, tt):
        if role == 1: return X0 + 8 * ks + 4 * tt
        return X0 + 8 * (ks & 1) + 4 * tt
    def reads(ks):
        sl = ks % 9
        setbase(sl)
        off = sl * SLOT - base[0]
        wf = WF + 20 * (ks & 1)
        for tt in range(2):
            a(f"ds_read_b128 {v(xregs(ks, tt), 4)}, v{vRX[tt]} offset:{off}")
        for t in range(5):
            for hh in range(2):
                a(f"ds_read_b64_tr_b16 {v(wf + 4*t + 2*hh, 2)}, v{vRA[t]} offset:{off + hh*4608}")
    def mfmas(ks):
        wf = WF + 20 * (ks & 1)
        for t in range(5):
            for tt in range(2):
                acc = ACC + 20 * tt + 4 * t
                c = v(acc, 4) if ks > 0 else '0'
                if role == 0: a(f"v_mfma_f32_16x16x32_bf16 {v(acc,4)}, {v(wf+4*t,4)}, {v(xregs(ks,tt),4)}, {c}")
                else: a(f"v_mfma_f32_16x16x32_bf16 {v(acc,4)}, {v(xregs(ks,tt),4)}, {v(wf+4*t,4)}, {c}")
    for ks in range(18):
        a(f"s_waitcnt vmcnt({min(63, vmr.wait_for(('p1', ks)))}) lgkmcnt(0)")
        a("s_barrier")
        if ks == 0:
            if role == 0: stamp('first data')
            a(f"s_waitcnt vmcnt({min(63, vmr.wait_for('small'))})")
            table_writes()
        if 1 <= ks <= 9:
            vm_save = vm; vm = vmr; issue_p1(ks + 8); vm = vm_save
        if ks == 10:
            a(f"s_mov_b32 s{sK}, s{sROT}")
        if ks in wq_sched:
            a(EX36)
            for i in wq_sched[ks]:
                issue_wq(i); vmr.add('wq')
            a("s_mov_b64 exec, -1")
        if ks == 10:
            if role == 0:
                a(f"""
  s_cmp_lg_u32 s{sWV}, 0
  s_cbranch_scc1 L_noflag
  s_lshl_b32 s{sT2}, s{sG}, 4
  s_add_u32 s{sT2}, s{sT2}, s{sT}
  v_mov_b32 v{vT[5]}, 1
  v_mov_b32 v{vT[6]}, 0
  s_mov_b64 exec, 1
  buffer_store_byte v{vT[5]}, v{vT[6]}, {srd(SDBG)}, s{sT2} offen sc1
  s_mov_b64 exec, -1
L_noflag:
""")
        reads(ks)
        if ks > 0: mfmas(ks - 1)
    a("s_waitcnt lgkmcnt(0)")
    mfmas(17)
    return vmr

P = ACC
EP = ACC + 20
KB = WF
AF = WF + 12
PH = WF + 20

def stage2_softmax(kb, ph):
    af = [vT[4], vT[8]]
    a(f"""
  v_mul_u32_u24 v{vT[0]}, 20, v{vG}
  v_and_b32 v{vT[1]}, 3, v{vN}
  v_add_u32 v{vT[0]}, v{vT[0]}, v{vT[1]}
  v_mul_u32_u24 v{vT[0]}, 48, v{vT[0]}
  v_add_u32 v{vT[0]}, {T2}, v{vT[0]}
""")
    for r in range(8, 16): a(f"v_mov_b32 v{r}, 0")
    seq = [(t, c) for t in range(5) for c in range(3)]
    a(f"s_mov_b64 exec, s[{sMASK}:{sMASK+1}]")
    a(f"ds_read_b128 {v(af[0],4)}, v{vT[0]} offset:0")
    for i, (t, c) in enumerate(seq):
        if i + 1 < len(seq):
            t2, c2 = seq[i + 1]
            a(f"ds_read_b128 {v(af[(i+1)&1],4)}, v{vT[0]} offset:{t2*192 + c2*16}")
            a("s_waitcnt lgkmcnt(1)")
        else:
            a("s_waitcnt lgkmcnt(0)")
        a("s_mov_b64 exec, -1")
        cc = v(P + 4*t, 4) if c > 0 else '0'
        a(f"v_mfma_f32_16x16x32_bf16 {v(P+4*t,4)}, {v(af[i&1],4)}, {v(kb+4*c,4)}, {cc}")
        if i + 1 < len(seq): a(f"s_mov_b64 exec, s[{sMASK}:{sMASK+1}]")
    mx, mn = vT[0], vT[2]
    a(f"v_max3_f32 v{mx}, v{P}, v{P+1}, v{P+2}\nv_min3_f32 v{mn}, v{P}, v{P+1}, v{P+2}")
    for i in range(3, 17, 2):
        a(f"v_max3_f32 v{mx}, v{mx}, v{P+i}, v{P+i+1}\nv_min3_f32 v{mn}, v{mn}, v{P+i}, v{P+i+1}")
    a(f"v_max_f32 v{mx}, v{mx}, v{P+17}\nv_min_f32 v{mn}, v{mn}, v{P+17}")
    a(f"v_mul_f32 v{mx}, s{sL+2}, v{mx}\nv_mul_f32 v{mn}, s{sL}, v{mn}")
    for i in range(9):
        a(f"v_pk_fma_f32 {v(EP+2*i,2)}, {v(P+2*i,2)}, s[{sL}:{sL+1}], {v(mx,2)} op_sel_hi:[1,1,0]")
    for i in range(9):
        a(f"v_pk_fma_f32 {v(P+2*i,2)}, {v(P+2*i,2)}, s[{sL+2}:{sL+3}], {v(mn,2)} op_sel_hi:[1,1,0]")
    for i in range(18): a(f"v_exp_f32 v{EP+i}, v{EP+i}")
    for i in range(18): a(f"v_exp_f32 v{P+i}, v{P+i}")
    sp, sm = vT[4], vT[6]
    a(f"v_pk_add_f32 {v(sp,2)}, {v(EP,2)}, {v(EP+2,2)}\nv_pk_add_f32 {v(sm,2)}, {v(P,2)}, {v(P+2,2)}")
    for i in range(2, 9):
        a(f"v_pk_add_f32 {v(sp,2)}, {v(sp,2)}, {v(EP+2*i,2)}\nv_pk_add_f32 {v(sm,2)}, {v(sm,2)}, {v(P+2*i,2)}")
    a(f"v_add_f32 v{sp}, v{sp}, v{sp+1}\nv_add_f32 v{sm}, v{sm}, v{sm+1}")
    a(f"v_rcp_f32 v{sp}, v{sp}\nv_rcp_f32 v{sm}, v{sm}")
    for i in range(9):
        a(f"v_pk_mul_f32 {v(EP+2*i,2)}, {v(EP+2*i,2)}, {v(sp,2)} op_sel_hi:[1,0]")
    for i in range(9):
        a(f"v_pk_mul_f32 {v(P+2*i,2)}, {v(P+2*i,2)}, {v(sm,2)} op_sel_hi:[1,0]")
    for i in range(9):
        a(f"v_cvt_pk_bf16_f32 v{ph+i}, v{EP+2*i}, v{EP+2*i+1}")
    for i in range(9):
        a(f"v_cvt_pk_bf16_f32 v{ph+9+i}, v{P+2*i}, v{P+2*i+1}")
    a(f"v_mov_b32 v{ph+18}, 0\nv_mov_b32 v{ph+19}, 0")

def dump_regs(name, regs, slot):
    if name not in DUMP: return
    a(f"""
  s_lshl_b32 s{sT2}, s2, 3
  s_add_u32 s{sT2}, s{sT2}, s{sWV}
  s_mul_i32 s{sT2}, s{sT2}, {64*256}
  s_add_u32 s{sT2}, s{sT2}, {WS_DUMP + slot * (2048*64*256)}
  v_lshlrev_b32 v{vT[0]}, 2, v{vLANE}
""")
    for i, r in enumerate(regs):
        a(f"buffer_store_dword v{r}, v{vT[0]}, {srd(SWS)}, s{sT2} offen offset:{i*256}")
    a("s_waitcnt vmcnt(0)")

a(f"s_cmp_eq_u32 s{sROLE}, 1\ns_cbranch_scc1 L_vwave")
vmK = pass1(0)
stamp('pass1 done')
dump_regs('kacc', list(range(ACC, ACC + 40)), 0)
for t in range(5):
    a(f"v_cvt_pk_bf16_f32 v{X0+2*t}, v{ACC+20+4*t}, v{ACC+20+4*t+1}\nv_cvt_pk_bf16_f32 v{X0+2*t+1}, v{ACC+20+4*t+2}, v{ACC+20+4*t+3}")
a(f"""
  s_mul_i32 s{sT2}, s{sTG}, 3072
  s_add_u32 s{sT2}, s{sT2}, {HK}
  v_lshlrev_b32 v{vT[0]}, 4, v{vLANE}
  v_add_u32 v{vT[0]}, s{sT2}, v{vT[0]}
  ds_write_b128 v{vT[0]}, {v(X0,4)}
  ds_write_b128 v{vT[0]}, {v(X0+4,4)} offset:1024
  ds_write_b64 v{vT[0]}, {v(X0+8,2)} offset:2048
""")
for t in range(5):
    a(f"v_cvt_pk_bf16_f32 v{KB+2*t}, v{ACC+4*t}, v{ACC+4*t+1}\nv_cvt_pk_bf16_f32 v{KB+2*t+1}, v{ACC+4*t+2}, v{ACC+4*t+3}")
a(f"v_mov_b32 v{KB+10}, 0\nv_mov_b32 v{KB+11}, 0")
a("s_waitcnt vmcnt(0) lgkmcnt(0)\ns_barrier")
a("s_branch L_post1")
a("L_vwave:")
vmV = pass1(1)
dump_regs('vacc', list(range(ACC, ACC + 40)), 0)
for ct in range(5):
    for tt in range(2):
        s_ = ACC + 20 * tt + 4 * ct
        a(f"v_cvt_pk_bf16_f32 v{WF+4*ct+2*tt}, v{s_}, v{s_+1}\nv_cvt_pk_bf16_f32 v{WF+4*ct+2*tt+1}, v{s_+2}, v{s_+3}")
a(f"""
  v_cmp_eq_u32 vcc, 8, v{vN}
  v_mov_b32 v{vT[1]}, 0x3f803f80
  v_cndmask_b32 v{WF+8}, v{WF+8}, v{vT[1]}, vcc
  v_cndmask_b32 v{WF+9}, v{WF+9}, v{vT[1]}, vcc
  v_cndmask_b32 v{WF+10}, v{WF+10}, v{vT[1]}, vcc
  v_cndmask_b32 v{WF+11}, v{WF+11}, v{vT[1]}, vcc
  s_mul_i32 s{sT2}, s{sTG}, 5120
  s_add_u32 s{sT2}, s{sT2}, {VF}
  v_lshlrev_b32 v{vT[0]}, 4, v{vLANE}
  v_add_u32 v{vT[1]}, s{sT2}, v{vT[0]}
""")
for ct in range(5):
    a(f"ds_write_b128 v{vT[1]}, {v(WF+4*ct,4)} offset:{ct*1024}")
a(f"""
  s_mul_i32 s{sT2}, s{sTG}, 3072
  s_add_u32 s{sT2}, s{sT2}, {HK}
  v_add_u32 v{vT[0]}, s{sT2}, v{vT[0]}
  s_waitcnt vmcnt(0) lgkmcnt(0)
  s_barrier
  ds_read_b128 {v(KB,4)}, v{vT[0]}
  ds_read_b128 {v(KB+4,4)}, v{vT[0]} offset:1024
  ds_read_b64 {v(KB+8,2)}, v{vT[0]} offset:2048
  v_mov_b32 v{KB+10}, 0
  v_mov_b32 v{KB+11}, 0
  s_waitcnt lgkmcnt(0)
""")
a("L_post1:")
PHK = WF + 20
stage2_softmax(KB, PHK)
dump_regs('phik', list(range(PHK, PHK + 20)), 1)
SEL = WF
a(f"""
  v_lshrrev_b32 v{vT[0]}, 3, v{vN}             ; n>>3
  v_and_b32 v{vT[1]}, 1, v{vN}
  v_lshlrev_b32 v{vT[1]}, 4, v{vT[1]}
  v_mov_b32 v{vT[2]}, 0x3f80
  v_lshlrev_b32 v{vT[2]}, v{vT[1]}, v{vT[2]}   ; value
  v_bfe_u32 v{vT[3]}, v{vN}, 1, 2
""")
for half in range(2):
    for j2 in range(4):
        a(f"""
  v_add_u32 v{vT[4]}, {2*half}, v{vT[0]}
  v_cmp_eq_u32 vcc, v{vT[4]}, v{vG}
  v_cmp_eq_u32 s[94:95], {j2}, v{vT[3]}
  s_and_b64 vcc, vcc, s[94:95]
  v_cndmask_b32 v{SEL+4*half+j2}, 0, v{vT[2]}, vcc
""")
a(f"""
  s_mul_i32 s{sT2}, s{sTG}, 10240
  s_lshl_b32 s{sT3}, s{sROLE}, 3
  s_add_u32 s{sT2}, s{sT2}, s{sT3}
  s_add_u32 s{sT2}, s{sT2}, {PF}
  v_lshlrev_b32 v{vT[0]}, 4, v{vLANE}
  v_add_u32 v{vT[0]}, s{sT2}, v{vT[0]}
""")
for c in range(5):
    for half in range(2):
        rt = 2 * c + half
        a(f"v_mfma_f32_16x16x32_bf16 {v(ACC+4*rt,4)}, {v(PHK+4*c,4)}, {v(SEL+4*half,4)}, 0")
for rt in range(10):
    d = ACC + 4 * rt
    a(f"v_cvt_pk_bf16_f32 v{d}, v{d}, v{d+1}\nv_cvt_pk_bf16_f32 v{d+1}, v{d+2}, v{d+3}")
    a(f"ds_write_b64 v{vT[0]}, {v(d,2)} offset:{rt*1024}")
a("s_waitcnt lgkmcnt(0)\ns_barrier")
stamp('P2')
a(f"v_lshlrev_b32 v{vT[0]}, 4, v{vLANE}")
a(f"""
  s_lshl_b32 s{sT5}, s{sG}, 4
  s_add_u32 s{sT5}, s{sT5}, s{sT}
  s_lshl_b32 s{sT5}, s{sT5}, 14
""")
for i in range(4):
    A = WF; Bf = WF + 16
    acc = ACC + 4 * i
    a(f"""
  s_lshl_b32 s{sT2}, s{sWV}, 2
  s_add_u32 s{sT2}, s{sT2}, {i}
  s_min_u32 s{sT2}, s{sT2}, 29               ; p
  s_mul_i32 s{sT3}, s{sT2}, 43
  s_lshr_b32 s{sT3}, s{sT3}, 7               ; rt = p/3
  s_mul_i32 s{sT4}, s{sT3}, 3
  s_sub_u32 s{sT2}, s{sT2}, s{sT4}           ; ci
  s_and_b32 s{sT4}, s{sT3}, 1                ; half
  s_mul_i32 s{sT0}, s{sT4}, 3
  s_add_u32 s{sT0}, s{sT0}, s{sT2}
  s_cmp_eq_u32 s{sT2}, 2
  s_cselect_b32 s{sT0}, 2, s{sT0}            ; ct
  s_lshl_b32 s{sT1}, s{sT3}, 10
  s_add_u32 s{sT1}, s{sT1}, {PF}
  v_add_u32 v{vT[1]}, s{sT1}, v{vT[0]}
  s_lshl_b32 s{sT1}, s{sT0}, 10
  s_add_u32 s{sT1}, s{sT1}, {VF}
  v_add_u32 v{vT[2]}, s{sT1}, v{vT[0]}
""")
    for tg in range(4):
        a(f"ds_read_b128 {v(A+4*tg,4)}, v{vT[1]} offset:{tg*10240}")
        a(f"ds_read_b128 {v(Bf+4*tg,4)}, v{vT[2]} offset:{tg*5120}")
    a(f"""
  s_lshl_b32 s{sT1}, s{sT0}, 3
  s_mov_b32 s{sT2}, 0x28200008
  s_lshr_b32 s{sT2}, s{sT2}, s{sT1}
  s_and_b32 s{sT2}, s{sT2}, 0xff
  s_cmp_eq_u32 s{sT0}, 4
  s_cselect_b32 s{sT2}, 56, s{sT2}           ; sA
  s_cmp_eq_u32 s{sT0}, 1
  s_cselect_b32 s{sT1}, 16, 0
  s_cmp_eq_u32 s{sT0}, 2
  s_cselect_b32 s{sT1}, 200, s{sT1}
  v_mov_b32 v{vT[4]}, s{sT1}
  v_cmp_lt_u32 vcc, 7, v{vN}
  v_cndmask_b32 v{vT[4]}, 0, v{vT[4]}, vcc
  v_add3_u32 v{vT[4]}, v{vT[4]}, v{vN}, s{sT2}   ; vc
  v_mul_u32_u24 v{vT[5]}, 57, v{vT[4]}
  v_lshrrev_b32 v{vT[5]}, 10, v{vT[5]}           ; hc
  v_mul_u32_u24 v{vT[6]}, 18, v{vT[5]}
  v_sub_u32 v{vT[6]}, v{vT[4]}, v{vT[6]}         ; d
  s_lshl_b32 s{sT1}, s{sT4}, 1
  v_lshrrev_b32 v{vT[7]}, 1, v{vG}
  v_add_u32 v{vT[7]}, s{sT1}, v{vT[7]}           ; head_row
  v_cmp_eq_u32 vcc, 240, v{vT[4]}
  v_cndmask_b32 v{vT[5]}, v{vT[5]}, v{vT[7]}, vcc
  v_cndmask_b32 v{vT[6]}, v{vT[6]}, 18, vcc
  v_mul_u32_u24 v{vT[8]}, 19, v{vT[7]}
  v_add_u32 v{vT[8]}, v{vT[8]}, v{vT[6]}
  v_mul_u32_u24 v{vT[8]}, 160, v{vT[8]}
  s_lshr_b32 s{sT1}, s{sT3}, 1                   ; c
  s_lshl_b32 s{sT1}, s{sT1}, 3
  v_and_b32 v{vT[9]}, 1, v{vG}
  v_lshl_add_u32 v{vT[9]}, v{vT[9]}, 2, s{sT1}   ; f0
  v_lshl_add_u32 v{vT[8]}, v{vT[9]}, 2, v{vT[8]}
  v_cmp_eq_u32 vcc, v{vT[5]}, v{vT[7]}
  v_cmp_gt_u32 s[94:95], 36, v{vT[9]}
  s_and_b64 vcc, vcc, s[94:95]
  v_mov_b32 v{vT[9]}, {BIG}
  v_cndmask_b32 v{ACC+20+i}, v{vT[9]}, v{vT[8]}, vcc
""")
    for tg in range(4):
        a(f"s_waitcnt lgkmcnt({6-2*tg})")
        c = v(acc, 4) if tg > 0 else '0'
        a(f"v_mfma_f32_16x16x32_bf16 {v(acc,4)}, {v(A+4*tg,4)}, {v(Bf+4*tg,4)}, {c}")
for i in range(4):
    acc = ACC + 4 * i
    for r in range(4): a(f"v_min_u32 v{acc+r}, -2, v{acc+r}")
    a(f"buffer_store_dwordx4 {v(acc,4)}, v{ACC+20+i}, {srd(SWS)}, s{sT5} offen sc1")
stamp('partials stored')
a("s_barrier")
issue_wo(grp1 + [35])
a(f"s_cmp_eq_u32 s{sROLE}, 1\ns_cbranch_scc1 L_qpass")

a(f"""
  v_lshlrev_b32 v{vT[0]}, 2, v{vLANE}
  s_mov_b32 s{sRETRY}, 0
L_flagpoll:
  buffer_load_dword v{vT[1]}, v{vT[0]}, {srd(SDBG)}, 0 offen sc1
  s_waitcnt vmcnt(0)
  v_cmp_ne_u32 vcc, 0x01010101, v{vT[1]}
  s_cbranch_vccz L_flagok
  s_sleep 2
  s_add_u32 s{sRETRY}, s{sRETRY}, 1
  s_cmp_lt_u32 s{sRETRY}, 20000
  s_cbranch_scc1 L_flagpoll
L_flagok:
  s_mov_b32 s{sRETRY}, 0
""")
GQ = [vT[4], vT[5], vT[6]]
LQ = [vT[7], vT[8], vT[9]]
for j in range(3):
    a(f"""
  v_add_u32 v{vT[0]}, {256*j}, v0
  s_mov_b32 s{sT3}, 0xE38F
  v_mul_u32_u24 v{vT[1]}, s{sT3}, v{vT[0]}
  v_lshrrev_b32 v{vT[1]}, 19, v{vT[1]}
  v_mul_u32_u24 v{vT[2]}, 9, v{vT[1]}
  v_sub_u32 v{vT[2]}, v{vT[0]}, v{vT[2]}        ; fq
  v_mul_u32_u24 v{GQ[j]}, 160, v{vT[1]}
  v_lshl_add_u32 v{GQ[j]}, v{vT[2]}, 4, v{GQ[j]}
  v_mul_u32_u24 v{LQ[j]}, 80, v{vT[1]}
  v_lshl_add_u32 v{LQ[j]}, v{vT[2]}, 3, v{LQ[j]}
  v_add_u32 v{LQ[j]}, {KVT}, v{LQ[j]}
""")
a(f"""
  v_cmp_gt_u32 vcc, {684-512}, v0
  v_mov_b32 v{vT[0]}, {BIG}
  v_cndmask_b32 v{GQ[2]}, v{vT[0]}, v{GQ[2]}, vcc
  s_lshl_b32 s{sT5}, s{sG}, 18
  s_mov_b32 s{sPEND}, 0xffff
""")
PB = X0
a("L_gather:")
for p in range(16):
    lab = f"L_gl{p}"
    a(f"s_bitcmp1_b32 s{sPEND}, {p}\ns_cbranch_scc0 {lab}")
    a(f"s_add_u32 s{sT2}, s{sT5}, {p*16384}")
    for j in range(3):
        a(f"buffer_load_dwordx4 {v(PB+12*p+4*j,4)}, v{GQ[j]}, {srd(SWS)}, s{sT2} offen sc1")
    a(f"{lab}:")
a("s_waitcnt vmcnt(0)")
for p in range(16):
    r = PB + 12 * p
    a(f"v_max3_u32 v{vT[0]}, v{r}, v{r+1}, v{r+2}")
    for q in range(3, 11, 2): a(f"v_max3_u32 v{vT[0]}, v{vT[0]}, v{r+q}, v{r+q+1}")
    a(f"v_max_u32 v{vT[0]}, v{vT[0]}, v{r+11}")
    a(f"v_cmp_eq_u32 vcc, -1, v{vT[0]}")
    a(f"s_cmp_eq_u64 vcc, 0\ns_cselect_b32 s{sT2}, {1<<p}, 0\ns_andn2_b32 s{sPEND}, s{sPEND}, s{sT2}")
a(f"""
  s_add_u32 s{sRETRY}, s{sRETRY}, 1
  s_cmp_gt_u32 s{sRETRY}, 20000
  s_cselect_b32 s{sPEND}, 0, s{sPEND}
  s_cmp_lg_u32 s{sPEND}, 0
  s_cbranch_scc1 L_gather""")
stamp('partials gathered')
for p in range(1, 16):
    for q in range(0, 12, 2):
        a(f"v_pk_add_f32 {v(PB+q,2)}, {v(PB+q,2)}, {v(PB+12*p+q,2)}")
for j in range(3):
    r = PB + 4 * j
    a(f"v_cvt_pk_bf16_f32 v{r}, v{r}, v{r+1}\nv_cvt_pk_bf16_f32 v{r+1}, v{r+2}, v{r+3}")
a(f"ds_write_b64 v{LQ[0]}, {v(PB,2)}\nds_write_b64 v{LQ[1]}, {v(PB+4,2)}")
a(f"""
  v_cmp_gt_u32 vcc, {684-512}, v0
  s_and_saveexec_b64 s[94:95], vcc
  ds_write_b64 v{LQ[2]}, {v(PB+8,2)}
  s_mov_b64 exec, -1
  v_mul_u32_u24 v{vT[0]}, 80, v0
  v_add_u32 v{vT[0]}, {KVT+72}, v{vT[0]}
  v_mov_b32 v{vT[2]}, 0
  v_mov_b32 v{vT[3]}, 0
  v_cmp_gt_u32 vcc, 76, v0
  s_and_saveexec_b64 s[94:95], vcc
  ds_write_b64 v{vT[0]}, v[{vT[2]}:{vT[3]}]
  s_mov_b64 exec, -1
""")
a("s_waitcnt lgkmcnt(0)\ns_barrier")
PHQ = WF + 20
a(f"""
  s_mul_i32 s{sT2}, s{sTG}, 5120
  s_add_u32 s{sT2}, s{sT2}, {PQ}
  v_lshlrev_b32 v{vT[0]}, 4, v{vLANE}
  v_add_u32 v{vT[0]}, s{sT2}, v{vT[0]}
""")
for c in range(5): a(f"ds_read_b128 {v(PHQ+4*c,4)}, v{vT[0]} offset:{c*1024}")
a("s_branch L_num")

a("L_qpass:")
a(f"""
  v_bfe_u32 v{vT[0]}, v{vLANE}, 2, 2
  v_lshl_add_u32 v{vT[1]}, v{vG}, 2, v{vT[0]}
  v_and_b32 v{vT[2]}, 3, v{vLANE}
  s_movk_i32 s{sT3}, 144
  v_mul_u32_u24 v{vT[4]}, s{sT3}, v{vT[1]}
  s_mov_b32 s{sT3}, {sum(u << (8*c) for c, u in enumerate(KOFF8))}
  v_lshlrev_b32 v{vT[5]}, 3, v{vT[2]}
  v_lshrrev_b32 v{vT[5]}, v{vT[5]}, s{sT3}
  v_and_b32 v{vT[5]}, 0xff, v{vT[5]}
  v_lshl_add_u32 v{vRA[0]}, v{vT[5]}, 3, v{vT[4]}
  v_add_u32 v{vRA[1]}, {13*KST}, v{vRA[0]}
  v_lshlrev_b32 v{vRA[2]}, 4, v{vG}
  v_add_u32 v{vRA[2]}, {GW}, v{vRA[2]}
  v_mov_b32 v{vT[0]}, 0
  v_mov_b32 v{vT[1]}, 0
  s_mov_b32 s{sK}, s{sROT}
""")
GF = [vT[4], vT[8]]
def qreads(i):
    wf = WF + 20 * (i & 1)
    ra, off = (vRA[0], WQ + i * KST) if i < 13 else (vRA[1], WQ + (i - 13) * KST)
    a(f"s_lshl_b32 s{sT2}, s{sK}, 6\nv_add_u32 v{vRA[3]}, s{sT2}, v{vRA[2]}")
    a(f"s_add_u32 s{sK}, s{sK}, 1\ns_cmp_eq_u32 s{sK}, 18\ns_cselect_b32 s{sK}, 0, s{sK}")
    a(f"ds_read_b128 {v(GF[i&1],4)}, v{vRA[3]}")
    for t in range(5):
        for hh in range(2):
            a(f"ds_read_b64_tr_b16 {v(wf+4*t+2*hh,2)}, v{ra} offset:{off + hh*2304 + 8*t}")
def qmfmas(i):
    wf = WF + 20 * (i & 1)
    for t in range(5):
        for tt in range(2):
            acc = ACC + 20 * tt + 4 * t
            c = v(acc, 4) if i > 0 else '0'
            a(f"v_mfma_f32_16x16x32_bf16 {v(acc,4)}, {v(wf+4*t,4)}, {v(X0+8*i+4*tt,4)}, {c}")
        if t < 4:
            for tt in range(2):
                a(f"v_dot2_f32_bf16 v{vT[tt]}, v{X0+8*i+4*tt+t}, v{GF[i&1]+t}, v{vT[tt]}")
qreads(0)
for i in range(18):
    if i + 1 < 18:
        qreads(i + 1)
        a("s_waitcnt lgkmcnt(11)")
    else:
        a("s_waitcnt lgkmcnt(0)")
    qmfmas(i)
stamp('q gemm done(V)') if False else None
a("s_nop 3")
for tt in range(2):
    a(f"ds_swizzle_b32 v{vT[2]}, v{vT[tt]} offset:swizzle(SWAP,16)\ns_waitcnt lgkmcnt(0)\nv_add_f32 v{vT[tt]}, v{vT[tt]}, v{vT[2]}")
    a(f"v_mov_b32 v{vT[2]}, v{vT[tt]}\nv_permlane32_swap_b32 v{vT[2]}, v{vT[tt]}\nv_add_f32 v{vT[tt]}, v{vT[tt]}, v{vT[2]}")
a(f"""
  v_cmp_eq_u32 vcc, 1, v{vG}
  v_cndmask_b32 v{vT[0]}, v{vT[0]}, v{vT[1]}, vcc
  v_min_u32 v{vT[0]}, -2, v{vT[0]}
  v_lshlrev_b32 v{vT[2]}, 2, v{vLANE}
  v_cmp_gt_u32 vcc, 32, v{vLANE}
  v_mov_b32 v{vT[3]}, {BIG}
  v_cndmask_b32 v{vT[2]}, v{vT[3]}, v{vT[2]}, vcc
  s_lshl_b32 s{sT2}, s{sT}, 9
  s_lshl_b32 s{sT3}, s{sTG}, 7
  s_add_u32 s{sT2}, s{sT2}, s{sT3}
  s_add_u32 s{sT2}, s{sT2}, {WS_GATE}
  s_cmp_eq_u32 s{sG}, 0
  s_cselect_b32 s{sT2}, s{sT2}, {BIG}
  buffer_store_dword v{vT[0]}, v{vT[2]}, {srd(SWS)}, s{sT2} offen sc1
""")
dump_regs('qacc', list(range(ACC, ACC + 40)), 2)
for tt in range(2):
    for t in range(5):
        s_ = ACC + 20 * tt + 4 * t
        a(f"v_cvt_pk_bf16_f32 v{X0+12*tt+2*t}, v{s_}, v{s_+1}\nv_cvt_pk_bf16_f32 v{X0+12*tt+2*t+1}, v{s_+2}, v{s_+3}")
    a(f"v_mov_b32 v{X0+12*tt+10}, 0\nv_mov_b32 v{X0+12*tt+11}, 0")
stage2_softmax(X0, X0 + 24)
a(f"""
  s_mul_i32 s{sT2}, s{sTG}, 5120
  s_add_u32 s{sT2}, s{sT2}, {PQ}
  v_lshlrev_b32 v{vT[0]}, 4, v{vLANE}
  v_add_u32 v{vT[0]}, s{sT2}, v{vT[0]}
""")
for c in range(5): a(f"ds_write_b128 v{vT[0]}, {v(X0+24+4*c,4)} offset:{c*1024}")
stage2_softmax(X0 + 12, PHQ)
a("s_waitcnt vmcnt(0) lgkmcnt(0)\ns_barrier")
a("L_num:")
stamp('P3 passed')
issue_wo(grp2)
a("s_waitcnt lgkmcnt(0)")
dump_regs('phiq', list(range(PHQ, PHQ + 20)), 3)
SAVE = X0 + 120
af = [vT[4], vT[8]]
a(f"""
  v_mul_u32_u24 v{vT[0]}, 19, v{vG}
  v_and_b32 v{vT[1]}, 3, v{vN}
  v_add_u32 v{vT[0]}, v{vT[0]}, v{vT[1]}
  v_mul_u32_u24 v{vT[0]}, 80, v{vT[0]}
  v_add_u32 v{vT[0]}, {KVT}, v{vT[0]}
""")
for r in range(8, 16): a(f"v_mov_b32 v{r}, 0")
seq = [(t, c) for t in range(5) for c in range(5)]
a(f"s_mov_b64 exec, s[{sMASK}:{sMASK+1}]")
a(f"ds_read_b128 {v(af[0],4)}, v{vT[0]} offset:0")
for i, (t, c) in enumerate(seq):
    if i + 1 < len(seq):
        t2, c2 = seq[i + 1]
        a(f"ds_read_b128 {v(af[(i+1)&1],4)}, v{vT[0]} offset:{t2*320 + c2*16}")
        a("s_waitcnt lgkmcnt(1)")
    else:
        a("s_waitcnt lgkmcnt(0)")
    a("s_mov_b64 exec, -1")
    cc = v(ACC + 4*t, 4) if c > 0 else '0'
    a(f"v_mfma_f32_16x16x32_bf16 {v(ACC+4*t,4)}, {v(af[i&1],4)}, {v(PHQ+4*c,4)}, {cc}")
    if i + 1 < len(seq): a(f"s_mov_b64 exec, s[{sMASK}:{sMASK+1}]")
a(f"""
  v_bfe_u32 v{vT[0]}, v{vLANE}, 2, 2
  v_lshl_add_u32 v{vT[1]}, v{vG}, 2, v{vT[0]}
  v_and_b32 v{vT[2]}, 3, v{vLANE}
  s_movk_i32 s{sT3}, 144
  v_mul_u32_u24 v{vT[1]}, s{sT3}, v{vT[1]}
  v_lshl_add_u32 v{vRA[0]}, v{vT[2]}, 3, v{vT[1]}
  v_add_u32 v{vRA[1]}, {WOSAVE}, v{vRA[0]}
""")
SAVE = WF
for t in range(5):
    for hh in range(2):
        a(f"ds_read_b64_tr_b16 {v(SAVE+4*t+2*hh,2)}, v{vRA[1]} offset:{hh*2304 + 32*t}")
a(f"""
  v_add_f32 v{vT[0]}, 0x358637bd, v{ACC+18}
  v_rcp_f32 v{vT[0]}, v{vT[0]}
""")
for i in range(9):
    a(f"v_pk_mul_f32 {v(ACC+2*i,2)}, {v(ACC+2*i,2)}, {v(vT[0],2)} op_sel_hi:[1,0]")
for i in range(9):
    a(f"v_cvt_pk_bf16_f32 v{ACC+20+i}, v{ACC+2*i}, v{ACC+2*i+1}")
for i in range(9):
    a(f"v_min_u32 v{ACC+20+i}, -2, v{ACC+20+i}")
dump_regs('o', list(range(ACC + 20, ACC + 29)), 4)
a(f"""
  s_mul_i32 s{sT2}, s{sWV}, 2304
  s_add_u32 s{sT2}, s{sT2}, {OST}
  s_movk_i32 s{sT3}, 144
  v_mul_u32_u24 v{vT[0]}, s{sT3}, v{vN}
  v_add_u32 v{vT[0]}, s{sT2}, v{vT[0]}
  v_mul_u32_u24 v{vT[1]}, 36, v{vG}
  v_add_u32 v{vT[1]}, v{vT[0]}, v{vT[1]}
  v_lshl_add_u32 v{vT[2]}, v{vG}, 4, v{vT[0]}
  s_waitcnt lgkmcnt(0)
  s_barrier
""")
for i in range(0, 8, 2):
    a(f"ds_write2_b32 v{vT[1]}, v{ACC+20+i}, v{ACC+21+i} offset0:{i} offset1:{i+1}")
a(f"ds_write_b32 v{vT[1]}, v{ACC+28} offset:32")
a("s_waitcnt lgkmcnt(0)")
for j in range(3):
    a(f"ds_read_b128 {v(ACC+4*j,4)}, v{vT[2]} offset:{64*j}")
for j in range(3):
    a(f"s_waitcnt lgkmcnt({2-j})\nbuffer_store_dwordx4 {v(ACC+4*j,4)}, v{vOST[j]}, {srd(SWS)}, 0 offen sc1")
stamp('o stored')
a("s_barrier")
issue_wo(grp3)
a(f"s_cmp_eq_u32 s{sROLE}, 1\ns_cbranch_scc1 L_vfin")
OF = X0
a(f"""
  s_lshr_b32 s{sT0}, s{sWV}, 1                 ; b
  s_and_b32 s{sT1}, s{sWV}, 1                  ; tp
  s_lshl_b32 s{sT2}, s{sTB}, 2
  s_lshl_b32 s{sT3}, s{sT1}, 1
  s_add_u32 s{sT2}, s{sT2}, s{sT3}
  s_lshl_b32 s{sT3}, s{sT0}, 7
  s_add_u32 s{sT3}, s{sT3}, s{sT2}
  s_mul_i32 s{sT5}, s{sT3}, 18432
  s_add_u32 s{sT5}, s{sT5}, {WS_O}
  s_add_u32 s{sT4}, s{sT5}, 18432
  v_lshlrev_b32 v{vT[0]}, 4, v{vLANE}
  v_add_u32 v{vT[1]}, 4096, v{vT[0]}
  v_add_u32 v{vT[2]}, 8192, v{vT[0]}
  v_add_u32 v{vT[3]}, 12288, v{vT[0]}
  v_add_u32 v{vT[4]}, 16384, v{vT[0]}
  s_lshl_b32 s{sT2}, s{sT2}, 6
  s_add_u32 s{sT2}, s{sT2}, {WS_GATE}
  v_lshlrev_b32 v{vT[5]}, 2, v{vN}
  s_mov_b32 s{sRETRY}, 0
L_ogather:
""")
for ks in range(18):
    for tt in range(2):
        a(f"buffer_load_dwordx4 {v(OF+8*ks+4*tt,4)}, v{vT[ks//4]}, {srd(SWS)}, s{sT5 if tt==0 else sT4} offen offset:{(ks%4)*1024} sc1")
a(f"buffer_load_dword v{vT[6]}, v{vT[5]}, {srd(SWS)}, s{sT2} offen sc1")
a(f"buffer_load_dword v{vT[7]}, v{vT[5]}, {srd(SWS)}, s{sT2} offen offset:64 sc1")
a("s_waitcnt vmcnt(0)")
a(f"v_max_u32 v{vT[8]}, v{vT[6]}, v{vT[7]}")
for r in range(0, 144, 2):
    a(f"v_max3_u32 v{vT[8]}, v{vT[8]}, v{OF+r}, v{OF+r+1}")
a(f"""
  v_cmp_eq_u32 vcc, -1, v{vT[8]}
  s_add_u32 s{sRETRY}, s{sRETRY}, 1
  s_cmp_gt_u32 s{sRETRY}, 20000
  s_cbranch_scc1 L_ogdone
  s_cbranch_vccnz L_ogather
L_ogdone:""")
stamp('o gathered')
a("s_barrier")
a(f"s_cmp_eq_u32 s{sT0}, 1\ns_cbranch_scc1 L_pc_b1")
def phaseC(b):
    FB = WF + 20
    seq = [(ks, t) for ks in range(18) for t in range(5)]
    def addr_of(ks):
        return wo_addr[b * 18 + ks]
    a(f"v_add_u32 v{vRA[1]}, 65536, v{vRA[0]}\nv_add_u32 v{vRA[2]}, 131072, v{vRA[0]}")
    def rd(i):
        ks, t = seq[i]
        if b * 18 + ks == 35: return False
        ad = addr_of(ks)
        for hh in range(2):
            o = ad + hh * 2304 + 32 * t
            w = o >> 16
            a(f"ds_read_b64_tr_b16 {v(FB+4*(i%5)+2*hh,2)}, v{vRA[w]} offset:{o & 0xffff}")
        return True
    DEPTH = 4
    issued = []
    for i in range(DEPTH): issued.append(rd(i))
    for i, (ks, t) in enumerate(seq):
        if i + DEPTH < len(seq): issued.append(rd(i + DEPTH))
        saved = (b * 18 + ks == 35)
        if not saved:
            after = sum(2 for x in issued[i+1:] if x)
            a(f"s_waitcnt lgkmcnt({min(15, after)})")
        fr = (SAVE + 4 * t) if saved else (FB + 4 * (i % 5))
        for tt in range(2):
            acc = ACC + 20 * tt + 4 * t
            c = v(acc, 4) if ks > 0 else '0'
            a(f"v_mfma_f32_16x16x32_bf16 {v(acc,4)}, {v(fr,4)}, {v(OF+8*ks+4*tt,4)}, {c}")
phaseC(0)
a("s_branch L_pc_done")
a("L_pc_b1:")
phaseC(1)
a("L_pc_done:")
stamp('phaseC gemm done')
a("s_barrier")
for i in range(20):
    a(f"v_cvt_pk_bf16_f32 v{X0+i}, v{ACC+2*i}, v{ACC+2*i+1}")
a(f"""
  s_mul_i32 s{sT2}, s{sT1}, 5120
  v_lshlrev_b32 v{vT[0]}, 4, v{vLANE}
  v_add_u32 v{vT[0]}, s{sT2}, v{vT[0]}
  s_cmp_eq_u32 s{sT0}, 0
  s_cbranch_scc1 L_epi_a
""")
for i in range(5): a(f"ds_write_b128 v{vT[0]}, {v(X0+4*i,4)} offset:{EPI + i*1024}")
a("s_waitcnt lgkmcnt(0)\ns_barrier")
a("s_branch L_fin")
a("L_epi_a:")
for tt in range(2):
    g_ = vT[6 + tt]
    a(f"""
  v_cvt_pk_bf16_f32 v{g_}, v{g_}, v{g_}
  v_lshlrev_b32 v{g_}, 16, v{g_}
  v_mul_f32 v{g_}, s{sL+2}, v{g_}
  v_exp_f32 v{g_}, v{g_}
  v_add_f32 v{g_}, 1.0, v{g_}
  v_rcp_f32 v{g_}, v{g_}
  v_cvt_pk_bf16_f32 v{g_}, v{g_}, v{g_}
  v_lshlrev_b32 v{g_}, 16, v{g_}
  v_sub_f32 v{vT[8+tt]}, 1.0, v{g_}
  v_cvt_pk_bf16_f32 v{vT[8+tt]}, v{vT[8+tt]}, v{vT[8+tt]}
  v_lshlrev_b32 v{vT[8+tt]}, 16, v{vT[8+tt]}
""")
a("s_barrier")
for i in range(5): a(f"ds_read_b128 {v(X0+20+4*i,4)}, v{vT[0]} offset:{EPI + i*1024}")
a(f"""
  s_lshl_b32 s{sT2}, s{sTB}, 6
  s_lshl_b32 s{sT3}, s{sT1}, 5
  s_add_u32 s{sT2}, s{sT2}, s{sT3}
  v_add_u32 v{vT[1]}, s{sT2}, v{vN}
  s_movk_i32 s{sT3}, 1152
  v_mul_lo_u32 v{vT[1]}, v{vT[1]}, s{sT3}
  v_lshl_add_u32 v{vT[1]}, v{vG}, 3, v{vT[1]}
  s_mul_i32 s{sT3}, s{sCB}, 144
  v_add_u32 v{vT[1]}, s{sT3}, v{vT[1]}
  v_add_u32 v{vT[2]}, {16*1152}, v{vT[1]}
  v_cmp_lt_u32 vcc, 1, v{vG}
  v_mov_b32 v{vT[3]}, {BIG}
  v_cndmask_b32 v{vT[4]}, v{vT[1]}, v{vT[3]}, vcc
  v_cndmask_b32 v{vT[5]}, v{vT[2]}, v{vT[3]}, vcc
  s_waitcnt lgkmcnt(0)
""")
for tt in range(2):
    for t in range(5):
        for h in range(2):
            i = 10 * tt + 2 * t + h
            ra, rb = X0 + i, X0 + 20 + i
            t0_, t1_, t2_, t3_ = ACC, ACC + 1, ACC + 2, ACC + 3
            a(f"""
  v_lshlrev_b32 v{t0_}, 16, v{ra}
  v_and_b32 v{t1_}, 0xffff0000, v{ra}
  v_lshlrev_b32 v{t2_}, 16, v{rb}
  v_and_b32 v{t3_}, 0xffff0000, v{rb}
  v_mul_f32 v{t0_}, v{t0_}, v{vT[6+tt]}
  v_mul_f32 v{t1_}, v{t1_}, v{vT[6+tt]}
  v_mul_f32 v{t2_}, v{t2_}, v{vT[8+tt]}
  v_mul_f32 v{t3_}, v{t3_}, v{vT[8+tt]}
  v_cvt_pk_bf16_f32 v{t0_}, v{t0_}, v{t1_}
  v_cvt_pk_bf16_f32 v{t2_}, v{t2_}, v{t3_}
  v_lshlrev_b32 v{t1_}, 16, v{t0_}
  v_and_b32 v{t0_}, 0xffff0000, v{t0_}
  v_lshlrev_b32 v{t3_}, 16, v{t2_}
  v_and_b32 v{t2_}, 0xffff0000, v{t2_}
  v_add_f32 v{t1_}, v{t1_}, v{t3_}
  v_add_f32 v{t0_}, v{t0_}, v{t2_}
  v_cvt_pk_bf16_f32 v{ra}, v{t1_}, v{t0_}
""")
        ad = vT[1 + tt] if t < 4 else vT[4 + tt]
        a(f"buffer_store_dwordx2 {v(X0+10*tt+2*t,2)}, v{ad}, {srd(SOUT)}, 0 offen offset:{32*t}")
stamp('out stored')
a("s_branch L_fin")
a("L_vfin:")
a("s_waitcnt vmcnt(0)\ns_barrier\ns_barrier\ns_barrier")
a("L_fin:")
if STAMPS:
    a(f"""
  s_cmp_lg_u32 s{sWV}, 0
  s_cbranch_scc1 L_end
  s_waitcnt vmcnt(0)
  s_memrealtime s[94:95]
  s_waitcnt lgkmcnt(0)
  v_writelane_b32 v{vSTAMP}, s94, {nstamp[0]}
  v_lshlrev_b32 v{vT[0]}, 2, v{vLANE}
  s_lshl_b32 s{sT2}, s2, 8
  s_add_u32 s{sT2}, s{sT2}, {WS_DBG}
  buffer_store_dword v{vSTAMP}, v{vT[0]}, {srd(SWS)}, s{sT2} offen
""")
a("L_end:\n  s_endpgm")

hdr = open('cdna_kernels/' + NAME + '.s.ref').read().split('; Override launch')[0]
out = kernel_file(a.text(), "grid=(256,1,1) block=(512,1,1) lds=163840", 256, hdr_comment=hdr)
outp = [x for x in sys.argv[1:] if not x.startswith('--')]
open(outp[0] if outp else 'k.s', 'w').write(out)
```

```python
import sys
from asmlib import *

STAMPS = '--stamps' in sys.argv
OPT = dict(x[2:].split('=') for x in sys.argv if x.startswith('o:'))
def opt(k, d): return type(d)(OPT.get(k, d))
NB0 = opt('nb0', 3)

XSL = 16384; NXS = 3
WSL = 16384; NWS = 6; W0L = NXS * XSL
assert W0L + NWS * WSL <= 156672
KST = 4608
TAB = 34 * KST
T2 = TAB
GW = TAB + 3840
ZR = GW + 1152
CNT = ZR + 1408
PF = 0
WQ = 9 * KST
PST = 27 * KST
VF = PST + 11264
assert VF + 20480 <= TAB
OST = 5 * KST
KVT = 28 * KST
PQ = KVT + 6400
assert PQ + 20480 <= TAB
EPI = 0
HX = 0
wo_addr = {}
grp1 = [0, 18, 1, 19, 2]
for kk, b_ in zip(grp1, [0, 1, 2, 3, 4]): wo_addr[kk] = b_ * KST
rest = [kk for kk in range(36) if kk not in grp1 and kk != 35]
order = sorted(rest, key=lambda kk: (kk % 18, kk // 18))
grp2 = order[:18]
for i, kk in enumerate(grp2): wo_addr[kk] = WQ + i * KST
grp3 = order[18:]
for kk, b_ in zip(grp3, [5, 6, 7, 8, 27, 28, 29, 30, 31, 32, 33, 34]): wo_addr[kk] = b_ * KST
assert len(grp3) == 12
WOSAVE = OST
C1, CPF, CKV, CWQ0, CQD, CG, CO = 0, 4, 8, 12, 24, 40, 32

WS_O = 4 << 20; WS_GATE = 10 << 20; WS_DBG = 16 << 20
WS_F1 = 11 << 20; WS_F2 = 12 << 20
sNON = 80
vNON = 12
BIG = 0x7FFF0000

SX, SW, SWS, SWOA, SWOB, SOUT, SDBG, SPHI, SGATE = 4, 8, 12, 16, 20, 24, 28, 32, 36
def srd(s): return f"s[{s}:{s+3}]"
sT, sG, sB, sHQ, sWV, sTG, sROLE, sK, sT0, sT1, sT2, sT3 = 40, 41, 42, 43, 44, 45, 46, 47, 48, 49, 50, 51
sMX, sMWA, sMQ2, sMQ = 52, 53, 54, 55
sROT, sTB, sCB, sRETRY = 56, 57, 58, 59
sL = 60
sPA = 64
sMASK = 88; sPEND = 90; sT4, sT5 = 91, 92; sTILE = 93
sPB = 96; sH144 = 97; sPW = 98; sTH = 99; sM2 = 100

vLANE, vN, vG = 1, 2, 3
vT = list(range(4, 16))
vXOFF, vWA, vWB, vWQ, vWO = 16, 17, 18, 19, 20
vRA = [21, 22, 23, 24, 25]
vRX = [26, 27]
vOST = [28, 29, 30]
vSTAMP = 31
vXOFF2 = 15
XB, ACC, RING = 32, 64, 192
KC = 224
cPS = [KC + i for i in range(3)]
cAF, cB01, cB2 = KC + 3, KC + 4, KC + 5
cGQ = [KC + 8, KC + 9, KC + 10]; cLQ = [KC + 11, KC + 12, KC + 13]
cSA, cSB = KC + 14, KC + 15
cSEL = [KC + 16, KC + 20]
cA2, cKV, cL16, cPFW, cW2 = KC + 24, KC + 25, KC + 26, KC + 27, KC + 28

a = Asm()
def stamp(idx):
    if not STAMPS: return
    a(f"s_memrealtime s[94:95]\ns_waitcnt lgkmcnt(0)\nv_writelane_b32 v{vSTAMP}, s94, {idx}")
def v(i, n=1): return f"v{i}" if n == 1 else f"v[{i}:{i+n-1}]"
class VM:
    def __init__(self, ops=()): self.ops = list(ops)
    def add(self, tag, n=1): self.ops += [tag] * n
    def wait_for(self, tag):
        idx = max(i for i, t in enumerate(self.ops) if t == tag)
        return min(63, len(self.ops) - 1 - idx)
vm = VM()
def interleave(main, fill, per=1):
    fill = list(fill)
    for m in main:
        a(m)
        for _ in range(per):
            if fill: a(fill.pop(0))
    for f in fill: a(f)
nl = [0]
def arrive(c, t0=vT[0], t1=vT[1]):
    a(f"""
  v_mov_b32 v{t0}, {CNT + c}
  v_mov_b32 v{t1}, 1
  s_mov_b64 exec, 1
  ds_add_u32 v{t0}, v{t1}
  s_mov_b64 exec, -1""")
def cwait(c, n, t0=vT[0], t1=vT[1]):
    nl[0] += 1; L = f"L_cw{nl[0]}"
    a(f"""
  v_mov_b32 v{t0}, {CNT + c}
  s_mov_b32 s{sRETRY}, 0
{L}:
  ds_read_b32 v{t1}, v{t0}
  s_waitcnt lgkmcnt(0)
  v_readfirstlane_b32 s{sT2}, v{t1}
  s_add_u32 s{sRETRY}, s{sRETRY}, 1
  s_cmp_gt_u32 s{sRETRY}, 2000000
  s_cbranch_scc1 {L}d
  s_cmp_ge_u32 s{sT2}, {n}
  s_cbranch_scc1 {L}d
  s_sleep 1
  s_branch {L}
{L}d:""")

a(f"""
  s_cmp_ge_u32 s2, 256
  s_cbranch_scc1 L_end
  s_load_dwordx16 s[64:79], s[0:1], 0
  s_load_dwordx8 s[80:87], s[0:1], 64
  s_getpc_b64 s[94:95]
L_pc:
  v_and_b32 v{vLANE}, 63, v0
  v_lshrrev_b32 v{vT[0]}, 6, v0
  s_lshr_b32 s{sT1}, s2, 3
  s_and_b32 s{sT0}, s2, 7
  v_readfirstlane_b32 s{sPW}, v{vT[0]}
  s_cmp_ge_u32 s{sPW}, 2
  s_cbranch_scc1 L_nopf
  s_lshl_b32 s{sT2}, s{sPW}, 5
  s_add_u32 s{sT2}, s{sT2}, s{sT1}
  s_lshl_b32 s{sT2}, s{sT2}, 10
  v_lshlrev_b32 v{vT[1]}, 4, v{vLANE}
  v_add_u32 v{vT[1]}, s{sT2}, v{vT[1]}
  v_min_u32 v{vT[1]}, L_end-L_pc, v{vT[1]}
  global_load_dword v{63}, v{vT[1]}, s[94:95]
L_nopf:
""")
if STAMPS: a(f"v_mov_b32 v{vSTAMP}, 0")
stamp(0)
a(f"""
  s_and_b32 s{sT}, s{sT0}, 1
  s_lshl_b32 s{sT}, s{sT}, 3
  s_and_b32 s{sT2}, s{sT1}, 7
  s_add_u32 s{sT}, s{sT}, s{sT2}
  s_lshr_b32 s{sG}, s{sT0}, 1
  s_lshl_b32 s{sG}, s{sG}, 2
  s_lshr_b32 s{sT3}, s{sT1}, 3
  s_add_u32 s{sG}, s{sG}, s{sT3}
  s_lshr_b32 s{sB}, s{sG}, 3
  s_and_b32 s{sHQ}, s{sG}, 7
  s_mul_i32 s{sT2}, s{sT2}, 9
  s_lshr_b32 s{sT2}, s{sT2}, 3
  s_mul_i32 s{sT3}, s{sT3}, 9
  s_lshr_b32 s{sT3}, s{sT3}, 2
  s_add_u32 s{sROT}, s{sT2}, s{sT3}
  s_sub_u32 s{sT2}, s{sROT}, 9
  s_cmp_ge_u32 s{sROT}, 9
  s_cselect_b32 s{sROT}, s{sT2}, s{sROT}
  s_lshl_b32 s{sROT}, s{sROT}, 1
  s_and_b32 s{sTB}, s{sT1}, 3
  s_lshl_b32 s{sT2}, s{sT0}, 2
  s_add_u32 s{sTB}, s{sTB}, s{sT2}
  s_lshr_b32 s{sCB}, s{sT1}, 2
  s_lshl_b32 s{sT2}, s{sPW}, 2
  s_lshr_b32 s{sWV}, 0x31647520, s{sT2}
  s_and_b32 s{sWV}, s{sWV}, 7
  s_and_b32 s{sTG}, s{sWV}, 3
  s_lshr_b32 s{sROLE}, s{sWV}, 2
  s_and_b32 s{sTH}, s{sPW}, 1
  v_and_b32 v{vN}, 15, v{vLANE}
  v_lshrrev_b32 v{vG}, 4, v{vLANE}
  s_mul_i32 s{sH144}, s{sHQ}, 144
  s_mov_b32 s{SX+2}, {2048*1152}
  s_mov_b32 s{SX+3}, 0x00020000
  s_mov_b32 s{SW+2}, {576*3456}
  s_mov_b32 s{SW+3}, 0x00020000
  s_mov_b32 s{SPHI+2}, {32*648}
  s_mov_b32 s{SPHI+3}, 0x00020000
  s_mov_b32 s{SWS+2}, 0x10000000
  s_mov_b32 s{SWS+3}, 0x00020000
  s_mov_b32 s{SWOA+2}, {576*1152}
  s_mov_b32 s{SWOA+3}, 0x00020000
  s_mov_b32 s{SWOB+2}, {576*1152}
  s_mov_b32 s{SWOB+3}, 0x00020000
  s_mov_b32 s{SOUT+2}, {2048*1152}
  s_mov_b32 s{SOUT+3}, 0x00020000
  s_mov_b32 s{SDBG+2}, 256
  s_mov_b32 s{SDBG+3}, 0x00020000
  s_mov_b32 s{SGATE+2}, 1152
  s_mov_b32 s{SGATE+3}, 0x00020000
""")
def srd_bases():
    a(f"""
  s_cmp_eq_u32 s{sB}, 1
  s_waitcnt lgkmcnt(0)
  s_mov_b32 s{SX}, s64
  s_mov_b32 s{SX+1}, s65
  s_cselect_b32 s{SW}, s74, s66
  s_cselect_b32 s{SW+1}, s75, s67
  s_cselect_b32 s{SPHI}, s76, s68
  s_cselect_b32 s{SPHI+1}, s77, s69
  s_mov_b32 s{SGATE}, s80
  s_mov_b32 s{SGATE+1}, s81
""")
def srd_rest():
    a(f"""
  s_mov_b32 s{SWS}, s86
  s_mov_b32 s{SWS+1}, s87
  s_mov_b32 s{SWOA}, s70
  s_mov_b32 s{SWOA+1}, s71
  s_mov_b32 s{SWOB}, s78
  s_mov_b32 s{SWOB+1}, s79
  s_mov_b32 s{SOUT}, s82
  s_mov_b32 s{SOUT+1}, s83
  s_mov_b32 s{SDBG}, s84
  s_mov_b32 s{SDBG+1}, s85
""")
def dma_off(ci, nper):
    magic = {30: (0x8889, 20), 9: (0xE38F, 19)}[nper]
    t = vT
    a(f"""
  s_mov_b32 s{sT3}, {magic[0]}
  v_mul_u32_u24 v{t[3]}, s{sT3}, v{ci}
  v_lshrrev_b32 v{t[3]}, {magic[1]}, v{t[3]}
  v_mul_u32_u24 v{t[4]}, {nper}, v{t[3]}
  v_sub_u32 v{t[4]}, v{ci}, v{t[4]}
""")
    if nper == 30:
        a(f"v_and_b32 v{t[5]}, 1, v{t[3]}\nv_xor_b32 v{t[4]}, v{t[4]}, v{t[5]}")
    a(f"""
  v_bfe_u32 v{t[5]}, v{t[3]}, 2, 2
  v_lshlrev_b32 v{t[5]}, 3, v{t[5]}
  v_lshrrev_b32 v{t[6]}, 4, v{t[3]}
  v_lshl_add_u32 v{t[5]}, v{t[6]}, 2, v{t[5]}
  v_and_b32 v{t[6]}, 3, v{t[3]}
  v_add_u32 v{t[5]}, v{t[5]}, v{t[6]}
""")
    return t[5], t[4]
def w_offs():
    a(f"""
  v_lshrrev_b32 v{vT[3]}, 5, v{vLANE}
  s_lshl_b32 s{sT2}, s{sT4}, 1
  v_add_u32 v{vT[3]}, s{sT2}, v{vT[3]}
  v_and_b32 v{vT[4]}, 1, v{vT[3]}
  v_lshl_add_u32 v{vT[4]}, v{vT[3]}, 1, v{vT[4]}  ; swz16
  v_and_b32 v{vT[5]}, 31, v{vLANE}
  v_xor_b32 v{vT[4]}, v{vT[4]}, v{vT[5]}        ; unit
  v_mul_u32_u24 v{vT[8]}, 26, v{vT[4]}
  v_lshrrev_b32 v{vT[8]}, 8, v{vT[8]}           ; seg
  v_mul_u32_u24 v{vT[9]}, 10, v{vT[8]}
  v_sub_u32 v{vT[9]}, v{vT[4]}, v{vT[9]}        ; j16
  s_movk_i32 s{sT3}, 1152
  v_mul_u32_u24 v{vT[5]}, s{sT3}, v{vT[8]}
  v_lshl_add_u32 v{vT[5]}, v{vT[9]}, 4, v{vT[5]}
  v_add_u32 v{vT[5]}, s{sH144}, v{vT[5]}
  v_lshrrev_b32 v{vT[6]}, 2, v{vT[3]}
  v_lshlrev_b32 v{vT[6]}, 3, v{vT[6]}
  v_and_b32 v{vT[7]}, 3, v{vT[3]}
  v_add_u32 v{vT[6]}, v{vT[6]}, v{vT[7]}        ; k for j=0
  s_movk_i32 s{sT3}, 3456
  v_mad_u32_u24 v{vT[5]}, v{vT[6]}, s{sT3}, v{vT[5]}
  v_cmp_eq_u32 vcc, 9, v{vT[9]}
  v_cmp_lt_u32 s[94:95], 29, v{vT[4]}
  s_or_b64 vcc, vcc, s[94:95]
  v_mov_b32 v{vT[8]}, {BIG}
  v_cndmask_b32 v{vWL[0]}, v{vT[5]}, v{vT[8]}, vcc
""")
sK2 = 3
vWL = [21, 22, 23, 24]
def x_items(pr):
    sl = (pr % NXS) * XSL
    return f"""
  s_lshl_b32 s{sT2}, s{sK}, 6
  s_add_u32 s{sT3}, s{sT2}, {16*1152}
  s_add_u32 m0, s{sMX}, {sl}
  buffer_load_dwordx4 v{vXOFF}, {srd(SX)}, s{sT2} offen lds
  s_add_u32 m0, s{sMX}, {sl + 1024}
  buffer_load_dwordx4 v{vXOFF2}, {srd(SX)}, s{sT2} offen lds
  s_add_u32 m0, s{sMX}, {sl + 2048}
  buffer_load_dwordx4 v{vXOFF}, {srd(SX)}, s{sT3} offen lds
  s_add_u32 m0, s{sMX}, {sl + 3072}
  buffer_load_dwordx4 v{vXOFF2}, {srd(SX)}, s{sT3} offen lds
  s_add_u32 s{sK}, s{sK}, 2
  s_cmp_eq_u32 s{sK}, 18
  s_cselect_b32 s{sK}, 0, s{sK}"""
def w_items(ks):
    sl = ((ks + 1) % NWS) * WSL
    o = f"\n  s_mul_i32 s{sT3}, s{sK2}, {32*3456}"
    for j, dk in enumerate((0, 16, 4, 20)):
        if j: o += f"\n  s_add_u32 s{sT2}, s{sT3}, {dk*3456}"
        o += f"""
  s_add_u32 m0, s{sMWA}, {sl + 4096*j}
  buffer_load_dwordx4 v{vWL[0]}, {srd(SW)}, s{sT2 if j else sT3} offen lds"""
    return o + f"""
  s_add_u32 s{sK2}, s{sK2}, 1
  s_cmp_eq_u32 s{sK2}, 18
  s_cselect_b32 s{sK2}, 0, s{sK2}"""
def issue_x(pr): a(x_items(pr)); vm.add(('x', pr), 4)
def issue_w(ks): a(w_items(ks)); vm.add(('w', ks), 4)
SM = 32
a(f"s_cmp_lt_u32 s{sPW}, 4\ns_cbranch_scc1 L_pc0")
a(f"""
  s_and_b32 s{sT4}, s{sPW}, 3
  v_lshrrev_b32 v{vT[0]}, 3, v{vLANE}
  v_and_b32 v{vT[2]}, 7, v{vLANE}
  v_xor_b32 v{vT[2]}, v{vT[2]}, v{vG}
  s_lshl_b32 s{sT2}, s{sT}, 7
  s_lshl_b32 s{sT3}, s{sT4}, 5
  s_add_u32 s{sT2}, s{sT2}, s{sT3}
  v_add_u32 v{vT[0]}, s{sT2}, v{vT[0]}
  s_movk_i32 s{sT3}, 1152
  v_mul_lo_u32 v{vT[0]}, v{vT[0]}, s{sT3}
  v_lshl_add_u32 v{vXOFF}, v{vT[2]}, 4, v{vT[0]}
  v_xor_b32 v{vT[2]}, 4, v{vT[2]}
  v_lshl_add_u32 v{vXOFF2}, v{vT[2]}, 4, v{vT[0]}
  v_add_u32 v{vXOFF2}, {8*1152}, v{vXOFF2}
  s_lshl_b32 s{sMX}, s{sT4}, 12
  s_lshl_b32 s{sMWA}, s{sT4}, 10
  s_add_u32 s{sMWA}, s{sMWA}, {W0L}
  s_mov_b32 s{sK}, s{sROT}
  s_mov_b32 s{sK2}, s{sROT}
""")
w_offs()
srd_bases()
stamp(1)
issue_x(0); issue_w(0); issue_w(1)
NI0 = opt('ni0', 0)
if NI0: issue_x(1); issue_w(2); issue_w(3)
stamp(2)
a("s_branch L_pc1")
a("L_pc0:")
srd_bases()
stamp(1)
if opt('l2pf', 0):
    a(f"""
  v_lshrrev_b32 v{vT[0]}, 1, v{vLANE}
  s_movk_i32 s{sT3}, 3456
  v_mul_u32_u24 v{vT[0]}, s{sT3}, v{vT[0]}
  v_and_b32 v{vT[1]}, 1, v{vLANE}
  v_mul_u32_u24 v{vT[1]}, 140, v{vT[1]}
  v_add3_u32 v{vT[0]}, v{vT[0]}, v{vT[1]}, s{sH144}
  s_lshl_b32 s{sT2}, s{sT}, 7
  s_lshl_b32 s{sT3}, s{sTH}, 6
  s_add_u32 s{sT2}, s{sT2}, s{sT3}
  v_add_u32 v{vT[1]}, s{sT2}, v{vLANE}
  s_movk_i32 s{sT3}, 1152
  v_mul_lo_u32 v{vT[1]}, v{vT[1]}, s{sT3}
  s_lshr_b32 s{sT2}, s{sPW}, 1
  s_lshl_b32 s{sT2}, s{sT2}, 1
  s_add_u32 s{sT2}, s{sT2}, s{sROT}
  s_add_u32 s{sT2}, s{sT2}, 2
  s_sub_u32 s{sT3}, s{sT2}, 18
  s_cmp_ge_u32 s{sT2}, 18
  s_cselect_b32 s{sT2}, s{sT3}, s{sT2}
  s_lshl_b32 s{sT2}, s{sT2}, 6
  buffer_load_dword v{50}, v{vT[1]}, {srd(SX)}, s{sT2} offen
""")
    for rep in range(opt('l2pf', 0)):
        a(f"""
  s_add_u32 s{sT2}, s{sROT}, s{sPW}
  s_add_u32 s{sT2}, s{sT2}, {2 + 4*rep}
  s_sub_u32 s{sT3}, s{sT2}, 18
  s_cmp_ge_u32 s{sT2}, 18
  s_cselect_b32 s{sT2}, s{sT3}, s{sT2}
  s_mul_i32 s{sT2}, s{sT2}, {32*3456}
  buffer_load_dword v{51+3*rep}, v{vT[0]}, {srd(SW)}, s{sT2} offen
  buffer_load_dword v{52+3*rep}, v{vT[0]}, {srd(SW)}, s{sT2} offen offset:1152
  buffer_load_dword v{53+3*rep}, v{vT[0]}, {srd(SW)}, s{sT2} offen offset:2304
""")
a(f"s_mul_i32 s{sT2}, s{sHQ}, {4*648}\nv_lshlrev_b32 v{vT[0]}, 1, v0")
for j in range(6): a(f"buffer_load_ushort v{SM+j}, v{vT[0]}, {srd(SPHI)}, s{sT2} offen offset:{512*j}")
a(f"v_lshlrev_b32 v{vT[0]}, 3, v0\nbuffer_load_dwordx2 v[{SM+6}:{SM+7}], v{vT[0]}, {srd(SGATE)}, 0 offen")
for j in range(6):
    a(f"""
  v_add_u32 v{vT[5]}, {256*j}, v0
  s_mov_b32 s{sT3}, 0xCA46
  v_mul_u32_u24 v{vT[6]}, s{sT3}, v{vT[5]}
  v_lshrrev_b32 v{vT[6]}, 24, v{vT[6]}
  s_movk_i32 s{sT3}, 324
  v_mul_u32_u24 v{vT[7]}, s{sT3}, v{vT[6]}
  v_sub_u32 v{vT[7]}, v{vT[5]}, v{vT[7]}
  s_mov_b32 s{sT3}, 0xE38F
  v_mul_u32_u24 v{vT[8]}, s{sT3}, v{vT[7]}
  v_lshrrev_b32 v{vT[8]}, 20, v{vT[8]}
  v_mul_u32_u24 v{vT[9]}, 18, v{vT[8]}
  v_sub_u32 v{vT[9]}, v{vT[7]}, v{vT[9]}
  v_mul_u32_u24 v{vT[10]}, 20, v{vT[6]}
  v_add_u32 v{vT[10]}, v{vT[10]}, v{vT[9]}
  v_mul_u32_u24 v{vT[10]}, 48, v{vT[10]}
  v_and_b32 v{vT[6]}, 1, v{vT[6]}
  v_lshl_add_u32 v{vT[8]}, v{vT[6]}, 1, v{vT[8]}
  v_lshl_add_u32 v{vT[10]}, v{vT[8]}, 1, v{vT[10]}
  v_add_u32 v{SM+8+j}, {T2}, v{vT[10]}
""")
a(f"""
  v_mov_b32 v{vT[0]}, 0
  v_mov_b32 v{vT[1]}, 0
  v_mov_b32 v{vT[2]}, 0
  v_mov_b32 v{vT[3]}, 0
  v_lshlrev_b32 v{vT[4]}, 4, v0
  v_add_u32 v{vT[4]}, {T2}, v{vT[4]}
  v_cmp_gt_u32 vcc, 240, v0
  s_and_saveexec_b64 s[94:95], vcc
  ds_write_b128 v{vT[4]}, v[{vT[0]}:{vT[3]}]
  v_cmp_gt_u32 vcc, 92, v0
  s_and_b64 exec, exec, vcc
  ds_write_b128 v{vT[4]}, v[{vT[0]}:{vT[3]}] offset:{ZR - T2}
  s_mov_b64 exec, -1
  v_mov_b32 v{SM+14}, v0
""")
stamp(2)
a("L_pc1:")
srd_rest()
a(f"""
  s_waitcnt lgkmcnt(0)
  s_barrier
  s_lshl_b32 s{sT2}, s{sWV}, 6
  v_add_u32 v0, s{sT2}, v{vLANE}
  s_or_b32 s{sT2}, s2, s{sPW}
  s_cmp_lg_u32 s{sT2}, 0
  s_cbranch_scc1 L_nononce
  s_memrealtime s[94:95]
  s_waitcnt lgkmcnt(0)
  s_or_b32 s94, s94, 1
  s_xor_b32 s95, s95, 0x5bd1e995
  v_mov_b32 v{vT[6]}, s94
  v_mov_b32 v{vT[7]}, s95
  v_mov_b32 v{vT[5]}, 0
  s_mov_b64 exec, 1
  buffer_store_dwordx2 v[{vT[6]}:{vT[7]}], v{vT[5]}, {srd(SDBG)}, 0 offen sc1
  s_mov_b64 exec, -1
L_nononce:
  s_lshl_b32 s{sTILE}, s{sT}, 3
  s_lshl_b32 s{sT2}, s{sTG}, 1
  s_add_u32 s{sTILE}, s{sTILE}, s{sT2}
  s_add_u32 s{sTILE}, s{sTILE}, s{sROLE}
  s_lshl_b32 s{sT2}, s{sB}, 7
  s_add_u32 s{sT2}, s{sT2}, s{sTILE}
  s_mul_i32 s{sT2}, s{sT2}, 18432
  s_add_u32 s{sT2}, s{sT2}, {WS_O}
  s_mul_i32 s{sT3}, s{sHQ}, 9
""")
for j in range(3):
    a(f"""
  v_add_u32 v{vT[0]}, {4*j}, v{vG}
  v_add_u32 v{vT[1]}, s{sT3}, v{vT[0]}
  v_lshlrev_b32 v{vT[1]}, 8, v{vT[1]}
  v_lshl_add_u32 v{vT[1]}, v{vN}, 4, v{vT[1]}
  v_add_u32 v{vOST[j]}, s{sT2}, v{vT[1]}
""")
a(f"""
  v_cmp_lt_u32 vcc, 0, v{vG}
  v_mov_b32 v{vT[0]}, {BIG}
  v_cndmask_b32 v{vOST[2]}, v{vOST[2]}, v{vT[0]}, vcc
  s_lshl_b32 s{sPB}, s{sG}, 4
  s_add_u32 s{sPB}, s{sPB}, s{sT}
  s_lshl_b32 s{sPB}, s{sPB}, 14
""")
a(f"s_mul_i32 s{sT2}, s{sTG}, 36\nv_add_u32 v{vT[7]}, s{sT2}, v{vLANE}\nv_min_u32 v{vT[7]}, 143, v{vT[7]}")
k, u = dma_off(vT[7], 9)
a(f"""
  s_movk_i32 s{sT3}, 1152
  v_mul_u32_u24 v{vT[8]}, s{sT3}, v{k}
  v_lshl_add_u32 v{vT[8]}, v{u}, 4, v{vT[8]}
  s_mul_i32 s{sT3}, s{sCB}, 144
  v_add_u32 v{vWO}, s{sT3}, v{vT[8]}
  s_mul_i32 s{sMQ}, s{sTG}, 576
  s_add_u32 s{sMQ2}, s{sMQ}, 2304
  s_mov_b32 s{sL}, 0x3fb8aa3b
  s_mov_b32 s{sL+1}, 0x3fb8aa3b
  s_mov_b32 s{sL+2}, 0xbfb8aa3b
  s_mov_b32 s{sL+3}, 0xbfb8aa3b
  s_mov_b32 s{sMASK}, 0x00f0000f
  s_mov_b32 s{sMASK+1}, 0xf0000f00
""")
def table_writes():
    for j in range(5): a(f"ds_write_b16 v{SM+8+j}, v{SM+j}")
    a(f"""
  v_cmp_gt_u32 vcc, {1296-1280}, v{SM+14}
  s_and_saveexec_b64 s[94:95], vcc
  ds_write_b16 v{SM+13}, v{SM+5}
  s_mov_b64 exec, -1
  v_lshlrev_b32 v{vT[5]}, 3, v{SM+14}
  v_add_u32 v{vT[5]}, {GW}, v{vT[5]}
  v_cmp_gt_u32 vcc, 144, v{SM+14}
  s_and_saveexec_b64 s[94:95], vcc
  ds_write_b64 v{vT[5]}, v[{SM+6}:{SM+7}]
  s_mov_b64 exec, -1
""")
EX36 = "s_mov_b32 exec_lo, -1\n  s_mov_b32 exec_hi, 0xf"
def wo_item2(kk, v2):
    if opt('nowo', 0): return "s_nop 0"
    addr = wo_addr[kk] if kk != 35 else WOSAVE
    s_ = SWOA if kk < 18 else SWOB
    return f"""
  s_mov_b32 s{sT3}, {(kk % 18) * 32 * 1152}
  s_add_u32 m0, s{sMQ}, {addr}
  {EX36}
  buffer_load_dwordx4 v{vWO}, {srd(s_)}, s{sT3} offen lds
  s_add_u32 m0, s{sMQ2}, {addr}
  buffer_load_dwordx4 v{v2}, {srd(s_)}, s{sT3} offen lds
  s_mov_b64 exec, -1"""
KOFF8 = [0, 4, 9, 13]
TILEV = [[0,1,2,3],[4,5,6,7],[8,9,10,11],[12,13,14,15],[10,11,16,17]]

NONLD = f"""
  v_mov_b32 v{vT[5]}, 0
  buffer_load_dwordx2 v[{vNON}:{vNON+1}], v{vT[5]}, {srd(SDBG)}, 0 offen sc1"""
def get_nonce():
    nl[0] += 1; L = f"L_non{nl[0]}"
    a(f"""
  v_readfirstlane_b32 s{sNON}, v{vNON}
  v_readfirstlane_b32 s{sNON+1}, v{vNON+1}
  s_mov_b32 s{sRETRY}, 0
  s_cmp_lg_u32 s{sNON}, 0
  s_cbranch_scc1 {L}d
{L}:
  v_mov_b32 v{vT[5]}, 0
  buffer_load_dwordx2 v[{vNON}:{vNON+1}], v{vT[5]}, {srd(SDBG)}, 0 offen sc1
  s_waitcnt vmcnt(0)
  v_readfirstlane_b32 s{sNON}, v{vNON}
  v_readfirstlane_b32 s{sNON+1}, v{vNON+1}
  s_add_u32 s{sRETRY}, s{sRETRY}, 1
  s_cmp_gt_u32 s{sRETRY}, 100000
  s_cbranch_scc1 {L}d
  s_cmp_eq_u32 s{sNON}, 0
  s_cbranch_scc1 {L}
{L}d:""")
def set_flag(soff):
    a(f"""
  v_mov_b32 v{vT[6]}, s{sNON}
  v_mov_b32 v{vT[7]}, s{sNON+1}
  v_mov_b32 v{vT[5]}, 0
  s_waitcnt vmcnt(0)
  s_mov_b64 exec, 1
  buffer_store_dwordx2 v[{vT[6]}:{vT[7]}], v{vT[5]}, {srd(SWS)}, s{soff} offen sc1
  s_mov_b64 exec, -1""")
def diag_addr(dst, rows, pitch, base):
    a(f"""
  v_mul_u32_u24 v{dst}, {rows}, v{vG}
  v_and_b32 v{vT[1]}, 3, v{vN}
  v_add_u32 v{dst}, v{dst}, v{vT[1]}
  v_mul_u32_u24 v{dst}, {pitch}, v{dst}
  v_add_u32 v{dst}, {base}, v{dst}
  v_mov_b32 v{vT[1]}, {ZR}
  v_cndmask_b32 v{dst}, v{vT[1]}, v{dst}, s[{sMASK}:{sMASK+1}]
""")
SEQ2 = [(t, c) for t in range(5) for c in range(3)]
def stage2_mfmas(P, af, kb):
    return [f"v_mfma_f32_16x16x32_bf16 {v(P+4*t,4)}, {v(af[j],4)}, {v(kb+4*c,4)}, {v(P+4*t,4) if c > 0 else '0'}" for j, (t, c) in enumerate(SEQ2)]
A2L = [64 + 4 * j for j in range(15)]
KB0, KB1 = 32, 44
P0, EPk, P1 = 124, 144, 164
PH0, PH1 = 184, 204
D0, D1 = 64, 124
def softmax_list(P, EP, ph):
    o = []
    mx, mn, mx2, mn2 = vT[0], vT[2], vT[4], vT[5]
    o += [f"v_max3_f32 v{mx}, v{P}, v{P+1}, v{P+2}", f"v_min3_f32 v{mn}, v{P}, v{P+1}, v{P+2}",
          f"v_max3_f32 v{mx2}, v{P+3}, v{P+4}, v{P+5}", f"v_min3_f32 v{mn2}, v{P+3}, v{P+4}, v{P+5}"]
    for i in range(6, 18, 4):
        o += [f"v_max3_f32 v{mx}, v{mx}, v{P+i}, v{P+i+1}", f"v_min3_f32 v{mn}, v{mn}, v{P+i}, v{P+i+1}",
              f"v_max3_f32 v{mx2}, v{mx2}, v{P+i+2}, v{P+i+3}", f"v_min3_f32 v{mn2}, v{mn2}, v{P+i+2}, v{P+i+3}"]
    o += [f"v_max_f32 v{mx}, v{mx}, v{mx2}", f"v_min_f32 v{mn}, v{mn}, v{mn2}",
          f"v_mul_f32 v{mx}, s{sL+2}, v{mx}", f"v_mul_f32 v{mn}, s{sL}, v{mn}"]
    for i in range(9):
        o += [f"v_pk_fma_f32 {v(EP+2*i,2)}, {v(P+2*i,2)}, s[{sL}:{sL+1}], {v(mx,2)} op_sel_hi:[1,1,0]",
              f"v_pk_fma_f32 {v(P+2*i,2)}, {v(P+2*i,2)}, s[{sL+2}:{sL+3}], {v(mn,2)} op_sel_hi:[1,1,0]"]
    for i in range(18): o += [f"v_exp_f32 v{EP+i}, v{EP+i}", f"v_exp_f32 v{P+i}, v{P+i}"]
    sp, sm = vT[4], vT[6]
    o += [f"v_pk_add_f32 {v(sp,2)}, {v(EP,2)}, {v(EP+2,2)}", f"v_pk_add_f32 {v(sm,2)}, {v(P,2)}, {v(P+2,2)}"]
    for i in range(2, 9):
        o += [f"v_pk_add_f32 {v(sp,2)}, {v(sp,2)}, {v(EP+2*i,2)}", f"v_pk_add_f32 {v(sm,2)}, {v(sm,2)}, {v(P+2*i,2)}"]
    o += [f"v_add_f32 v{sp}, v{sp}, v{sp+1}", f"v_add_f32 v{sm}, v{sm}, v{sm+1}", f"v_rcp_f32 v{sp}, v{sp}", f"v_rcp_f32 v{sm}, v{sm}"]
    for i in range(9):
        o += [f"v_pk_mul_f32 {v(EP+2*i,2)}, {v(EP+2*i,2)}, {v(sp,2)} op_sel_hi:[1,0]",
              f"v_pk_mul_f32 {v(P+2*i,2)}, {v(P+2*i,2)}, {v(sm,2)} op_sel_hi:[1,0]"]
    for i in range(9): o.append(f"v_cvt_pk_bf16_f32 v{ph+i}, v{EP+2*i}, v{EP+2*i+1}")
    for i in range(9): o.append(f"v_cvt_pk_bf16_f32 v{ph+9+i}, v{P+2*i}, v{P+2*i+1}")
    o += [f"v_mov_b32 v{ph+18}, 0", f"v_mov_b32 v{ph+19}, 0"]
    return o
def merge(valu, mf, every=4):
    mf = list(mf)
    for i, x in enumerate(valu):
        if mf and i % every == 0: a(mf.pop(0))
        a(x)
    for m in mf: a(m)

def num_and_store(phq, nb, out, kvaddr, save, tr_base):
    seq = [(t, c) for t in range(5) for c in range(5)]
    for b0 in (0, 13):
        batch = seq[b0:b0+13]
        for j, (t, c) in enumerate(batch):
            a(f"ds_read_b128 {v(nb+4*(b0+j),4)}, v{kvaddr} offset:{t*320 + c*16}")
        if b0 == 0:
            a(f"""
  s_mul_i32 s{sT2}, s{sWV}, 2304
  s_add_u32 s{sT2}, s{sT2}, {OST}
  s_movk_i32 s{sT3}, 144
  v_mul_u32_u24 v{vT[3]}, s{sT3}, v{vN}
  v_add_u32 v{vT[3]}, s{sT2}, v{vT[3]}
  v_mul_u32_u24 v{vT[4]}, 36, v{vG}
  v_add_u32 v{vT[4]}, v{vT[3]}, v{vT[4]}
  v_lshl_add_u32 v{vT[2]}, v{vG}, 4, v{vT[3]}
""")
        for j, (t, c) in enumerate(batch):
            a(f"s_waitcnt lgkmcnt({len(batch)-1-j})")
            cc = v(out + 4*t, 4) if c > 0 else '0'
            a(f"v_mfma_f32_16x16x32_bf16 {v(out+4*t,4)}, {v(nb+4*(b0+j),4)}, {v(phq+4*c,4)}, {cc}")
    if save is not None:
        for t in range(5):
            for hh in range(2):
                a(f"ds_read_b64_tr_b16 {v(save+4*t+2*hh,2)}, v{tr_base} offset:{WOSAVE + hh*2304 + 32*t}")
    a(f"v_add_f32 v{vT[0]}, 0x358637bd, v{out+18}\nv_rcp_f32 v{vT[0]}, v{vT[0]}")
    for i in range(9): a(f"v_pk_mul_f32 {v(out+2*i,2)}, {v(out+2*i,2)}, {v(vT[0],2)} op_sel_hi:[1,0]")
    for i in range(9): a(f"v_cvt_pk_bf16_f32 v{out+20+i}, v{out+2*i}, v{out+2*i+1}")
    a("s_waitcnt lgkmcnt(0)\ns_barrier")
    for i in range(0, 8, 2):
        a(f"ds_write2_b32 v{vT[4]}, v{out+20+i}, v{out+21+i} offset0:{i} offset1:{i+1}")
    a(f"ds_write_b32 v{vT[4]}, v{out+28} offset:32")
    a("s_waitcnt lgkmcnt(0)")
    for j in range(3): a(f"ds_read_b128 {v(out+4*j,4)}, v{vT[2]} offset:{64*j}")
    for j in range(3):
        a(f"s_waitcnt lgkmcnt({2-j})\nbuffer_store_dwordx4 {v(out+4*j,4)}, v{vOST[j]}, {srd(SWS)}, 0 offen sc1")
    a(f"""
  s_lshl_b32 s{sT2}, s{sTILE}, 7
  s_lshl_b32 s{sT3}, s{sG}, 3
  s_add_u32 s{sT2}, s{sT2}, s{sT3}
  s_add_u32 s{sT0}, s{sT2}, {WS_F2}
  s_barrier
""")
    set_flag(sT0)
    stamp(10)

vRA8 = [21, 22, 23, 24, 25, 19, 14, 10]
DEP = opt('dep', 6)
def pass1(role):
    steps = [('t', t) for t in range(5)] + ([('v', 0), ('v', 1), ('g', 0)] if role == 0 else [('v', 2), ('v', 3), ('v', 4)])
    a(f"""
  v_lshrrev_b32 v{vT[0]}, 1, v{vN}
  v_xor_b32 v{vT[0]}, v{vT[0]}, v{vG}
  v_lshlrev_b32 v{vT[0]}, 4, v{vT[0]}
  v_lshl_add_u32 v{vT[0]}, v{vN}, 7, v{vT[0]}
  s_lshl_b32 s{sT2}, s{sTH}, 13
  v_add_u32 v{vRX[0]}, s{sT2}, v{vT[0]}
  v_xor_b32 v{vRX[1]}, 64, v{vRX[0]}
  v_bfe_u32 v{vT[0]}, v{vLANE}, 2, 2
  v_lshl_add_u32 v{vT[1]}, v{vG}, 2, v{vT[0]}
  v_and_b32 v{vT[2]}, 3, v{vLANE}
  v_and_b32 v{vT[3]}, 1, v{vT[0]}
  v_lshlrev_b32 v{vT[3]}, 1, v{vT[3]}
  v_and_b32 v{vT[4]}, 7, v{vT[1]}
  v_lshl_add_u32 v{vT[3]}, v{vT[4]}, 2, v{vT[3]}
  v_lshlrev_b32 v{vT[4]}, 9, v{vT[1]}
  v_add_u32 v{vT[4]}, {W0L}, v{vT[4]}
  v_lshlrev_b32 v{vT[2]}, 3, v{vT[2]}
""")
    for i, (ty, t) in enumerate(steps):
        if ty == 'g':
            a(f"v_lshlrev_b32 v{vRA8[i]}, 4, v{vG}\nv_add_u32 v{vRA8[i]}, {GW}, v{vRA8[i]}\ns_mov_b32 s{sT5}, s{sROT}")
            continue
        units = [(20 if role == 0 else 0) + KOFF8[c] + t for c in range(4)] if ty == 't' else [40 + u for u in TILEV[t]]
        packed = sum(u << (8 * c) for c, u in enumerate(units))
        a(f"""
  s_mov_b32 s{sT3}, {packed}
  v_lshrrev_b32 v{vT[0]}, v{vT[2]}, s{sT3}
  v_and_b32 v{vT[0]}, 0xff, v{vT[0]}
  v_xor_b32 v{vT[0]}, v{vT[0]}, v{vT[3]}
  v_lshl_add_u32 v{vRA8[i]}, v{vT[0]}, 3, v{vT[4]}
""")
    base = [0]
    def setbase(sl):
        want = (sl // 3) * 3 * WSL
        out = []
        if want != base[0]:
            d = want - base[0]
            for i, (ty, t) in enumerate(steps):
                if ty == 'g': continue
                r = vRA8[i]
                out.append(f"v_add_u32 v{r}, {d}, v{r}" if d > 0 else f"v_subrev_u32 v{r}, {-d}, v{r}")
            base[0] = want
        return out
    def xregs(ks, tt): return XB + 16 * (ks & 1) + 4 * tt
    lds = []
    def wreads(st):
        ks, i = divmod(st, 8)
        ty, t = steps[i]
        pre = setbase((ks + 1) % NWS) if i == 0 else []
        off = ((ks + 1) % NWS) * WSL - base[0]
        fb = RING + 4 * (st % 8)
        if ty == 'g':
            pre = [(None, f"s_lshl_b32 s{sT4}, s{sT5}, 6\nv_add_u32 v{vT[7]}, s{sT4}, v{vRA8[i]}\ns_add_u32 s{sT5}, s{sT5}, 1\ns_cmp_eq_u32 s{sT5}, 18\ns_cselect_b32 s{sT5}, 0, s{sT5}")]
            return pre + [(st, f"ds_read_b128 {v(fb,4)}, v{vT[7]}")]
        pre = [(None, x_) for x_ in pre]
        return pre + [(st, f"ds_read_b64_tr_b16 {v(fb + 2*hh, 2)}, v{vRA8[i]} offset:{off + hh*8192}") for hh in range(2)]
    def xread(ks, tt):
        xo = ((ks // 2) % NXS) * XSL
        return (8 * ks, f"ds_read_b128 {v(xregs(ks, tt), 4)}, v{vRX[ks & 1]} offset:{xo + 2048*tt}")
    def emit(it):
        tag, txt = it
        if opt('noreads', 0) and tag is not None and tag >= 8: txt = "s_nop 0"
        a(txt)
        if tag is not None: lds.append(tag)
    def mfma(st, tt):
        ks, i = divmod(st, 8)
        ty, t = steps[i]
        fb = RING + 4 * (st % 8)
        acc = ACC + 16 * i + 4 * tt
        c = v(acc, 4) if ks > 0 else '0'
        A, B = (v(xregs(ks,tt),4), v(fb,4)) if ty == 'v' else (v(fb,4), v(xregs(ks,tt),4))
        if opt('nomfma', 0): return "s_nop 0"
        return f"v_mfma_f32_16x16x32_bf16 {v(acc,4)}, {A}, {B}, {c}"
    a("s_waitcnt vmcnt(0)")
    table_writes()
    a("s_waitcnt lgkmcnt(0)\ns_barrier")
    stamp(3)
    for tt in range(4): emit(xread(0, tt))
    for st in range(DEP):
        for it in wreads(st): emit(it)
    NST = 144
    fifo = []
    for st in range(NST):
        while any(t_ == st for t_, _ in fifo): emit(fifo.pop(0))
        idx = max(i for i, x_ in enumerate(lds) if x_ == st)
        a(f"s_waitcnt lgkmcnt({min(15, len(lds) - 1 - idx)})")
        if (st + DEP) % 8 == 0:
            while fifo: emit(fifo.pop(0))
            a("s_barrier")
        if st == 64: a(NONLD)
        nst = st + DEP
        if nst < NST:
            fifo += wreads(nst)
            j = nst % 8
            if j < 4: fifo.append(xread(nst // 8, j))
        for tt in range(4):
            a(mfma(st, tt))
            if fifo: emit(fifo.pop(0))
def loader():
    nW, nX = (4, 2) if NI0 else (2, 1)
    def need(ks): return min(vm.wait_for(('w', ks)), vm.wait_for(('x', ks // 2)))
    a(f"s_waitcnt vmcnt({need(0)})\ns_barrier")
    stamp(3)
    def refill(ks, maxw):
        nonlocal nW, nX
        c = 0
        while c < maxw:
            if nX < 9 and 2 * nX <= nW + 1 and 2 * (nX - NXS) + 1 <= ks: issue_x(nX); nX += 1
            if nW < 18 and nW - NWS <= ks - 1: issue_w(nW); nW += 1; c += 1
            else: break
        if nX < 9 and 2 * nX <= nW + 1 and 2 * (nX - NXS) + 1 <= ks: issue_x(nX); nX += 1
    if opt('norefill', 0):
        global w_items, x_items
        w_items = lambda ks: "s_nop 0"
        x_items = lambda pr: "s_nop 0"
    refill(-1, 2)
    for ks in range(18):
        if ks + 1 < 18: a(f"s_waitcnt vmcnt({need(ks + 1)})")
        a("s_barrier")
        refill(ks, 2)
        if ks == 8: a(NONLD); vm.add('non')
    assert nW == 18 and nX == 9, (nW, nX)
def handoff(role):
    own = (0, 1) if role == 0 else (2, 3)
    snd = (2, 3) if role == 0 else (0, 1)
    SND = RING
    a(f"""
  s_mul_i32 s{sT2}, s{sTH}, 5120
  s_add_u32 s{sT2}, s{sT2}, {HX + role * 10240}
  v_lshlrev_b32 v{vT[0]}, 4, v{vLANE}
  v_add_u32 v{vT[2]}, s{sT2}, v{vT[0]}
  v_lshlrev_b32 v{vT[1]}, 3, v{vLANE}
  v_add_u32 v{vT[3]}, s{sT2}, v{vT[1]}
""")
    for j, tt in enumerate(snd):
        for t in range(5):
            s_ = ACC + 16 * t + 4 * tt
            a(f"v_cvt_pk_bf16_f32 v{SND+12*j+2*t}, v{s_}, v{s_+1}\nv_cvt_pk_bf16_f32 v{SND+12*j+2*t+1}, v{s_+2}, v{s_+3}")
        a(f"ds_write_b128 v{vT[2]}, {v(SND+12*j,4)} offset:{2560*j}\nds_write_b128 v{vT[2]}, {v(SND+12*j+4,4)} offset:{2560*j+1024}\nds_write_b64 v{vT[3]}, {v(SND+12*j+8,2)} offset:{2560*j+2048}")
    cts = [0, 1] if role == 0 else [2, 3, 4]
    a(f"s_mul_i32 s{sT2}, s{sTH}, 10240\ns_add_u32 s{sT2}, s{sT2}, {VF}\nv_add_u32 v{vT[4]}, s{sT2}, v{vT[0]}")
    if role == 1: a(f"v_cmp_eq_u32 vcc, 8, v{vN}\nv_mov_b32 v{vT[1]}, 0x3f803f80")
    for i, ct in enumerate(cts):
        for j in range(2):
            b_ = ACC + 16 * (5 + i) + 8 * j
            for q in range(4): a(f"v_cvt_pk_bf16_f32 v{b_+q}, v{b_+2*q}, v{b_+2*q+1}")
            if ct == 2:
                for q in range(4): a(f"v_cndmask_b32 v{b_+q}, v{b_+q}, v{vT[1]}, vcc")
            a(f"ds_write_b128 v{vT[4]}, {v(b_,4)} offset:{5120*j + ct*1024}")
    a("s_waitcnt lgkmcnt(0)")
    arrive(C1)
    for kb, tt in zip((KB0, KB1), own):
        for t in range(5):
            s_ = ACC + 16 * t + 4 * tt
            a(f"v_cvt_pk_bf16_f32 v{kb+2*t}, v{s_}, v{s_+1}\nv_cvt_pk_bf16_f32 v{kb+2*t+1}, v{s_+2}, v{s_+3}")
        a(f"v_mov_b32 v{kb+10}, 0\nv_mov_b32 v{kb+11}, 0")
def a2_reads(addr):
    for j, (t, c) in enumerate(SEQ2): a(f"ds_read_b128 {v(A2L[j],4)}, v{addr} offset:{t*192 + c*16}")


cA2q, cKVq = cA2, cKV
a(f"v_lshlrev_b32 v{cL16}, 4, v{vLANE}")
diag_addr(cA2, 20, 48, T2)
diag_addr(cKV, 19, 80, KVT)
a(f"v_add_u32 v{cW2}, {4*1152}, v{vWO}")
a(f"s_cmp_eq_u32 s{sROLE}, 1\ns_cbranch_scc1 L_noKc")
a(f"""
  s_and_b32 s{sT4}, s{sTG}, 1                 ; half
  s_lshr_b32 s{sT5}, s{sTG}, 1                ; c0
  s_lshl_b32 s{sT2}, s{sTG}, 10
  v_add_u32 v{cAF}, s{sT2}, v{cL16}
  s_mul_i32 s{sT2}, s{sT4}, 3072
  s_add_u32 s{sT2}, s{sT2}, {VF}
  v_add_u32 v{cB01}, s{sT2}, v{cL16}
  v_add_u32 v{cB2}, {VF + 2048}, v{cL16}
  s_lshl_b32 s{sT1}, s{sT4}, 1
  v_lshrrev_b32 v{vT[7]}, 1, v{vG}
  v_add_u32 v{vT[7]}, s{sT1}, v{vT[7]}        ; hr
  v_and_b32 v{vT[9]}, 1, v{vG}
  v_lshlrev_b32 v{vT[9]}, 4, v{vT[9]}
  s_lshl_b32 s{sT1}, s{sT5}, 5
  s_add_u32 s{sT1}, s{sT1}, {PST}
  v_add_u32 v{vT[9]}, s{sT1}, v{vT[9]}        ; PST + c0*32 + (g&1)*16
  v_cmp_lt_u32 s[{sM2}:{sM2+1}], 7, v{vN}
""")
for ci in range(3):
    if ci == 0: pre = f"s_mul_i32 s{sT2}, s{sT4}, 48\n  s_mov_b32 s{sT3}, 0"
    elif ci == 1: pre = f"s_mul_i32 s{sT2}, s{sT4}, 24\n  s_add_u32 s{sT2}, s{sT2}, 16\n  s_lshl_b32 s{sT3}, s{sT4}, 4"
    else: pre = f"s_mov_b32 s{sT2}, 32\n  s_movk_i32 s{sT3}, 200"
    a(f"""
  {pre}
  v_mov_b32 v{vT[4]}, s{sT3}
  v_cndmask_b32 v{vT[4]}, 0, v{vT[4]}, s[{sM2}:{sM2+1}]
  v_add3_u32 v{vT[4]}, v{vT[4]}, v{vN}, s{sT2}
  v_mul_u32_u24 v{vT[5]}, 57, v{vT[4]}
  v_lshrrev_b32 v{vT[5]}, 10, v{vT[5]}
  v_mul_u32_u24 v{vT[6]}, 18, v{vT[5]}
  v_sub_u32 v{vT[6]}, v{vT[4]}, v{vT[6]}
""")
    if ci == 2:
        a(f"""
  v_cmp_eq_u32 vcc, 240, v{vT[4]}
  v_cndmask_b32 v{vT[5]}, v{vT[5]}, v{vT[7]}, vcc
  v_cndmask_b32 v{vT[6]}, v{vT[6]}, 18, vcc
""")
    a(f"""
  v_mul_u32_u24 v{vT[8]}, 19, v{vT[7]}
  v_add_u32 v{vT[8]}, v{vT[8]}, v{vT[6]}
  s_movk_i32 s{sT2}, 144
  v_mad_u32_u24 v{vT[8]}, v{vT[8]}, s{sT2}, v{vT[9]}
  v_cmp_eq_u32 vcc, v{vT[5]}, v{vT[7]}
  v_mov_b32 v{vT[10]}, {PST + 10944}
  v_cndmask_b32 v{cPS[ci]}, v{vT[10]}, v{vT[8]}, vcc
""")
a(f"v_lshlrev_b32 v{cSA}, 3, v{vLANE}")
for j in range(3):
    a(f"""
  v_add_u32 v{vT[0]}, {256*j}, v0
  s_mov_b32 s{sT3}, 0xE38F
  v_mul_u32_u24 v{vT[1]}, s{sT3}, v{vT[0]}
  v_lshrrev_b32 v{vT[1]}, 19, v{vT[1]}
  v_mul_u32_u24 v{vT[2]}, 9, v{vT[1]}
  v_sub_u32 v{vT[2]}, v{vT[0]}, v{vT[2]}
  v_lshlrev_b32 v{cGQ[j]}, 4, v{vT[0]}
  v_mul_u32_u24 v{cLQ[j]}, 80, v{vT[1]}
  v_lshl_add_u32 v{cLQ[j]}, v{vT[2]}, 3, v{cLQ[j]}
  v_add_u32 v{cLQ[j]}, {KVT}, v{cLQ[j]}
""")
a(f"""
  v_cmp_gt_u32 vcc, {684-512}, v0
  v_mov_b32 v{vT[0]}, {BIG}
  v_cndmask_b32 v{cGQ[2]}, v{vT[0]}, v{cGQ[2]}, vcc
  v_lshrrev_b32 v{vT[2]}, 3, v{vN}
  v_and_b32 v{vT[1]}, 1, v{vN}
  v_lshlrev_b32 v{vT[1]}, 4, v{vT[1]}
  v_mov_b32 v{vT[3]}, 0x3f80
  v_lshlrev_b32 v{vT[3]}, v{vT[1]}, v{vT[3]}
  v_bfe_u32 v{vT[1]}, v{vN}, 1, 2
  v_lshl_add_u32 v{vT[1]}, v{vT[2]}, 2, v{vT[1]}
  v_and_b32 v{vT[2]}, 1, v{vG}
  v_lshlrev_b32 v{vT[2]}, 2, v{vT[2]}
  v_sub_u32 v{vT[1]}, v{vT[1]}, v{vT[2]}
  v_lshrrev_b32 v{vT[2]}, 1, v{vG}
  v_lshl_add_u32 v{vT[1]}, v{vT[2]}, 4, v{vT[1]}
""")
for half in range(2):
    for j2 in range(4):
        a(f"v_cmp_eq_u32 vcc, {16*half + j2}, v{vT[1]}\nv_cndmask_b32 v{cSEL[half]+j2}, 0, v{vT[3]}, vcc")
a(f"""
  s_mul_i32 s{sT2}, s{sTG}, 10240
  v_add_u32 v{cPFW}, s{sT2}, v{cL16}
""")

a("L_noKc:")
a(f"s_cmp_ge_u32 s{sPW}, 4\ns_cbranch_scc1 L_loader")
a(f"s_cmp_eq_u32 s{sROLE}, 1\ns_cbranch_scc1 L_qcomp")
pass1(0)
a("s_setprio 3")
stamp(4)
handoff(0)
a2_reads(cA2)
a(f"""
  v_cmp_eq_u32 vcc, 1, v{vG}
  v_cndmask_b32 v{vT[0]}, v{ACC+112}, v{ACC+116}, vcc
  v_cmp_eq_u32 vcc, 2, v{vG}
  v_cndmask_b32 v{vT[0]}, v{vT[0]}, v{ACC+120}, vcc
  v_cmp_eq_u32 vcc, 3, v{vG}
  v_cndmask_b32 v{vT[0]}, v{vT[0]}, v{ACC+124}, vcc
  v_lshlrev_b32 v{vT[2]}, 2, v{vLANE}
  s_lshl_b32 s{sT2}, s{sT}, 9
  s_lshl_b32 s{sT3}, s{sTH}, 8
  s_add_u32 s{sT2}, s{sT2}, s{sT3}
  s_add_u32 s{sT2}, s{sT2}, {WS_GATE}
  s_cmp_eq_u32 s{sG}, 0
  s_cselect_b32 s{sT2}, s{sT2}, {BIG}
  s_waitcnt vmcnt(0)
  buffer_store_dword v{vT[0]}, v{vT[2]}, {srd(SWS)}, s{sT2} offen sc1
""")
get_nonce()
a("s_branch L_kpost")
a("L_qcomp:")
pass1(1)
stamp(4)
handoff(1)
a2_reads(cA2)
a("s_waitcnt vmcnt(0)")
get_nonce()
a("s_branch L_qpost")
a("L_loader:")
loader()
a2_reads(cA2)
get_nonce()
stamp(4)
a(f"""
  s_mul_i32 s{sT3}, s{sTH}, 5120
  s_mul_i32 s{sT4}, s{sROLE}, 10240
  s_add_u32 s{sT3}, s{sT3}, s{sT4}
  v_add_u32 v{vT[2]}, s{sT3}, v{cL16}
  v_lshlrev_b32 v{vT[3]}, 3, v{vLANE}
  v_add_u32 v{vT[3]}, s{sT3}, v{vT[3]}
  s_cmp_eq_u32 s{sROLE}, 1
  s_cbranch_scc1 L_lq
  s_setprio 3
L_lq:
""")
cwait(C1, 4)
for j, kb in enumerate((KB0, KB1)):
    a(f"ds_read_b128 {v(kb,4)}, v{vT[2]} offset:{HX+2560*j}\nds_read_b128 {v(kb+4,4)}, v{vT[2]} offset:{HX+2560*j+1024}\nds_read_b64 {v(kb+8,2)}, v{vT[3]} offset:{HX+2560*j+2048}")
    a(f"v_mov_b32 v{kb+10}, 0\nv_mov_b32 v{kb+11}, 0")
a("s_waitcnt lgkmcnt(0)")
arrive(C1)
a(f"s_cmp_eq_u32 s{sROLE}, 1\ns_cbranch_scc1 L_qpost")
a("L_kpost:")
a("s_waitcnt lgkmcnt(0)")
for m in stage2_mfmas(P0, A2L, KB0): a(m)
merge(softmax_list(P0, EPk, PH0), stage2_mfmas(P1, A2L, KB1), every=3)
tr0 = [f"v_mfma_f32_16x16x32_bf16 {v(D0+4*(2*c+h),4)}, {v(PH0+4*c,4)}, {v(cSEL[h],4)}, 0" for c in range(5) for h in range(2)]
merge(softmax_list(P1, EPk, PH1), tr0, every=4)
for c in range(5):
    for h in range(2):
        a(f"v_mfma_f32_16x16x32_bf16 {v(D1+4*(2*c+h),4)}, {v(PH1+4*c,4)}, {v(cSEL[h],4)}, 0")
for rt in range(10):
    d = D0 + 4 * rt
    a(f"v_cvt_pk_bf16_f32 v{d}, v{d}, v{d+1}\nv_cvt_pk_bf16_f32 v{d+1}, v{d+2}, v{d+3}")
cwait(C1, 8)
for rt in range(10):
    d = D0 + 4 * rt; e = D1 + 4 * rt
    a(f"v_cvt_pk_bf16_f32 v{d+2}, v{e}, v{e+1}\nv_cvt_pk_bf16_f32 v{d+3}, v{e+2}, v{e+3}")
    a(f"ds_write_b128 v{cPFW}, {v(d,4)} offset:{PF + rt*1024}")
a("s_waitcnt lgkmcnt(0)")
arrive(CPF)
cwait(CPF, 4)
stamp(5)
KV = 160
BF = 32
AFR = 80
for ci in range(3):
    for tg in range(4):
        if ci == 0: a(f"ds_read_b128 {v(AFR+4*tg,4)}, v{cAF} offset:{tg*10240}")
        ad, of = (cB01, ci * 1024) if ci < 2 else (cB2, 0)
        a(f"ds_read_b128 {v(BF+16*ci+4*tg,4)}, v{ad} offset:{of + tg*5120}")
def kv_mf(j, ci):
    acc = KV + 4 * (3 * j + ci)
    return [f"v_mfma_f32_16x16x32_bf16 {v(acc,4)}, {v(AFR+16*j+4*tg,4)}, {v(BF+16*ci+4*tg,4)}, {v(acc,4) if tg else '0'}" for tg in range(4)]
a("s_waitcnt lgkmcnt(8)")
for tg in range(4): a(f"ds_read_b128 {v(AFR+16+4*tg,4)}, v{cAF} offset:{4096 + tg*10240}")
for m in kv_mf(0, 0): a(m)
a("s_waitcnt lgkmcnt(8)")
for tg in range(4): a(f"ds_read_b128 {v(AFR+32+4*tg,4)}, v{cAF} offset:{8192 + tg*10240}")
for m in kv_mf(0, 1): a(m)
a("s_waitcnt lgkmcnt(8)")
for m in kv_mf(0, 2): a(m)
a("s_waitcnt lgkmcnt(4)")
for ci in range(3):
    for m in kv_mf(1, ci): a(m)
for ci in range(3): a(f"ds_write_b128 v{cPS[ci]}, {v(KV+4*ci,4)}")
a(f"s_waitcnt lgkmcnt(3)\ns_cmp_ge_u32 s{sTG}, 2\ns_cbranch_scc1 L_kvskip")
for ci in range(3):
    for m in kv_mf(2, ci): a(m)
a("s_mov_b32 exec_lo, 0xffff\ns_mov_b32 exec_hi, 0xffff")
for ci in range(3): a(f"ds_write_b128 v{cPS[ci]}, {v(KV+24+4*ci,4)} offset:128")
a("s_mov_b64 exec, -1\nL_kvskip:")
for ci in range(3): a(f"ds_write_b128 v{cPS[ci]}, {v(KV+12+4*ci,4)} offset:64")
a(f"""
  s_lshl_b32 s{sT4}, s{sG}, 9
  s_add_u32 s{sT4}, s{sT4}, {WS_F1}
  s_lshl_b32 s{sT0}, s{sT}, 5
  s_lshl_b32 s{sT3}, s{sTG}, 3
  s_add_u32 s{sT0}, s{sT0}, s{sT3}
  s_add_u32 s{sT0}, s{sT0}, s{sT4}
  v_lshlrev_b32 v{vT[4]}, 4, v0
  v_add_u32 v{vT[4]}, {PST}, v{vT[4]}
  s_waitcnt lgkmcnt(0)
""")
arrive(CKV)
cwait(CKV, 4)
for j in range(3): a(f"ds_read_b128 {v(32+4*j,4)}, v{vT[4]} offset:{4096*j}")
for j in range(3):
    a(f"s_waitcnt lgkmcnt({2-j})\nbuffer_store_dwordx4 {v(32+4*j,4)}, v{cGQ[j]}, {srd(SWS)}, s{sPB} offen sc1")
set_flag(sT0)
stamp(6)
for kk in grp1 + [35]: a(wo_item2(kk, cW2))
def poll_all(lab, soff, addr, cnt):
    a(f"""
  s_cmp_lg_u32 s{sWV}, 0
  s_cbranch_scc1 {lab}_w
  s_mov_b32 s{sRETRY}, 0
{lab}:
  buffer_load_dwordx2 v[{vT[6]}:{vT[7]}], v{addr}, {srd(SWS)}, s{soff} offen sc1
  s_waitcnt vmcnt(0)
  v_cmp_ne_u32 vcc, s{sNON}, v{vT[6]}
  v_cmp_ne_u32 s[{sM2}:{sM2+1}], s{sNON+1}, v{vT[7]}
  s_or_b64 vcc, vcc, s[{sM2}:{sM2+1}]
  s_add_u32 s{sRETRY}, s{sRETRY}, 1
  s_cmp_gt_u32 s{sRETRY}, 40000
  s_cbranch_scc1 {lab}_d
  s_cmp_eq_u64 vcc, 0
  s_cbranch_scc1 {lab}_d
  s_sleep 1
  s_branch {lab}
{lab}_d:""")
    arrive(cnt, vT[6], vT[7])
    a(f"{lab}_w:")
    cwait(cnt, 1, vT[6], vT[7])
PB = 32
LDF = '' if opt('plain', 1) else ' sc1'
a(f"""
  s_lshl_b32 s{sT5}, s{sG}, 18
  s_mov_b32 s{sPEND}, 0xffff
  s_mov_b32 s{sRETRY}, 0
  v_mov_b32 v{vT[4]}, {CNT + CG}
L_gloop:
  s_cmp_lg_u32 s{sWV}, 0
  s_cbranch_scc1 L_gread
  buffer_load_dwordx2 v[{vT[6]}:{vT[7]}], v{cSA}, {srd(SWS)}, s{sT4} offen sc1
  s_waitcnt vmcnt(0)
  v_cmp_eq_u32 vcc, s{sNON}, v{vT[6]}
  v_cmp_eq_u32 s[{sM2}:{sM2+1}], s{sNON+1}, v{vT[7]}
  s_and_b64 vcc, vcc, s[{sM2}:{sM2+1}]
  s_lshr_b64 s[{sM2}:{sM2+1}], vcc, 1
  s_and_b64 vcc, vcc, s[{sM2}:{sM2+1}]
  s_lshr_b64 s[{sM2}:{sM2+1}], vcc, 2
  s_and_b64 vcc, vcc, s[{sM2}:{sM2+1}]
  v_mov_b32 v{vT[6]}, vcc_lo
  v_mov_b32 v{vT[7]}, vcc_hi
  ds_write_b64 v{vT[4]}, v[{vT[6]}:{vT[7]}]
L_gread:
  ds_read_b64 v[{vT[6]}:{vT[7]}], v{vT[4]}
  s_waitcnt lgkmcnt(0)
  v_readfirstlane_b32 s{sM2}, v{vT[6]}
  v_readfirstlane_b32 s{sM2+1}, v{vT[7]}
""")
for p in range(16):
    lab = f"L_gl{p}"
    a(f"s_bitcmp1_b64 s[{sM2}:{sM2+1}], {4*p}\ns_cbranch_scc0 {lab}")
    a(f"s_bitcmp1_b32 s{sPEND}, {p}\ns_cbranch_scc0 {lab}")
    a(f"s_add_u32 s{sT2}, s{sT5}, {p*16384}\ns_bitset0_b32 s{sPEND}, {p}")
    for j in range(3):
        a(f"buffer_load_dwordx4 {v(PB+12*p+4*j,4)}, v{cGQ[j]}, {srd(SWS)}, s{sT2} offen{LDF}")
    a(f"{lab}:")
a(f"""
  s_add_u32 s{sRETRY}, s{sRETRY}, 1
  s_cmp_gt_u32 s{sRETRY}, 400000
  s_cbranch_scc1 L_gdone
  s_cmp_eq_u32 s{sPEND}, 0
  s_cbranch_scc1 L_gdone
  s_sleep 1
  s_branch L_gloop
L_gdone:
""")
stamp(7)
a("s_waitcnt vmcnt(0)")
stamp(8)
for p in range(1, 16):
    for q in range(0, 12, 2):
        a(f"v_pk_add_f32 {v(PB+q,2)}, {v(PB+q,2)}, {v(PB+12*p+q,2)}")
for j in range(3):
    r = PB + 4 * j
    a(f"v_cvt_pk_bf16_f32 v{r}, v{r}, v{r+1}\nv_cvt_pk_bf16_f32 v{r+1}, v{r+2}, v{r+3}")
a(f"ds_write_b64 v{cLQ[0]}, {v(PB,2)}\nds_write_b64 v{cLQ[1]}, {v(PB+4,2)}")
a(f"""
  v_cmp_gt_u32 vcc, {684-512}, v0
  s_and_saveexec_b64 s[94:95], vcc
  ds_write_b64 v{cLQ[2]}, {v(PB+8,2)}
  s_mov_b64 exec, -1
  v_mul_u32_u24 v{vT[0]}, 80, v0
  v_add_u32 v{vT[0]}, {KVT+72}, v{vT[0]}
  v_mov_b32 v{vT[2]}, 0
  v_mov_b32 v{vT[3]}, 0
  v_cmp_gt_u32 vcc, 76, v0
  s_and_saveexec_b64 s[94:95], vcc
  ds_write_b64 v{vT[0]}, v[{vT[2]}:{vT[3]}]
  s_mov_b64 exec, -1
  s_mul_i32 s{sT2}, s{sTG}, 5120
  s_add_u32 s{sT2}, s{sT2}, {PQ}
  v_add_u32 v{vT[0]}, s{sT2}, v{cL16}
  v_bfe_u32 v{vT[3]}, v{vLANE}, 2, 2
  v_lshl_add_u32 v{vT[1]}, v{vG}, 2, v{vT[3]}
  v_and_b32 v{vT[2]}, 3, v{vLANE}
  s_movk_i32 s{sT3}, 144
  v_mul_u32_u24 v{vT[1]}, s{sT3}, v{vT[1]}
  v_lshl_add_u32 v{vRA[0]}, v{vT[2]}, 3, v{vT[1]}
  s_waitcnt lgkmcnt(0)
  s_barrier
""")
stamp(9)
KPHQ = 180; KOUT = 136; KNB = 32; SAVE = 200
for c in range(5): a(f"ds_read_b128 {v(KPHQ+4*c,4)}, v{vT[0]} offset:{c*1024}")
num_and_store(KPHQ, KNB, KOUT, cKV, SAVE, vRA[0])
OF = 32
CACC = KC - 44
CACC = 216
SAVE2 = 176
for i in range(20): a(f"v_mov_b32 v{SAVE2+i}, v{SAVE+i}")
FB = 196
a(f"""
  s_lshr_b32 s{sT0}, s{sWV}, 1
  s_and_b32 s{sT1}, s{sWV}, 1
  s_lshl_b32 s{sT2}, s{sTB}, 2
  s_lshl_b32 s{sT3}, s{sT1}, 1
  s_add_u32 s{sT2}, s{sT2}, s{sT3}
  s_lshl_b32 s{sT3}, s{sT0}, 7
  s_add_u32 s{sT3}, s{sT3}, s{sT2}
  s_mul_i32 s{sT5}, s{sT3}, 18432
  s_add_u32 s{sT5}, s{sT5}, {WS_O}
  s_add_u32 s{sT4}, s{sT5}, 18432
  v_lshlrev_b32 v{vT[0]}, 4, v{vLANE}
  v_add_u32 v{vT[1]}, 4096, v{vT[0]}
  v_add_u32 v{vT[2]}, 8192, v{vT[0]}
  v_add_u32 v{vT[3]}, 12288, v{vT[0]}
  v_add_u32 v{vT[4]}, 16384, v{vT[0]}
  s_lshl_b32 s{sT2}, s{sT2}, 6
  s_add_u32 s{sT2}, s{sT2}, {WS_GATE}
  v_lshlrev_b32 v{vT[5]}, 2, v{vN}
  v_lshlrev_b32 v{vT[9]}, 3, v{vLANE}
  s_lshl_b32 s{sT3}, s{sTB}, 9
  s_add_u32 s{sPEND}, s{sT3}, {WS_F2}
  s_mov_b32 s{sPB}, s{sT2}
  v_add_u32 v{vRA[1]}, 65536, v{vRA[0]}
  v_add_u32 v{vRA[2]}, 131072, v{vRA[0]}
""")
poll_all("L_opoll", sPEND, vT[9], CO)
a(f"""
  buffer_load_dword v{vT[6]}, v{vT[5]}, {srd(SWS)}, s{sPB} offen{LDF}
  buffer_load_dword v{vT[7]}, v{vT[5]}, {srd(SWS)}, s{sPB} offen offset:64{LDF}
""")
stamp(11)
for ks in range(18):
    for tt in range(2):
        a(f"buffer_load_dwordx4 {v(OF+8*ks+4*tt,4)}, v{vT[ks//4]}, {srd(SWS)}, s{sT5 if tt==0 else sT4} offen offset:{(ks%4)*1024}{LDF}")
a(f"""
  s_barrier
  s_cmp_eq_u32 s{sT0}, 1
  s_cbranch_scc1 L_pc_b1""")
def phaseC(b):
    seq = [(ks, t) for ks in range(18) for t in range(5)]
    def rd(i):
        ks, t = seq[i]
        if b * 18 + ks == 35: return False
        ad = wo_addr[b * 18 + ks]
        for hh in range(2):
            o = ad + hh * 2304 + 32 * t
            a(f"ds_read_b64_tr_b16 {v(FB+4*(i%5)+2*hh,2)}, v{vRA[o >> 16]} offset:{o & 0xffff}")
        return True
    DEPTH = 4
    issued = [rd(i) for i in range(DEPTH)]
    for i, (ks, t) in enumerate(seq):
        saved = (b * 18 + ks == 35)
        w = []
        if t == 0: w.append(f"vmcnt({34 - 2*ks})")
        if not saved:
            w.append(f"lgkmcnt({min(15, sum(2 for x in issued[i+1:] if x))})")
        if w: a("s_waitcnt " + " ".join(w))
        fr = (SAVE2 + 4 * t) if saved else (FB + 4 * (i % 5))
        for tt in range(2):
            acc = CACC + 20 * tt + 4 * t
            a(f"v_mfma_f32_16x16x32_bf16 {v(acc,4)}, {v(fr,4)}, {v(OF+8*ks+4*tt,4)}, {v(acc,4) if ks else '0'}")
            if tt == 0 and i + DEPTH < len(seq): issued.append(rd(i + DEPTH))
phaseC(0)
a("s_branch L_pc_done")
a("L_pc_b1:")
phaseC(1)
a(f"""
L_pc_done:
""")
stamp(12)
E0 = 32
for i in range(20):
    a(f"v_cvt_pk_bf16_f32 v{E0+i}, v{CACC+2*i}, v{CACC+2*i+1}")
a(f"""
  s_cmp_eq_u32 s{sT0}, 1
  s_cselect_b64 vcc, -1, 0
  v_cndmask_b32 v{vT[6]}, v{vT[6]}, v{vT[7]}, vcc
  v_cvt_pk_bf16_f32 v{vT[6]}, v{vT[6]}, v{vT[6]}
  v_lshlrev_b32 v{vT[6]}, 16, v{vT[6]}
  v_mul_f32 v{vT[6]}, s{sL+2}, v{vT[6]}
  v_exp_f32 v{vT[6]}, v{vT[6]}
  v_add_f32 v{vT[6]}, 1.0, v{vT[6]}
  v_rcp_f32 v{vT[6]}, v{vT[6]}
  v_cvt_pk_bf16_f32 v{vT[6]}, v{vT[6]}, v{vT[6]}
  v_lshlrev_b32 v{vT[6]}, 16, v{vT[6]}
  v_sub_f32 v{vT[7]}, 1.0, v{vT[6]}
  v_cvt_pk_bf16_f32 v{vT[7]}, v{vT[7]}, v{vT[7]}
  v_lshlrev_b32 v{vT[7]}, 16, v{vT[7]}
  v_cndmask_b32 v{vT[8]}, v{vT[6]}, v{vT[7]}, vcc
  v_cndmask_b32 v{vT[10]}, v{vT[7]}, v{vT[6]}, vcc
""")
for i in range(10):
    a(f"v_cndmask_b32 v{E0+20+i}, v{E0+10+i}, v{E0+i}, vcc\nv_cndmask_b32 v{E0+32+i}, v{E0+i}, v{E0+10+i}, vcc")
a(f"""
  s_mul_i32 s{sT2}, s{sWV}, 3072
  v_add_u32 v{vT[1]}, s{sT2}, v{vT[0]}
  s_xor_b32 s{sT3}, s{sWV}, 2
  s_mul_i32 s{sT3}, s{sT3}, 3072
  v_add_u32 v{vT[2]}, s{sT3}, v{vT[0]}
  s_barrier
  ds_write_b128 v{vT[1]}, {v(E0+20,4)} offset:{EPI}
  ds_write_b128 v{vT[1]}, {v(E0+24,4)} offset:{EPI+1024}
  ds_write_b64 v{vT[1]}, {v(E0+28,2)} offset:{EPI+2048}
  s_lshl_b32 s{sT2}, s{sTB}, 6
  s_lshl_b32 s{sT3}, s{sT1}, 5
  s_add_u32 s{sT2}, s{sT2}, s{sT3}
  s_lshl_b32 s{sT3}, s{sT0}, 4
  s_add_u32 s{sT2}, s{sT2}, s{sT3}
  v_add_u32 v{vT[3]}, s{sT2}, v{vN}
  s_movk_i32 s{sT3}, 1152
  v_mul_lo_u32 v{vT[3]}, v{vT[3]}, s{sT3}
  v_lshl_add_u32 v{vT[3]}, v{vG}, 3, v{vT[3]}
  s_mul_i32 s{sT3}, s{sCB}, 144
  v_add_u32 v{vT[3]}, s{sT3}, v{vT[3]}
  v_cmp_lt_u32 vcc, 1, v{vG}
  v_mov_b32 v{vT[4]}, {BIG}
  v_cndmask_b32 v{vT[4]}, v{vT[3]}, v{vT[4]}, vcc
""")
W0 = 80
for i in range(10):
    r = E0 + 32 + i
    a(f"""
  v_lshlrev_b32 v{W0+2*i}, 16, v{r}
  v_and_b32 v{W0+2*i+1}, 0xffff0000, v{r}
  v_pk_mul_f32 {v(W0+2*i,2)}, {v(W0+2*i,2)}, {v(vT[8],2)} op_sel_hi:[1,0]
  v_cvt_pk_bf16_f32 v{r}, v{W0+2*i}, v{W0+2*i+1}
  v_lshlrev_b32 v{W0+2*i}, 16, v{r}
  v_and_b32 v{W0+2*i+1}, 0xffff0000, v{r}
""")
a(f"""
  s_waitcnt lgkmcnt(0)
  s_barrier
  ds_read_b128 {v(E0+20,4)}, v{vT[2]} offset:{EPI}
  ds_read_b128 {v(E0+24,4)}, v{vT[2]} offset:{EPI+1024}
  ds_read_b64 {v(E0+28,2)}, v{vT[2]} offset:{EPI+2048}
  s_waitcnt lgkmcnt(0)
""")
for t in range(5):
    for h in range(2):
        i = 2 * t + h
        r = E0 + 20 + i; w = W0 + 20 + 2 * (i & 1)
        a(f"""
  v_lshlrev_b32 v{w}, 16, v{r}
  v_and_b32 v{w+1}, 0xffff0000, v{r}
  v_pk_mul_f32 {v(w,2)}, {v(w,2)}, {v(vT[10],2)} op_sel_hi:[1,0]
  v_cvt_pk_bf16_f32 v{r}, v{w}, v{w+1}
  v_lshlrev_b32 v{w}, 16, v{r}
  v_and_b32 v{w+1}, 0xffff0000, v{r}
  v_pk_add_f32 {v(w,2)}, {v(w,2)}, {v(W0+2*i,2)}
  v_cvt_pk_bf16_f32 v{E0+i}, v{w}, v{w+1}
""")
    a(f"buffer_store_dwordx2 {v(E0+2*t,2)}, v{vT[3] if t < 4 else vT[4]}, {srd(SOUT)}, 0 offen offset:{32*t}")
stamp(13)
a("s_branch L_fin")

a("L_qpost:")
a("s_waitcnt lgkmcnt(0)")
for m in stage2_mfmas(P0, A2L, KB0): a(m)
cwait(C1, 4)
for kk in grp2: a(wo_item2(kk, cW2))
stamp(7)
merge(softmax_list(P0, EPk, PH0), stage2_mfmas(P1, A2L, KB1), every=3)
for x in softmax_list(P1, EPk, PH1): a(x)
cwait(CKV, 4)
a(f"s_mul_i32 s{sT2}, s{sTG}, 5120\ns_add_u32 s{sT2}, s{sT2}, {PQ}\nv_add_u32 v{vT[8]}, s{sT2}, v{cL16}")
for c in range(5): a(f"ds_write_b128 v{vT[8]}, {v(PH0+4*c,4)} offset:{c*1024}")
stamp(8)
a("s_waitcnt lgkmcnt(0)\ns_barrier")
stamp(9)
num_and_store(PH1, 32, 136, cKV, None, None)
for kk in grp3: a(wo_item2(kk, cW2))
a("s_waitcnt vmcnt(0)\ns_barrier\ns_barrier\ns_barrier")
a("L_fin:")
if STAMPS:
    a(f"""
  s_and_b32 s{sT2}, s{sWV}, 3
  s_cmp_lg_u32 s{sT2}, 0
  s_cbranch_scc1 L_end
  s_waitcnt vmcnt(0)
  s_memrealtime s[94:95]
  s_waitcnt lgkmcnt(0)
  v_writelane_b32 v{vSTAMP}, s94, 14
  s_getreg_b32 s94, hwreg(HW_REG_XCC_ID)
  s_getreg_b32 s95, hwreg(HW_REG_HW_ID)
  v_writelane_b32 v{vSTAMP}, s94, 15
  v_writelane_b32 v{vSTAMP}, s95, 16
  v_lshlrev_b32 v{vT[0]}, 2, v{vLANE}
  s_lshl_b32 s{sT2}, s2, 9
  s_lshl_b32 s{sT3}, s{sROLE}, 8
  s_add_u32 s{sT2}, s{sT2}, s{sT3}
  s_add_u32 s{sT2}, s{sT2}, {WS_DBG}
  buffer_store_dword v{vSTAMP}, v{vT[0]}, {srd(SWS)}, s{sT2} offen
""")
a("L_end:\n  s_endpgm")

hdr = open('cdna_kernels/' + NAME + '.s.ref').read().split('; Override launch')[0]
out = kernel_file(a.text(), "grid=(256,1,1) block=(512,1,1) lds=163840", 256, hdr_comment=hdr)
outp = [x for x in sys.argv[1:] if not x.startswith('--') and not x.startswith('o:')]
open(outp[0] if outp else 'k.s', 'w').write(out)
```

```python
import sys
from asmlib import *

STAMPS = '--stamps' in sys.argv
OPT = dict(x[2:].split('=') for x in sys.argv if x.startswith('o:'))
def opt(k, d): return type(d)(OPT.get(k, d))
NB0 = opt('nb0', 3)

XSL = 16384; NXS = 3
WSL = 16384; NWS = 6; W0L = NXS * XSL
assert W0L + NWS * WSL <= 156672
KST = 4608
TAB = 34 * KST
T2 = TAB
GW = TAB + 3840
ZR = GW + 1152
CNT = ZR + 1408
PF = 0
WQ = 9 * KST
PST = 27 * KST
VF = PST + 11264
assert VF + 20480 <= TAB
KVT = 28 * KST
PQ = KVT + 6400
assert PQ + 20480 <= TAB
OST = PQ
EPI = PQ
HX = 0
NKL = 14
both = lambda r: [b * 18 + ks for ks in r for b in range(2)]
wo_addr = {}
grpR = both(range(14, 18)); grpA = both(range(0, 5)); grpC = both(range(5, 9)); grpB = both(range(9, 14))
for kk, b_ in zip(grpR, range(9, 17)): wo_addr[kk] = b_ * KST
for kk, b_ in zip(grpA, range(17, 27)): wo_addr[kk] = b_ * KST
for kk, b_ in zip(grpC, range(9, 17)): wo_addr[kk] = b_ * KST
for kk, b_ in zip(grpB, list(range(0, 9)) + [27]): wo_addr[kk] = b_ * KST
QX = 17 * KST
C1, CPF, CKV, CPS, CQA, CQB, CK4, CQX, CO, CE, CG = 0, 4, 8, 12, 16, 20, 24, 28, 32, 36, 40

WS_O = 4 << 20; WS_GATE = 10 << 20; WS_DBG = 16 << 20
WS_F1 = 11 << 20; WS_F2 = 12 << 20
sNON = 80
vNON = 12
BIG = 0x7FFF0000

SX, SW, SWS, SWOA, SWOB, SOUT, SDBG, SPHI, SGATE = 4, 8, 12, 16, 20, 24, 28, 32, 36
def srd(s): return f"s[{s}:{s+3}]"
sT, sG, sB, sHQ, sWV, sTG, sROLE, sK, sT0, sT1, sT2, sT3 = 40, 41, 42, 43, 44, 45, 46, 47, 48, 49, 50, 51
sMX, sMWA, sMQ2, sMQ = 52, 53, 54, 55
sROT, sTB, sCB, sRETRY = 56, 57, 58, 59
sL = 60
sPA = 64
sMASK = 88; sPEND = 90; sT4, sT5 = 91, 92; sTILE = 93
sPB = 96; sH144 = 97; sPW = 98; sTH = 99; sM2 = 100

vLANE, vN, vG = 1, 2, 3
vT = list(range(4, 16))
vXOFF, vWA, vWB, vWQ, vWO = 16, 17, 18, 19, 20
vRA = [21, 22, 23, 24, 25]
vRX = [26, 27]
vOST = [28, 29, 30]
vSTAMP = 31
vXOFF2 = 15
XB, ACC, RING = 32, 64, 192
KC = 224
cPS = [KC + i for i in range(3)]
cAF, cB01, cB2 = KC + 3, KC + 4, KC + 5
cGQ = [KC + 8, KC + 9, KC + 10]; cLQ = [KC + 11, KC + 12, KC + 13]
cSA, cSB = KC + 14, KC + 15
cSEL = [KC + 16, KC + 20]
cA2, cKV, cL16, cPFW, cW2 = KC + 24, KC + 25, KC + 26, KC + 27, KC + 28

a = Asm()
def stamp(idx):
    if not STAMPS: return
    a(f"s_memrealtime s[94:95]\ns_waitcnt lgkmcnt(0)\nv_writelane_b32 v{vSTAMP}, s94, {idx}")
def v(i, n=1): return f"v{i}" if n == 1 else f"v[{i}:{i+n-1}]"
class VM:
    def __init__(self, ops=()): self.ops = list(ops)
    def add(self, tag, n=1): self.ops += [tag] * n
    def wait_for(self, tag):
        idx = max(i for i, t in enumerate(self.ops) if t == tag)
        return min(63, len(self.ops) - 1 - idx)
vm = VM()
def interleave(main, fill, per=1):
    fill = list(fill)
    for m in main:
        a(m)
        for _ in range(per):
            if fill: a(fill.pop(0))
    for f in fill: a(f)
nl = [0]
def arrive(c, t0=vT[0], t1=vT[1]):
    a(f"""
  v_mov_b32 v{t0}, {CNT + c}
  v_mov_b32 v{t1}, 1
  s_mov_b64 exec, 1
  ds_add_u32 v{t0}, v{t1}
  s_mov_b64 exec, -1""")
def cwait(c, n, t0=vT[0], t1=vT[1]):
    nl[0] += 1; L = f"L_cw{nl[0]}"
    a(f"""
  v_mov_b32 v{t0}, {CNT + c}
  s_mov_b32 s{sRETRY}, 0
{L}:
  ds_read_b32 v{t1}, v{t0}
  s_waitcnt lgkmcnt(0)
  v_readfirstlane_b32 s{sT2}, v{t1}
  s_add_u32 s{sRETRY}, s{sRETRY}, 1
  s_cmp_gt_u32 s{sRETRY}, 2000000
  s_cbranch_scc1 {L}d
  s_cmp_ge_u32 s{sT2}, {n}
  s_cbranch_scc1 {L}d
  s_sleep 1
  s_branch {L}
{L}d:""")

a(f"""
  s_cmp_ge_u32 s2, 256
  s_cbranch_scc1 L_end
  s_load_dwordx16 s[64:79], s[0:1], 0
  s_load_dwordx8 s[80:87], s[0:1], 64
  s_getpc_b64 s[94:95]
L_pc:
  v_and_b32 v{vLANE}, 63, v0
  v_lshrrev_b32 v{vT[0]}, 6, v0
  s_lshr_b32 s{sT1}, s2, 3
  s_and_b32 s{sT0}, s2, 7
  v_readfirstlane_b32 s{sPW}, v{vT[0]}
  s_cmp_ge_u32 s{sPW}, 2
  s_cbranch_scc1 L_nopf
  s_lshl_b32 s{sT2}, s{sPW}, 5
  s_add_u32 s{sT2}, s{sT2}, s{sT1}
  s_lshl_b32 s{sT2}, s{sT2}, 10
  v_lshlrev_b32 v{vT[1]}, 4, v{vLANE}
  v_add_u32 v{vT[1]}, s{sT2}, v{vT[1]}
  v_min_u32 v{vT[1]}, L_end-L_pc, v{vT[1]}
  global_load_dword v{63}, v{vT[1]}, s[94:95]
L_nopf:
""")
if STAMPS: a(f"v_mov_b32 v{vSTAMP}, 0")
stamp(0)
a(f"""
  s_and_b32 s{sT}, s{sT0}, 1
  s_lshl_b32 s{sT}, s{sT}, 3
  s_and_b32 s{sT2}, s{sT1}, 7
  s_add_u32 s{sT}, s{sT}, s{sT2}
  s_lshr_b32 s{sG}, s{sT0}, 1
  s_lshl_b32 s{sG}, s{sG}, 2
  s_lshr_b32 s{sT3}, s{sT1}, 3
  s_add_u32 s{sG}, s{sG}, s{sT3}
  s_lshr_b32 s{sB}, s{sG}, 3
  s_and_b32 s{sHQ}, s{sG}, 7
  s_mul_i32 s{sT2}, s{sT2}, 9
  s_lshr_b32 s{sT2}, s{sT2}, 3
  s_mul_i32 s{sT3}, s{sT3}, 9
  s_lshr_b32 s{sT3}, s{sT3}, 2
  s_add_u32 s{sROT}, s{sT2}, s{sT3}
  s_sub_u32 s{sT2}, s{sROT}, 9
  s_cmp_ge_u32 s{sROT}, 9
  s_cselect_b32 s{sROT}, s{sT2}, s{sROT}
  s_lshl_b32 s{sROT}, s{sROT}, 1
  s_and_b32 s{sTB}, s{sT1}, 3
  s_lshl_b32 s{sT2}, s{sT0}, 2
  s_add_u32 s{sTB}, s{sTB}, s{sT2}
  s_lshr_b32 s{sCB}, s{sT1}, 2
  s_lshl_b32 s{sT2}, s{sPW}, 2
  s_lshr_b32 s{sWV}, 0x31647520, s{sT2}
  s_and_b32 s{sWV}, s{sWV}, 7
  s_and_b32 s{sTG}, s{sWV}, 3
  s_lshr_b32 s{sROLE}, s{sWV}, 2
  s_and_b32 s{sTH}, s{sPW}, 1
  v_and_b32 v{vN}, 15, v{vLANE}
  v_lshrrev_b32 v{vG}, 4, v{vLANE}
  v_mov_b32 v15, 0
  v_mov_b32 v16, 0
  v_mov_b32 v21, 0
  v_mov_b32 v{cGQ[0]}, 0
  v_mov_b32 v{cGQ[1]}, 0
  v_mov_b32 v{cGQ[2]}, 0
  v_mov_b32 v{cSA}, 0
  s_mul_i32 s{sH144}, s{sHQ}, 144
  s_mov_b32 s{SX+2}, {2048*1152}
  s_mov_b32 s{SX+3}, 0x00020000
  s_mov_b32 s{SW+2}, {576*3456}
  s_mov_b32 s{SW+3}, 0x00020000
  s_mov_b32 s{SPHI+2}, {32*648}
  s_mov_b32 s{SPHI+3}, 0x00020000
  s_mov_b32 s{SWS+2}, 0x10000000
  s_mov_b32 s{SWS+3}, 0x00020000
  s_mov_b32 s{SWOA+2}, {576*1152}
  s_mov_b32 s{SWOA+3}, 0x00020000
  s_mov_b32 s{SWOB+2}, {576*1152}
  s_mov_b32 s{SWOB+3}, 0x00020000
  s_mov_b32 s{SOUT+2}, {2048*1152}
  s_mov_b32 s{SOUT+3}, 0x00020000
  s_mov_b32 s{SDBG+2}, 256
  s_mov_b32 s{SDBG+3}, 0x00020000
  s_mov_b32 s{SGATE+2}, 1152
  s_mov_b32 s{SGATE+3}, 0x00020000
""")
def srd_bases():
    a(f"""
  s_cmp_eq_u32 s{sB}, 1
  s_waitcnt lgkmcnt(0)
  s_mov_b32 s{SX}, s64
  s_mov_b32 s{SX+1}, s65
  s_cselect_b32 s{SW}, s74, s66
  s_cselect_b32 s{SW+1}, s75, s67
  s_cselect_b32 s{SPHI}, s76, s68
  s_cselect_b32 s{SPHI+1}, s77, s69
  s_mov_b32 s{SGATE}, s80
  s_mov_b32 s{SGATE+1}, s81
""")
def srd_rest():
    a(f"""
  s_mov_b32 s{SWS}, s86
  s_mov_b32 s{SWS+1}, s87
  s_mov_b32 s{SWOA}, s70
  s_mov_b32 s{SWOA+1}, s71
  s_mov_b32 s{SWOB}, s78
  s_mov_b32 s{SWOB+1}, s79
  s_mov_b32 s{SOUT}, s82
  s_mov_b32 s{SOUT+1}, s83
  s_mov_b32 s{SDBG}, s84
  s_mov_b32 s{SDBG+1}, s85
""")
def dma_off(ci, nper):
    magic = {30: (0x8889, 20), 9: (0xE38F, 19)}[nper]
    t = vT
    a(f"""
  s_mov_b32 s{sT3}, {magic[0]}
  v_mul_u32_u24 v{t[3]}, s{sT3}, v{ci}
  v_lshrrev_b32 v{t[3]}, {magic[1]}, v{t[3]}
  v_mul_u32_u24 v{t[4]}, {nper}, v{t[3]}
  v_sub_u32 v{t[4]}, v{ci}, v{t[4]}
""")
    if nper == 30:
        a(f"v_and_b32 v{t[5]}, 1, v{t[3]}\nv_xor_b32 v{t[4]}, v{t[4]}, v{t[5]}")
    a(f"""
  v_bfe_u32 v{t[5]}, v{t[3]}, 2, 2
  v_lshlrev_b32 v{t[5]}, 3, v{t[5]}
  v_lshrrev_b32 v{t[6]}, 4, v{t[3]}
  v_lshl_add_u32 v{t[5]}, v{t[6]}, 2, v{t[5]}
  v_and_b32 v{t[6]}, 3, v{t[3]}
  v_add_u32 v{t[5]}, v{t[5]}, v{t[6]}
""")
    return t[5], t[4]
def w_offs():
    a(f"""
  v_lshrrev_b32 v{vT[3]}, 5, v{vLANE}
  s_lshl_b32 s{sT2}, s{sT4}, 1
  v_add_u32 v{vT[3]}, s{sT2}, v{vT[3]}
  v_and_b32 v{vT[4]}, 1, v{vT[3]}
  v_lshl_add_u32 v{vT[4]}, v{vT[3]}, 1, v{vT[4]}  ; swz16
  v_and_b32 v{vT[5]}, 31, v{vLANE}
  v_xor_b32 v{vT[4]}, v{vT[4]}, v{vT[5]}        ; unit
  v_mul_u32_u24 v{vT[8]}, 26, v{vT[4]}
  v_lshrrev_b32 v{vT[8]}, 8, v{vT[8]}           ; seg
  v_mul_u32_u24 v{vT[9]}, 10, v{vT[8]}
  v_sub_u32 v{vT[9]}, v{vT[4]}, v{vT[9]}        ; j16
  s_movk_i32 s{sT3}, 1152
  v_mul_u32_u24 v{vT[5]}, s{sT3}, v{vT[8]}
  v_lshl_add_u32 v{vT[5]}, v{vT[9]}, 4, v{vT[5]}
  v_add_u32 v{vT[5]}, s{sH144}, v{vT[5]}
  v_lshrrev_b32 v{vT[6]}, 2, v{vT[3]}
  v_lshlrev_b32 v{vT[6]}, 3, v{vT[6]}
  v_and_b32 v{vT[7]}, 3, v{vT[3]}
  v_add_u32 v{vT[6]}, v{vT[6]}, v{vT[7]}        ; k for j=0
  s_movk_i32 s{sT3}, 3456
  v_mad_u32_u24 v{vT[5]}, v{vT[6]}, s{sT3}, v{vT[5]}
  v_cmp_eq_u32 vcc, 9, v{vT[9]}
  v_cmp_lt_u32 s[94:95], 29, v{vT[4]}
  s_or_b64 vcc, vcc, s[94:95]
  v_mov_b32 v{vT[8]}, {BIG}
  v_cndmask_b32 v{vWL[0]}, v{vT[5]}, v{vT[8]}, vcc
""")
sK2 = 3
vWL = [21, 22, 23, 24]
def x_items(pr):
    sl = (pr % NXS) * XSL
    return f"""
  s_lshl_b32 s{sT2}, s{sK}, 6
  s_add_u32 s{sT3}, s{sT2}, {16*1152}
  s_add_u32 m0, s{sMX}, {sl}
  buffer_load_dwordx4 v{vXOFF}, {srd(SX)}, s{sT2} offen lds
  s_add_u32 m0, s{sMX}, {sl + 1024}
  buffer_load_dwordx4 v{vXOFF2}, {srd(SX)}, s{sT2} offen lds
  s_add_u32 m0, s{sMX}, {sl + 2048}
  buffer_load_dwordx4 v{vXOFF}, {srd(SX)}, s{sT3} offen lds
  s_add_u32 m0, s{sMX}, {sl + 3072}
  buffer_load_dwordx4 v{vXOFF2}, {srd(SX)}, s{sT3} offen lds
  s_add_u32 s{sK}, s{sK}, 2
  s_cmp_eq_u32 s{sK}, 18
  s_cselect_b32 s{sK}, 0, s{sK}"""
def w_items(ks):
    sl = ((ks + 1) % NWS) * WSL
    o = f"\n  s_mul_i32 s{sT3}, s{sK2}, {32*3456}"
    for j, dk in enumerate((0, 16, 4, 20)):
        if j: o += f"\n  s_add_u32 s{sT2}, s{sT3}, {dk*3456}"
        o += f"""
  s_add_u32 m0, s{sMWA}, {sl + 4096*j}
  buffer_load_dwordx4 v{vWL[0]}, {srd(SW)}, s{sT2 if j else sT3} offen lds"""
    return o + f"""
  s_add_u32 s{sK2}, s{sK2}, 1
  s_cmp_eq_u32 s{sK2}, 18
  s_cselect_b32 s{sK2}, 0, s{sK2}"""
def issue_x(pr): a(x_items(pr)); vm.add(('x', pr), 4)
def issue_w(ks): a(w_items(ks)); vm.add(('w', ks), 4)
SM = 32
a(f"s_cmp_lt_u32 s{sPW}, 4\ns_cbranch_scc1 L_pc0")
a(f"""
  s_and_b32 s{sT4}, s{sPW}, 3
  v_lshrrev_b32 v{vT[0]}, 3, v{vLANE}
  v_and_b32 v{vT[2]}, 7, v{vLANE}
  v_xor_b32 v{vT[2]}, v{vT[2]}, v{vG}
  s_lshl_b32 s{sT2}, s{sT}, 7
  s_lshl_b32 s{sT3}, s{sT4}, 5
  s_add_u32 s{sT2}, s{sT2}, s{sT3}
  v_add_u32 v{vT[0]}, s{sT2}, v{vT[0]}
  s_movk_i32 s{sT3}, 1152
  v_mul_lo_u32 v{vT[0]}, v{vT[0]}, s{sT3}
  v_lshl_add_u32 v{vXOFF}, v{vT[2]}, 4, v{vT[0]}
  v_xor_b32 v{vT[2]}, 4, v{vT[2]}
  v_lshl_add_u32 v{vXOFF2}, v{vT[2]}, 4, v{vT[0]}
  v_add_u32 v{vXOFF2}, {8*1152}, v{vXOFF2}
  s_lshl_b32 s{sMX}, s{sT4}, 12
  s_lshl_b32 s{sMWA}, s{sT4}, 10
  s_add_u32 s{sMWA}, s{sMWA}, {W0L}
  s_mov_b32 s{sK}, s{sROT}
  s_mov_b32 s{sK2}, s{sROT}
""")
w_offs()
srd_bases()
stamp(1)
issue_x(0); issue_w(0); issue_w(1)
NI0 = opt('ni0', 0)
if NI0: issue_x(1); issue_w(2); issue_w(3)
stamp(2)
a("s_branch L_pc1")
a("L_pc0:")
srd_bases()
stamp(1)
if opt('l2pf', 0):
    a(f"""
  v_lshrrev_b32 v{vT[0]}, 1, v{vLANE}
  s_movk_i32 s{sT3}, 3456
  v_mul_u32_u24 v{vT[0]}, s{sT3}, v{vT[0]}
  v_and_b32 v{vT[1]}, 1, v{vLANE}
  v_mul_u32_u24 v{vT[1]}, 140, v{vT[1]}
  v_add3_u32 v{vT[0]}, v{vT[0]}, v{vT[1]}, s{sH144}
  s_lshl_b32 s{sT2}, s{sT}, 7
  s_lshl_b32 s{sT3}, s{sTH}, 6
  s_add_u32 s{sT2}, s{sT2}, s{sT3}
  v_add_u32 v{vT[1]}, s{sT2}, v{vLANE}
  s_movk_i32 s{sT3}, 1152
  v_mul_lo_u32 v{vT[1]}, v{vT[1]}, s{sT3}
  s_lshr_b32 s{sT2}, s{sPW}, 1
  s_lshl_b32 s{sT2}, s{sT2}, 1
  s_add_u32 s{sT2}, s{sT2}, s{sROT}
  s_add_u32 s{sT2}, s{sT2}, 2
  s_sub_u32 s{sT3}, s{sT2}, 18
  s_cmp_ge_u32 s{sT2}, 18
  s_cselect_b32 s{sT2}, s{sT3}, s{sT2}
  s_lshl_b32 s{sT2}, s{sT2}, 6
  buffer_load_dword v{50}, v{vT[1]}, {srd(SX)}, s{sT2} offen
""")
    for rep in range(opt('l2pf', 0)):
        a(f"""
  s_add_u32 s{sT2}, s{sROT}, s{sPW}
  s_add_u32 s{sT2}, s{sT2}, {2 + 4*rep}
  s_sub_u32 s{sT3}, s{sT2}, 18
  s_cmp_ge_u32 s{sT2}, 18
  s_cselect_b32 s{sT2}, s{sT3}, s{sT2}
  s_mul_i32 s{sT2}, s{sT2}, {32*3456}
  buffer_load_dword v{51+3*rep}, v{vT[0]}, {srd(SW)}, s{sT2} offen
  buffer_load_dword v{52+3*rep}, v{vT[0]}, {srd(SW)}, s{sT2} offen offset:1152
  buffer_load_dword v{53+3*rep}, v{vT[0]}, {srd(SW)}, s{sT2} offen offset:2304
""")
a(f"s_mul_i32 s{sT2}, s{sHQ}, {4*648}\nv_lshlrev_b32 v{vT[0]}, 1, v0")
for j in range(6): a(f"buffer_load_ushort v{SM+j}, v{vT[0]}, {srd(SPHI)}, s{sT2} offen offset:{512*j}")
a(f"v_lshlrev_b32 v{vT[0]}, 3, v0\nbuffer_load_dwordx2 v[{SM+6}:{SM+7}], v{vT[0]}, {srd(SGATE)}, 0 offen")
for j in range(6):
    a(f"""
  v_add_u32 v{vT[5]}, {256*j}, v0
  s_mov_b32 s{sT3}, 0xCA46
  v_mul_u32_u24 v{vT[6]}, s{sT3}, v{vT[5]}
  v_lshrrev_b32 v{vT[6]}, 24, v{vT[6]}
  s_movk_i32 s{sT3}, 324
  v_mul_u32_u24 v{vT[7]}, s{sT3}, v{vT[6]}
  v_sub_u32 v{vT[7]}, v{vT[5]}, v{vT[7]}
  s_mov_b32 s{sT3}, 0xE38F
  v_mul_u32_u24 v{vT[8]}, s{sT3}, v{vT[7]}
  v_lshrrev_b32 v{vT[8]}, 20, v{vT[8]}
  v_mul_u32_u24 v{vT[9]}, 18, v{vT[8]}
  v_sub_u32 v{vT[9]}, v{vT[7]}, v{vT[9]}
  v_mul_u32_u24 v{vT[10]}, 20, v{vT[6]}
  v_add_u32 v{vT[10]}, v{vT[10]}, v{vT[9]}
  v_mul_u32_u24 v{vT[10]}, 48, v{vT[10]}
  v_and_b32 v{vT[6]}, 1, v{vT[6]}
  v_lshl_add_u32 v{vT[8]}, v{vT[6]}, 1, v{vT[8]}
  v_lshl_add_u32 v{vT[10]}, v{vT[8]}, 1, v{vT[10]}
  v_add_u32 v{SM+8+j}, {T2}, v{vT[10]}
""")
a(f"""
  v_mov_b32 v{vT[0]}, 0
  v_mov_b32 v{vT[1]}, 0
  v_mov_b32 v{vT[2]}, 0
  v_mov_b32 v{vT[3]}, 0
  v_lshlrev_b32 v{vT[4]}, 4, v0
  v_add_u32 v{vT[4]}, {T2}, v{vT[4]}
  v_cmp_gt_u32 vcc, 240, v0
  s_and_saveexec_b64 s[94:95], vcc
  ds_write_b128 v{vT[4]}, v[{vT[0]}:{vT[3]}]
  v_cmp_gt_u32 vcc, 92, v0
  s_and_b64 exec, exec, vcc
  ds_write_b128 v{vT[4]}, v[{vT[0]}:{vT[3]}] offset:{ZR - T2}
  s_mov_b64 exec, -1
  v_mov_b32 v{SM+14}, v0
""")
stamp(2)
a("L_pc1:")
srd_rest()
a(f"""
  s_waitcnt lgkmcnt(0)
  s_barrier
  s_lshl_b32 s{sT2}, s{sWV}, 6
  v_add_u32 v0, s{sT2}, v{vLANE}
  s_or_b32 s{sT2}, s2, s{sPW}
  s_cmp_lg_u32 s{sT2}, 0
  s_cbranch_scc1 L_nononce
  s_memrealtime s[94:95]
  s_waitcnt lgkmcnt(0)
  s_or_b32 s94, s94, 1
  s_xor_b32 s95, s95, 0x5bd1e995
  v_mov_b32 v{vT[6]}, s94
  v_mov_b32 v{vT[7]}, s95
  v_mov_b32 v{vT[5]}, 0
  s_mov_b64 exec, 1
  buffer_store_dwordx2 v[{vT[6]}:{vT[7]}], v{vT[5]}, {srd(SDBG)}, 0 offen sc1
  s_mov_b64 exec, -1
L_nononce:
  s_lshl_b32 s{sTILE}, s{sT}, 3
  s_lshl_b32 s{sT2}, s{sTG}, 1
  s_add_u32 s{sTILE}, s{sTILE}, s{sT2}
  s_add_u32 s{sTILE}, s{sTILE}, s{sROLE}
  s_lshl_b32 s{sT2}, s{sB}, 7
  s_add_u32 s{sT2}, s{sT2}, s{sTILE}
  s_mul_i32 s{sT2}, s{sT2}, 18432
  s_add_u32 s{sT2}, s{sT2}, {WS_O}
  s_mul_i32 s{sT3}, s{sHQ}, 9
""")
for j in range(3):
    a(f"""
  v_add_u32 v{vT[0]}, {4*j}, v{vG}
  v_add_u32 v{vT[1]}, s{sT3}, v{vT[0]}
  v_lshlrev_b32 v{vT[1]}, 8, v{vT[1]}
  v_lshl_add_u32 v{vT[1]}, v{vN}, 4, v{vT[1]}
  v_add_u32 v{vOST[j]}, s{sT2}, v{vT[1]}
""")
a(f"""
  v_cmp_lt_u32 vcc, 0, v{vG}
  v_mov_b32 v{vT[0]}, {BIG}
  v_cndmask_b32 v{vOST[2]}, v{vOST[2]}, v{vT[0]}, vcc
  s_lshl_b32 s{sPB}, s{sG}, 4
  s_add_u32 s{sPB}, s{sPB}, s{sT}
  s_lshl_b32 s{sPB}, s{sPB}, 14
""")
a(f"s_mul_i32 s{sT2}, s{sTG}, 36\nv_add_u32 v{vT[7]}, s{sT2}, v{vLANE}\nv_min_u32 v{vT[7]}, 143, v{vT[7]}")
k, u = dma_off(vT[7], 9)
a(f"""
  s_movk_i32 s{sT3}, 1152
  v_mul_u32_u24 v{vT[8]}, s{sT3}, v{k}
  v_lshl_add_u32 v{vT[8]}, v{u}, 4, v{vT[8]}
  s_mul_i32 s{sT3}, s{sCB}, 144
  v_add_u32 v{vWO}, s{sT3}, v{vT[8]}
  s_mul_i32 s{sMQ}, s{sTG}, 576
  s_add_u32 s{sMQ2}, s{sMQ}, 2304
  s_mov_b32 s{sL}, 0x3fb8aa3b
  s_mov_b32 s{sL+1}, 0x3fb8aa3b
  s_mov_b32 s{sL+2}, 0xbfb8aa3b
  s_mov_b32 s{sL+3}, 0xbfb8aa3b
  s_mov_b32 s{sMASK}, 0x00f0000f
  s_mov_b32 s{sMASK+1}, 0xf0000f00
""")
def table_writes():
    for j in range(5): a(f"ds_write_b16 v{SM+8+j}, v{SM+j}")
    a(f"""
  v_cmp_gt_u32 vcc, {1296-1280}, v{SM+14}
  s_and_saveexec_b64 s[94:95], vcc
  ds_write_b16 v{SM+13}, v{SM+5}
  s_mov_b64 exec, -1
  v_lshlrev_b32 v{vT[5]}, 3, v{SM+14}
  v_add_u32 v{vT[5]}, {GW}, v{vT[5]}
  v_cmp_gt_u32 vcc, 144, v{SM+14}
  s_and_saveexec_b64 s[94:95], vcc
  ds_write_b64 v{vT[5]}, v[{SM+6}:{SM+7}]
  s_mov_b64 exec, -1
""")
EX36 = "s_mov_b32 exec_lo, -1\n  s_mov_b32 exec_hi, 0xf"
def wo_item2(kk, v2):
    if opt('nowo', 0): return "s_nop 0"
    addr = wo_addr[kk]
    s_ = SWOA if kk < 18 else SWOB
    return f"""
  s_mov_b32 s{sT3}, {(kk % 18) * 32 * 1152}
  s_add_u32 m0, s{sMQ}, {addr}
  {EX36}
  buffer_load_dwordx4 v{vWO}, {srd(s_)}, s{sT3} offen lds
  s_add_u32 m0, s{sMQ2}, {addr}
  buffer_load_dwordx4 v{v2}, {srd(s_)}, s{sT3} offen lds
  s_mov_b64 exec, -1"""
KOFF8 = [0, 4, 9, 13]
TILEV = [[0,1,2,3],[4,5,6,7],[8,9,10,11],[12,13,14,15],[10,11,16,17]]

NONLD = f"""
  v_mov_b32 v{vT[5]}, 0
  buffer_load_dwordx2 v[{vNON}:{vNON+1}], v{vT[5]}, {srd(SDBG)}, 0 offen sc1"""
def get_nonce():
    nl[0] += 1; L = f"L_non{nl[0]}"
    a(f"""
  v_readfirstlane_b32 s{sNON}, v{vNON}
  v_readfirstlane_b32 s{sNON+1}, v{vNON+1}
  s_mov_b32 s{sRETRY}, 0
  s_cmp_lg_u32 s{sNON}, 0
  s_cbranch_scc1 {L}d
{L}:
  v_mov_b32 v{vT[5]}, 0
  buffer_load_dwordx2 v[{vNON}:{vNON+1}], v{vT[5]}, {srd(SDBG)}, 0 offen sc1
  s_waitcnt vmcnt(0)
  v_readfirstlane_b32 s{sNON}, v{vNON}
  v_readfirstlane_b32 s{sNON+1}, v{vNON+1}
  s_add_u32 s{sRETRY}, s{sRETRY}, 1
  s_cmp_gt_u32 s{sRETRY}, 100000
  s_cbranch_scc1 {L}d
  s_cmp_eq_u32 s{sNON}, 0
  s_cbranch_scc1 {L}
{L}d:""")
def set_flag(soff):
    a(f"""
  v_mov_b32 v{vT[6]}, s{sNON}
  v_mov_b32 v{vT[7]}, s{sNON+1}
  v_mov_b32 v{vT[5]}, 0
  s_waitcnt vmcnt(0)
  s_mov_b64 exec, 1
  buffer_store_dwordx2 v[{vT[6]}:{vT[7]}], v{vT[5]}, {srd(SWS)}, s{soff} offen sc1
  s_mov_b64 exec, -1""")
def diag_addr(dst, rows, pitch, base):
    a(f"""
  v_mul_u32_u24 v{dst}, {rows}, v{vG}
  v_and_b32 v{vT[1]}, 3, v{vN}
  v_add_u32 v{dst}, v{dst}, v{vT[1]}
  v_mul_u32_u24 v{dst}, {pitch}, v{dst}
  v_add_u32 v{dst}, {base}, v{dst}
  v_mov_b32 v{vT[1]}, {ZR}
  v_cndmask_b32 v{dst}, v{vT[1]}, v{dst}, s[{sMASK}:{sMASK+1}]
""")
SEQ2 = [(t, c) for t in range(5) for c in range(3)]
def stage2_mfmas(P, af, kb):
    return [f"v_mfma_f32_16x16x32_bf16 {v(P+4*t,4)}, {v(af[j],4)}, {v(kb+4*c,4)}, {v(P+4*t,4) if c > 0 else '0'}" for j, (t, c) in enumerate(SEQ2)]
A2L = [64 + 4 * j for j in range(15)]
KB0, KB1 = 32, 44
P0, EPk, P1 = 124, 144, 164
PH0, PH1 = 184, 204
D0, D1 = 64, 124
def softmax_list(P, EP, ph):
    o = []
    mx, mn, mx2, mn2 = vT[0], vT[2], vT[4], vT[5]
    o += [f"v_max3_f32 v{mx}, v{P}, v{P+1}, v{P+2}", f"v_min3_f32 v{mn}, v{P}, v{P+1}, v{P+2}",
          f"v_max3_f32 v{mx2}, v{P+3}, v{P+4}, v{P+5}", f"v_min3_f32 v{mn2}, v{P+3}, v{P+4}, v{P+5}"]
    for i in range(6, 18, 4):
        o += [f"v_max3_f32 v{mx}, v{mx}, v{P+i}, v{P+i+1}", f"v_min3_f32 v{mn}, v{mn}, v{P+i}, v{P+i+1}",
              f"v_max3_f32 v{mx2}, v{mx2}, v{P+i+2}, v{P+i+3}", f"v_min3_f32 v{mn2}, v{mn2}, v{P+i+2}, v{P+i+3}"]
    o += [f"v_max_f32 v{mx}, v{mx}, v{mx2}", f"v_min_f32 v{mn}, v{mn}, v{mn2}",
          f"v_mul_f32 v{mx}, s{sL+2}, v{mx}", f"v_mul_f32 v{mn}, s{sL}, v{mn}"]
    for i in range(9):
        o += [f"v_pk_fma_f32 {v(EP+2*i,2)}, {v(P+2*i,2)}, s[{sL}:{sL+1}], {v(mx,2)} op_sel_hi:[1,1,0]",
              f"v_pk_fma_f32 {v(P+2*i,2)}, {v(P+2*i,2)}, s[{sL+2}:{sL+3}], {v(mn,2)} op_sel_hi:[1,1,0]"]
    for i in range(18): o += [f"v_exp_f32 v{EP+i}, v{EP+i}", f"v_exp_f32 v{P+i}, v{P+i}"]
    sp, sm = vT[4], vT[6]
    o += [f"v_pk_add_f32 {v(sp,2)}, {v(EP,2)}, {v(EP+2,2)}", f"v_pk_add_f32 {v(sm,2)}, {v(P,2)}, {v(P+2,2)}"]
    for i in range(2, 9):
        o += [f"v_pk_add_f32 {v(sp,2)}, {v(sp,2)}, {v(EP+2*i,2)}", f"v_pk_add_f32 {v(sm,2)}, {v(sm,2)}, {v(P+2*i,2)}"]
    o += [f"v_add_f32 v{sp}, v{sp}, v{sp+1}", f"v_add_f32 v{sm}, v{sm}, v{sm+1}", f"v_rcp_f32 v{sp}, v{sp}", f"v_rcp_f32 v{sm}, v{sm}"]
    for i in range(9):
        o += [f"v_pk_mul_f32 {v(EP+2*i,2)}, {v(EP+2*i,2)}, {v(sp,2)} op_sel_hi:[1,0]",
              f"v_pk_mul_f32 {v(P+2*i,2)}, {v(P+2*i,2)}, {v(sm,2)} op_sel_hi:[1,0]"]
    for i in range(9): o.append(f"v_cvt_pk_bf16_f32 v{ph+i}, v{EP+2*i}, v{EP+2*i+1}")
    for i in range(9): o.append(f"v_cvt_pk_bf16_f32 v{ph+9+i}, v{P+2*i}, v{P+2*i+1}")
    o += [f"v_mov_b32 v{ph+18}, 0", f"v_mov_b32 v{ph+19}, 0"]
    return o
def merge(valu, mf, every=4):
    mf = list(mf)
    for i, x in enumerate(valu):
        if mf and i % every == 0: a(mf.pop(0))
        a(x)
    for m in mf: a(m)

def num_and_store(phq, nb, out, kvaddr, reuse):
    seq = [(t, c) for t in range(5) for c in range(5)]
    for b0 in (0, 13):
        batch = seq[b0:b0+13]
        nbb = nb if reuse else nb + 4 * b0
        if b0 and reuse: a("s_nop 7")
        for j, (t, c) in enumerate(batch):
            a(f"ds_read_b128 {v(nbb+4*j,4)}, v{kvaddr} offset:{t*320 + c*16}")
        if b0 == 0:
            a(f"""
  s_mul_i32 s{sT2}, s{sWV}, 2304
  s_add_u32 s{sT2}, s{sT2}, {OST}
  s_movk_i32 s{sT3}, 144
  v_mul_u32_u24 v{vT[3]}, s{sT3}, v{vN}
  v_add_u32 v{vT[3]}, s{sT2}, v{vT[3]}
  v_mul_u32_u24 v{vT[4]}, 36, v{vG}
  v_add_u32 v{vT[4]}, v{vT[3]}, v{vT[4]}
  v_lshl_add_u32 v{vT[2]}, v{vG}, 4, v{vT[3]}
  s_lshl_b32 s{sT2}, s{sTILE}, 7
  s_lshl_b32 s{sT3}, s{sG}, 3
  s_add_u32 s{sT2}, s{sT2}, s{sT3}
  s_add_u32 s{sT0}, s{sT2}, {WS_F2}
""")
        for j, (t, c) in enumerate(batch):
            a(f"s_waitcnt lgkmcnt({len(batch)-1-j})")
            if b0 == 0 and j == 0: a("s_barrier")
            cc = v(out + 4*t, 4) if c > 0 else '0'
            a(f"v_mfma_f32_16x16x32_bf16 {v(out+4*t,4)}, {v(nbb+4*j,4)}, {v(phq+4*c,4)}, {cc}")
    a(f"v_add_f32 v{vT[0]}, 0x358637bd, v{out+18}\nv_rcp_f32 v{vT[0]}, v{vT[0]}")
    for i in range(9): a(f"v_pk_mul_f32 {v(out+2*i,2)}, {v(out+2*i,2)}, {v(vT[0],2)} op_sel_hi:[1,0]")
    for i in range(9): a(f"v_cvt_pk_bf16_f32 v{out+20+i}, v{out+2*i}, v{out+2*i+1}")
    stamp(24)
    for i in range(0, 8, 2):
        a(f"ds_write2_b32 v{vT[4]}, v{out+20+i}, v{out+21+i} offset0:{i} offset1:{i+1}")
    a(f"ds_write_b32 v{vT[4]}, v{out+28} offset:32")
    a("s_waitcnt lgkmcnt(0)")
    for j in range(3): a(f"ds_read_b128 {v(out+4*j,4)}, v{vT[2]} offset:{64*j}")
    for j in range(3):
        a(f"s_waitcnt lgkmcnt({2-j})\nbuffer_store_dwordx4 {v(out+4*j,4)}, v{vOST[j]}, {srd(SWS)}, 0 offen sc1")
    stamp(25)
    set_flag(sT0)
    stamp(10)
def tr_base(dst):
    a(f"""
  v_bfe_u32 v{vT[3]}, v{vLANE}, 2, 2
  v_lshl_add_u32 v{vT[1]}, v{vG}, 2, v{vT[3]}
  v_and_b32 v{vT[2]}, 3, v{vLANE}
  s_movk_i32 s{sT3}, 144
  v_mul_u32_u24 v{vT[1]}, s{sT3}, v{vT[1]}
  v_lshl_add_u32 v{dst}, v{vT[2]}, 3, v{vT[1]}
""")
def pc_setup():
    a(f"""
  s_lshr_b32 s{sT0}, s{sTG}, 1
  s_and_b32 s{sT1}, s{sTG}, 1
  s_lshl_b32 s{sT2}, s{sTB}, 2
  s_lshl_b32 s{sT3}, s{sT1}, 1
  s_add_u32 s{sT2}, s{sT2}, s{sT3}
  s_lshl_b32 s{sT3}, s{sT0}, 7
  s_add_u32 s{sT3}, s{sT3}, s{sT2}
  s_mul_i32 s{sT5}, s{sT3}, 18432
  s_add_u32 s{sT5}, s{sT5}, {WS_O}
  s_add_u32 s{sT4}, s{sT5}, 18432
  v_lshlrev_b32 v{vT[0]}, 4, v{vLANE}
  v_add_u32 v{vT[1]}, 4096, v{vT[0]}
  v_add_u32 v{vT[2]}, 8192, v{vT[0]}
  v_add_u32 v{vT[3]}, 12288, v{vT[0]}
  v_add_u32 v{vT[4]}, 16384, v{vT[0]}
  s_lshl_b32 s{sT2}, s{sT2}, 6
  s_add_u32 s{sPB}, s{sT2}, {WS_GATE}
""")

vRA8 = [21, 22, 23, 24, 25, 19, 14, 10]
DEP = opt('dep', 6)
def pass1(role):
    steps = [('t', t) for t in range(5)] + ([('v', 0), ('v', 1), ('g', 0)] if role == 0 else [('v', 2), ('v', 3), ('v', 4)])
    a(f"""
  v_lshrrev_b32 v{vT[0]}, 1, v{vN}
  v_xor_b32 v{vT[0]}, v{vT[0]}, v{vG}
  v_lshlrev_b32 v{vT[0]}, 4, v{vT[0]}
  v_lshl_add_u32 v{vT[0]}, v{vN}, 7, v{vT[0]}
  s_lshl_b32 s{sT2}, s{sTH}, 13
  v_add_u32 v{vRX[0]}, s{sT2}, v{vT[0]}
  v_xor_b32 v{vRX[1]}, 64, v{vRX[0]}
  v_bfe_u32 v{vT[0]}, v{vLANE}, 2, 2
  v_lshl_add_u32 v{vT[1]}, v{vG}, 2, v{vT[0]}
  v_and_b32 v{vT[2]}, 3, v{vLANE}
  v_and_b32 v{vT[3]}, 1, v{vT[0]}
  v_lshlrev_b32 v{vT[3]}, 1, v{vT[3]}
  v_and_b32 v{vT[4]}, 7, v{vT[1]}
  v_lshl_add_u32 v{vT[3]}, v{vT[4]}, 2, v{vT[3]}
  v_lshlrev_b32 v{vT[4]}, 9, v{vT[1]}
  v_add_u32 v{vT[4]}, {W0L}, v{vT[4]}
  v_lshlrev_b32 v{vT[2]}, 3, v{vT[2]}
""")
    for i, (ty, t) in enumerate(steps):
        if ty == 'g':
            a(f"v_lshlrev_b32 v{vRA8[i]}, 4, v{vG}\nv_add_u32 v{vRA8[i]}, {GW}, v{vRA8[i]}\ns_mov_b32 s{sT5}, s{sROT}")
            continue
        units = [(20 if role == 0 else 0) + KOFF8[c] + t for c in range(4)] if ty == 't' else [40 + u for u in TILEV[t]]
        packed = sum(u << (8 * c) for c, u in enumerate(units))
        a(f"""
  s_mov_b32 s{sT3}, {packed}
  v_lshrrev_b32 v{vT[0]}, v{vT[2]}, s{sT3}
  v_and_b32 v{vT[0]}, 0xff, v{vT[0]}
  v_xor_b32 v{vT[0]}, v{vT[0]}, v{vT[3]}
  v_lshl_add_u32 v{vRA8[i]}, v{vT[0]}, 3, v{vT[4]}
""")
    base = [0]
    def setbase(sl):
        want = (sl // 3) * 3 * WSL
        out = []
        if want != base[0]:
            d = want - base[0]
            for i, (ty, t) in enumerate(steps):
                if ty == 'g': continue
                r = vRA8[i]
                out.append(f"v_add_u32 v{r}, {d}, v{r}" if d > 0 else f"v_subrev_u32 v{r}, {-d}, v{r}")
            base[0] = want
        return out
    def xregs(ks, tt): return XB + 16 * (ks & 1) + 4 * tt
    lds = []
    def wreads(st):
        ks, i = divmod(st, 8)
        ty, t = steps[i]
        pre = setbase((ks + 1) % NWS) if i == 0 else []
        off = ((ks + 1) % NWS) * WSL - base[0]
        fb = RING + 4 * (st % 8)
        if ty == 'g':
            pre = [(None, f"s_lshl_b32 s{sT4}, s{sT5}, 6\nv_add_u32 v{vT[7]}, s{sT4}, v{vRA8[i]}\ns_add_u32 s{sT5}, s{sT5}, 1\ns_cmp_eq_u32 s{sT5}, 18\ns_cselect_b32 s{sT5}, 0, s{sT5}")]
            return pre + [(st, f"ds_read_b128 {v(fb,4)}, v{vT[7]}")]
        pre = [(None, x_) for x_ in pre]
        return pre + [(st, f"ds_read_b64_tr_b16 {v(fb + 2*hh, 2)}, v{vRA8[i]} offset:{off + hh*8192}") for hh in range(2)]
    def xread(ks, tt):
        xo = ((ks // 2) % NXS) * XSL
        return (8 * ks, f"ds_read_b128 {v(xregs(ks, tt), 4)}, v{vRX[ks & 1]} offset:{xo + 2048*tt}")
    def emit(it):
        tag, txt = it
        if opt('noreads', 0) and tag is not None and tag >= 8: txt = "s_nop 0"
        a(txt)
        if tag is not None: lds.append(tag)
    def mfma(st, tt):
        ks, i = divmod(st, 8)
        ty, t = steps[i]
        fb = RING + 4 * (st % 8)
        acc = ACC + 16 * i + 4 * tt
        c = v(acc, 4) if ks > 0 else '0'
        A, B = (v(xregs(ks,tt),4), v(fb,4)) if ty == 'v' else (v(fb,4), v(xregs(ks,tt),4))
        if opt('nomfma', 0): return "s_nop 0"
        return f"v_mfma_f32_16x16x32_bf16 {v(acc,4)}, {A}, {B}, {c}"
    a("s_waitcnt vmcnt(0)")
    table_writes()
    a("s_waitcnt lgkmcnt(0)\ns_barrier")
    stamp(3)
    for tt in range(4): emit(xread(0, tt))
    for st in range(DEP):
        for it in wreads(st): emit(it)
    NST = 144
    fifo = []
    for st in range(NST):
        while any(t_ == st for t_, _ in fifo): emit(fifo.pop(0))
        idx = max(i for i, x_ in enumerate(lds) if x_ == st)
        a(f"s_waitcnt lgkmcnt({min(15, len(lds) - 1 - idx)})")
        if (st + DEP) % 8 == 0:
            while fifo: emit(fifo.pop(0))
            a("s_barrier")
        if st == 64: a(NONLD)
        nst = st + DEP
        if nst < NST:
            fifo += wreads(nst)
            j = nst % 8
            if j < 4: fifo.append(xread(nst // 8, j))
        for tt in range(4):
            a(mfma(st, tt))
            if fifo: emit(fifo.pop(0))
def loader():
    nW, nX = (4, 2) if NI0 else (2, 1)
    def need(ks): return min(vm.wait_for(('w', ks)), vm.wait_for(('x', ks // 2)))
    a(f"s_waitcnt vmcnt({need(0)})\ns_barrier")
    stamp(3)
    def refill(ks, maxw):
        nonlocal nW, nX
        c = 0
        while c < maxw:
            if nX < 9 and 2 * nX <= nW + 1 and 2 * (nX - NXS) + 1 <= ks: issue_x(nX); nX += 1
            if nW < 18 and nW - NWS <= ks - 1: issue_w(nW); nW += 1; c += 1
            else: break
        if nX < 9 and 2 * nX <= nW + 1 and 2 * (nX - NXS) + 1 <= ks: issue_x(nX); nX += 1
    if opt('norefill', 0):
        global w_items, x_items
        w_items = lambda ks: "s_nop 0"
        x_items = lambda pr: "s_nop 0"
    refill(-1, 2)
    for ks in range(18):
        if ks + 1 < 18: a(f"s_waitcnt vmcnt({need(ks + 1)})")
        a("s_barrier")
        refill(ks, 2)
        if ks == 8: a(NONLD); vm.add('non')
        if ks == opt('wopf', 12):
            a(f"""
  s_lshr_b32 s{sT2}, s2, 3
  s_mul_i32 s{sT2}, s{sT2}, 20736
  s_mul_i32 s{sT3}, s{sTH}, 10368
  s_add_u32 s{sT2}, s{sT2}, s{sT3}
  v_lshlrev_b32 v{vT[0]}, 7, v{vLANE}
  v_add_u32 v{vT[1]}, 8192, v{vT[0]}
  v_min_u32 v{vT[1]}, {80*128}, v{vT[1]}
  s_bitcmp1_b32 s{sPW}, 1
  s_cbranch_scc1 L_wopfB
  buffer_load_dword v{60}, v{vT[0]}, {srd(SWOA)}, s{sT2} offen
  buffer_load_dword v{61}, v{vT[1]}, {srd(SWOA)}, s{sT2} offen
  s_branch L_wopfD
L_wopfB:
  buffer_load_dword v{60}, v{vT[0]}, {srd(SWOB)}, s{sT2} offen
  buffer_load_dword v{61}, v{vT[1]}, {srd(SWOB)}, s{sT2} offen
L_wopfD:""")
            vm.add('wopf', 2)
    assert nW == 18 and nX == 9, (nW, nX)
def handoff(role):
    own = (0, 1) if role == 0 else (2, 3)
    snd = (2, 3) if role == 0 else (0, 1)
    SND = RING
    a(f"""
  s_mul_i32 s{sT2}, s{sTH}, 5120
  s_add_u32 s{sT2}, s{sT2}, {HX + role * 10240}
  v_lshlrev_b32 v{vT[0]}, 4, v{vLANE}
  v_add_u32 v{vT[2]}, s{sT2}, v{vT[0]}
  v_lshlrev_b32 v{vT[1]}, 3, v{vLANE}
  v_add_u32 v{vT[3]}, s{sT2}, v{vT[1]}
""")
    for j, tt in enumerate(snd):
        for t in range(5):
            s_ = ACC + 16 * t + 4 * tt
            a(f"v_cvt_pk_bf16_f32 v{SND+12*j+2*t}, v{s_}, v{s_+1}\nv_cvt_pk_bf16_f32 v{SND+12*j+2*t+1}, v{s_+2}, v{s_+3}")
        a(f"ds_write_b128 v{vT[2]}, {v(SND+12*j,4)} offset:{2560*j}\nds_write_b128 v{vT[2]}, {v(SND+12*j+4,4)} offset:{2560*j+1024}\nds_write_b64 v{vT[3]}, {v(SND+12*j+8,2)} offset:{2560*j+2048}")
    cts = [0, 1] if role == 0 else [2, 3, 4]
    a(f"s_mul_i32 s{sT2}, s{sTH}, 10240\ns_add_u32 s{sT2}, s{sT2}, {VF}\nv_add_u32 v{vT[4]}, s{sT2}, v{vT[0]}")
    if role == 1: a(f"v_cmp_eq_u32 vcc, 8, v{vN}\nv_mov_b32 v{vT[1]}, 0x3f803f80")
    for i, ct in enumerate(cts):
        for j in range(2):
            b_ = ACC + 16 * (5 + i) + 8 * j
            for q in range(4): a(f"v_cvt_pk_bf16_f32 v{b_+q}, v{b_+2*q}, v{b_+2*q+1}")
            if ct == 2:
                for q in range(4): a(f"v_cndmask_b32 v{b_+q}, v{b_+q}, v{vT[1]}, vcc")
            a(f"ds_write_b128 v{vT[4]}, {v(b_,4)} offset:{5120*j + ct*1024}")
    a("s_waitcnt lgkmcnt(0)")
    arrive(C1)
    for kb, tt in zip((KB0, KB1), own):
        for t in range(5):
            s_ = ACC + 16 * t + 4 * tt
            a(f"v_cvt_pk_bf16_f32 v{kb+2*t}, v{s_}, v{s_+1}\nv_cvt_pk_bf16_f32 v{kb+2*t+1}, v{s_+2}, v{s_+3}")
        a(f"v_mov_b32 v{kb+10}, 0\nv_mov_b32 v{kb+11}, 0")
def a2_reads(addr):
    for j, (t, c) in enumerate(SEQ2): a(f"ds_read_b128 {v(A2L[j],4)}, v{addr} offset:{t*192 + c*16}")


cA2q, cKVq = cA2, cKV
a(f"v_lshlrev_b32 v{cL16}, 4, v{vLANE}")
diag_addr(cA2, 20, 48, T2)
diag_addr(cKV, 19, 80, KVT)
a(f"v_add_u32 v{cW2}, {4*1152}, v{vWO}")
a(f"s_cmp_eq_u32 s{sROLE}, 1\ns_cbranch_scc1 L_noKc")
a(f"""
  s_and_b32 s{sT4}, s{sTG}, 1                 ; half
  s_lshr_b32 s{sT5}, s{sTG}, 1                ; c0
  s_lshl_b32 s{sT2}, s{sTG}, 10
  v_add_u32 v{cAF}, s{sT2}, v{cL16}
  s_mul_i32 s{sT2}, s{sT4}, 3072
  s_add_u32 s{sT2}, s{sT2}, {VF}
  v_add_u32 v{cB01}, s{sT2}, v{cL16}
  v_add_u32 v{cB2}, {VF + 2048}, v{cL16}
  s_lshl_b32 s{sT1}, s{sT4}, 1
  v_lshrrev_b32 v{vT[7]}, 1, v{vG}
  v_add_u32 v{vT[7]}, s{sT1}, v{vT[7]}        ; hr
  v_and_b32 v{vT[9]}, 1, v{vG}
  v_lshlrev_b32 v{vT[9]}, 4, v{vT[9]}
  s_lshl_b32 s{sT1}, s{sT5}, 5
  s_add_u32 s{sT1}, s{sT1}, {PST}
  v_add_u32 v{vT[9]}, s{sT1}, v{vT[9]}        ; PST + c0*32 + (g&1)*16
  v_cmp_lt_u32 s[{sM2}:{sM2+1}], 7, v{vN}
""")
for ci in range(3):
    if ci == 0: pre = f"s_mul_i32 s{sT2}, s{sT4}, 48\n  s_mov_b32 s{sT3}, 0"
    elif ci == 1: pre = f"s_mul_i32 s{sT2}, s{sT4}, 24\n  s_add_u32 s{sT2}, s{sT2}, 16\n  s_lshl_b32 s{sT3}, s{sT4}, 4"
    else: pre = f"s_mov_b32 s{sT2}, 32\n  s_movk_i32 s{sT3}, 200"
    a(f"""
  {pre}
  v_mov_b32 v{vT[4]}, s{sT3}
  v_cndmask_b32 v{vT[4]}, 0, v{vT[4]}, s[{sM2}:{sM2+1}]
  v_add3_u32 v{vT[4]}, v{vT[4]}, v{vN}, s{sT2}
  v_mul_u32_u24 v{vT[5]}, 57, v{vT[4]}
  v_lshrrev_b32 v{vT[5]}, 10, v{vT[5]}
  v_mul_u32_u24 v{vT[6]}, 18, v{vT[5]}
  v_sub_u32 v{vT[6]}, v{vT[4]}, v{vT[6]}
""")
    if ci == 2:
        a(f"""
  v_cmp_eq_u32 vcc, 240, v{vT[4]}
  v_cndmask_b32 v{vT[5]}, v{vT[5]}, v{vT[7]}, vcc
  v_cndmask_b32 v{vT[6]}, v{vT[6]}, 18, vcc
""")
    a(f"""
  v_mul_u32_u24 v{vT[8]}, 19, v{vT[7]}
  v_add_u32 v{vT[8]}, v{vT[8]}, v{vT[6]}
  s_movk_i32 s{sT2}, 144
  v_mad_u32_u24 v{vT[8]}, v{vT[8]}, s{sT2}, v{vT[9]}
  v_cmp_eq_u32 vcc, v{vT[5]}, v{vT[7]}
  v_mov_b32 v{vT[10]}, {PST + 10944}
  v_cndmask_b32 v{cPS[ci]}, v{vT[10]}, v{vT[8]}, vcc
""")
a(f"v_lshlrev_b32 v{cSA}, 3, v{vLANE}")
for j in range(3):
    a(f"""
  v_add_u32 v{vT[0]}, {256*j}, v0
  s_mov_b32 s{sT3}, 0xE38F
  v_mul_u32_u24 v{vT[1]}, s{sT3}, v{vT[0]}
  v_lshrrev_b32 v{vT[1]}, 19, v{vT[1]}
  v_mul_u32_u24 v{vT[2]}, 9, v{vT[1]}
  v_sub_u32 v{vT[2]}, v{vT[0]}, v{vT[2]}
  v_lshlrev_b32 v{cGQ[j]}, 4, v{vT[0]}
  v_mul_u32_u24 v{cLQ[j]}, 80, v{vT[1]}
  v_lshl_add_u32 v{cLQ[j]}, v{vT[2]}, 3, v{cLQ[j]}
  v_add_u32 v{cLQ[j]}, {KVT}, v{cLQ[j]}
""")
a(f"""
  v_cmp_gt_u32 vcc, {684-512}, v0
  v_mov_b32 v{vT[0]}, {BIG}
  v_cndmask_b32 v{cGQ[2]}, v{vT[0]}, v{cGQ[2]}, vcc
  v_lshrrev_b32 v{vT[2]}, 3, v{vN}
  v_and_b32 v{vT[1]}, 1, v{vN}
  v_lshlrev_b32 v{vT[1]}, 4, v{vT[1]}
  v_mov_b32 v{vT[3]}, 0x3f80
  v_lshlrev_b32 v{vT[3]}, v{vT[1]}, v{vT[3]}
  v_bfe_u32 v{vT[1]}, v{vN}, 1, 2
  v_lshl_add_u32 v{vT[1]}, v{vT[2]}, 2, v{vT[1]}
  v_and_b32 v{vT[2]}, 1, v{vG}
  v_lshlrev_b32 v{vT[2]}, 2, v{vT[2]}
  v_sub_u32 v{vT[1]}, v{vT[1]}, v{vT[2]}
  v_lshrrev_b32 v{vT[2]}, 1, v{vG}
  v_lshl_add_u32 v{vT[1]}, v{vT[2]}, 4, v{vT[1]}
""")
for half in range(2):
    for j2 in range(4):
        a(f"v_cmp_eq_u32 vcc, {16*half + j2}, v{vT[1]}\nv_cndmask_b32 v{cSEL[half]+j2}, 0, v{vT[3]}, vcc")
a(f"""
  s_mul_i32 s{sT2}, s{sTG}, 10240
  v_add_u32 v{cPFW}, s{sT2}, v{cL16}
""")

a("L_noKc:")
a(f"s_cmp_ge_u32 s{sPW}, 4\ns_cbranch_scc1 L_loader")
a(f"s_cmp_eq_u32 s{sROLE}, 1\ns_cbranch_scc1 L_qcomp")
pass1(0)
a("s_setprio 3")
stamp(4)
handoff(0)
a2_reads(cA2)
a(f"""
  v_cmp_eq_u32 vcc, 1, v{vG}
  v_cndmask_b32 v{vT[0]}, v{ACC+112}, v{ACC+116}, vcc
  v_cmp_eq_u32 vcc, 2, v{vG}
  v_cndmask_b32 v{vT[0]}, v{vT[0]}, v{ACC+120}, vcc
  v_cmp_eq_u32 vcc, 3, v{vG}
  v_cndmask_b32 v{vT[0]}, v{vT[0]}, v{ACC+124}, vcc
  v_lshlrev_b32 v{vT[2]}, 2, v{vLANE}
  s_lshl_b32 s{sT2}, s{sT}, 9
  s_lshl_b32 s{sT3}, s{sTH}, 8
  s_add_u32 s{sT2}, s{sT2}, s{sT3}
  s_add_u32 s{sT2}, s{sT2}, {WS_GATE}
  s_cmp_eq_u32 s{sG}, 0
  s_cselect_b32 s{sT2}, s{sT2}, {BIG}
  s_waitcnt vmcnt(0)
  buffer_store_dword v{vT[0]}, v{vT[2]}, {srd(SWS)}, s{sT2} offen sc1
""")
get_nonce()
a("s_branch L_kpost")
a("L_qcomp:")
pass1(1)
stamp(4)
handoff(1)
a2_reads(cA2)
a("s_waitcnt vmcnt(0)")
get_nonce()
a("s_branch L_qpost")
a("L_loader:")
loader()
a2_reads(cA2)
get_nonce()
stamp(4)
a(f"""
  s_mul_i32 s{sT3}, s{sTH}, 5120
  s_mul_i32 s{sT4}, s{sROLE}, 10240
  s_add_u32 s{sT3}, s{sT3}, s{sT4}
  v_add_u32 v{vT[2]}, s{sT3}, v{cL16}
  v_lshlrev_b32 v{vT[3]}, 3, v{vLANE}
  v_add_u32 v{vT[3]}, s{sT3}, v{vT[3]}
  s_cmp_eq_u32 s{sROLE}, 1
  s_cbranch_scc1 L_lq
  s_setprio 3
L_lq:
""")
cwait(C1, 4)
for j, kb in enumerate((KB0, KB1)):
    a(f"ds_read_b128 {v(kb,4)}, v{vT[2]} offset:{HX+2560*j}\nds_read_b128 {v(kb+4,4)}, v{vT[2]} offset:{HX+2560*j+1024}\nds_read_b64 {v(kb+8,2)}, v{vT[3]} offset:{HX+2560*j+2048}")
    a(f"v_mov_b32 v{kb+10}, 0\nv_mov_b32 v{kb+11}, 0")
a("s_waitcnt lgkmcnt(0)")
arrive(C1)
a(f"s_cmp_eq_u32 s{sROLE}, 1\ns_cbranch_scc1 L_qpost")
a("L_kpost:")
a("s_waitcnt lgkmcnt(0)")
stamp(17)
for m in stage2_mfmas(P0, A2L, KB0): a(m)
merge(softmax_list(P0, EPk, PH0), stage2_mfmas(P1, A2L, KB1), every=3)
stamp(18)
tr0 = [f"v_mfma_f32_16x16x32_bf16 {v(D0+4*(2*c+h),4)}, {v(PH0+4*c,4)}, {v(cSEL[h],4)}, 0" for c in range(5) for h in range(2)]
merge(softmax_list(P1, EPk, PH1), tr0, every=4)
stamp(19)
for c in range(5):
    for h in range(2):
        a(f"v_mfma_f32_16x16x32_bf16 {v(D1+4*(2*c+h),4)}, {v(PH1+4*c,4)}, {v(cSEL[h],4)}, 0")
for rt in range(10):
    d = D0 + 4 * rt
    a(f"v_cvt_pk_bf16_f32 v{d}, v{d}, v{d+1}\nv_cvt_pk_bf16_f32 v{d+1}, v{d+2}, v{d+3}")
cwait(C1, 8)
for rt in range(10):
    d = D0 + 4 * rt; e = D1 + 4 * rt
    a(f"v_cvt_pk_bf16_f32 v{d+2}, v{e}, v{e+1}\nv_cvt_pk_bf16_f32 v{d+3}, v{e+2}, v{e+3}")
    a(f"ds_write_b128 v{cPFW}, {v(d,4)} offset:{PF + rt*1024}")
a("s_waitcnt lgkmcnt(0)")
stamp(20)
arrive(CPF)
cwait(CPF, 4)
stamp(5)
KV = 160
BF = 32
AFR = 80
for ci in range(3):
    for tg in range(4):
        if ci == 0: a(f"ds_read_b128 {v(AFR+4*tg,4)}, v{cAF} offset:{tg*10240}")
        ad, of = (cB01, ci * 1024) if ci < 2 else (cB2, 0)
        a(f"ds_read_b128 {v(BF+16*ci+4*tg,4)}, v{ad} offset:{of + tg*5120}")
def kv_mf(j, ci):
    acc = KV + 4 * (3 * j + ci)
    return [f"v_mfma_f32_16x16x32_bf16 {v(acc,4)}, {v(AFR+16*j+4*tg,4)}, {v(BF+16*ci+4*tg,4)}, {v(acc,4) if tg else '0'}" for tg in range(4)]
a("s_waitcnt lgkmcnt(8)")
for tg in range(4): a(f"ds_read_b128 {v(AFR+16+4*tg,4)}, v{cAF} offset:{4096 + tg*10240}")
for m in kv_mf(0, 0): a(m)
a("s_waitcnt lgkmcnt(8)")
for tg in range(4): a(f"ds_read_b128 {v(AFR+32+4*tg,4)}, v{cAF} offset:{8192 + tg*10240}")
for m in kv_mf(0, 1): a(m)
a("s_waitcnt lgkmcnt(8)")
for m in kv_mf(0, 2): a(m)
a("s_waitcnt lgkmcnt(4)")
for ci in range(3):
    for m in kv_mf(1, ci): a(m)
for ci in range(3): a(f"ds_write_b128 v{cPS[ci]}, {v(KV+4*ci,4)}")
a(f"s_waitcnt lgkmcnt(3)\ns_cmp_ge_u32 s{sTG}, 2\ns_cbranch_scc1 L_kvskip")
for ci in range(3):
    for m in kv_mf(2, ci): a(m)
a("s_mov_b32 exec_lo, 0xffff\ns_mov_b32 exec_hi, 0xffff")
for ci in range(3): a(f"ds_write_b128 v{cPS[ci]}, {v(KV+24+4*ci,4)} offset:128")
a("s_mov_b64 exec, -1\nL_kvskip:")
for ci in range(3): a(f"ds_write_b128 v{cPS[ci]}, {v(KV+12+4*ci,4)} offset:64")
a(f"""
  s_lshl_b32 s{sT4}, s{sG}, 9
  s_add_u32 s{sT4}, s{sT4}, {WS_F1}
  s_lshl_b32 s{sT0}, s{sT}, 5
  s_lshl_b32 s{sT3}, s{sTG}, 3
  s_add_u32 s{sT0}, s{sT0}, s{sT3}
  s_add_u32 s{sT0}, s{sT0}, s{sT4}
  v_lshlrev_b32 v{vT[4]}, 4, v0
  v_add_u32 v{vT[4]}, {PST}, v{vT[4]}
  s_waitcnt lgkmcnt(0)
""")
stamp(21)
arrive(CKV)
cwait(CKV, 4)
stamp(22)
for j in range(3): a(f"ds_read_b128 {v(32+4*j,4)}, v{vT[4]} offset:{4096*j}")
for j in range(3):
    a(f"s_waitcnt lgkmcnt({2-j})\nbuffer_store_dwordx4 {v(32+4*j,4)}, v{cGQ[j]}, {srd(SWS)}, s{sPB} offen sc1")
stamp(23)
set_flag(sT0)
arrive(CPS)
stamp(6)
def poll_all(lab, soff, addr, cnt):
    a(f"""
  s_cmp_lg_u32 s{sWV}, 0
  s_cbranch_scc1 {lab}_w
  s_mov_b32 s{sRETRY}, 0
{lab}:
  buffer_load_dwordx2 v[{vT[6]}:{vT[7]}], v{addr}, {srd(SWS)}, s{soff} offen sc1
  s_waitcnt vmcnt(0)
  v_cmp_ne_u32 vcc, s{sNON}, v{vT[6]}
  v_cmp_ne_u32 s[{sM2}:{sM2+1}], s{sNON+1}, v{vT[7]}
  s_or_b64 vcc, vcc, s[{sM2}:{sM2+1}]
  s_add_u32 s{sRETRY}, s{sRETRY}, 1
  s_cmp_gt_u32 s{sRETRY}, 40000
  s_cbranch_scc1 {lab}_d
  s_cmp_eq_u64 vcc, 0
  s_cbranch_scc1 {lab}_d
  s_sleep 1
  s_branch {lab}
{lab}_d:""")
    arrive(cnt, vT[6], vT[7])
    a(f"{lab}_w:")
    cwait(cnt, 1, vT[6], vT[7])
PB = 32
LDF = '' if opt('plain', 1) else ' sc1'
a(f"""
  s_lshl_b32 s{sT5}, s{sG}, 18
  s_mov_b32 s64, 0x11111111
  s_mov_b32 s65, 0x11111111
  s_mov_b32 s{sRETRY}, 0
  v_mov_b32 v{vT[4]}, {CNT + CG}
  s_setprio 0
L_gloop:
  s_cmp_lg_u32 s{sWV}, 0
  s_cbranch_scc1 L_gread
  buffer_load_dwordx2 v[{vT[6]}:{vT[7]}], v{cSA}, {srd(SWS)}, s{sT4} offen sc1
  s_waitcnt vmcnt(0)
  v_cmp_eq_u32 vcc, s{sNON}, v{vT[6]}
  v_cmp_eq_u32 s[{sM2}:{sM2+1}], s{sNON+1}, v{vT[7]}
  s_and_b64 vcc, vcc, s[{sM2}:{sM2+1}]
  s_lshr_b64 s[{sM2}:{sM2+1}], vcc, 1
  s_and_b64 vcc, vcc, s[{sM2}:{sM2+1}]
  s_lshr_b64 s[{sM2}:{sM2+1}], vcc, 2
  s_and_b64 vcc, vcc, s[{sM2}:{sM2+1}]
  v_mov_b32 v{vT[6]}, vcc_lo
  v_mov_b32 v{vT[7]}, vcc_hi
  ds_write_b64 v{vT[4]}, v[{vT[6]}:{vT[7]}]
L_gread:
  ds_read_b64 v[{vT[6]}:{vT[7]}], v{vT[4]}
  s_waitcnt lgkmcnt(0)
  v_readfirstlane_b32 s{sM2}, v{vT[6]}
  v_readfirstlane_b32 s{sM2+1}, v{vT[7]}
  s_add_u32 s{sRETRY}, s{sRETRY}, 1
  s_cmp_gt_u32 s{sRETRY}, 400000
  s_cbranch_scc1 L_gdone
  s_and_b64 s[{sM2}:{sM2+1}], s[{sM2}:{sM2+1}], s[64:65]
  s_cbranch_scc1 L_gnew
  s_sleep 2
  s_branch L_gloop
L_gnew:
  s_andn2_b64 s[64:65], s[64:65], s[{sM2}:{sM2+1}]
""")
for p in range(16):
    lab = f"L_gl{p}"
    a(f"s_bitcmp1_b64 s[{sM2}:{sM2+1}], {4*p}\ns_cbranch_scc0 {lab}")
    a(f"s_add_u32 s{sT2}, s{sT5}, {p*16384}")
    for j in range(3):
        a(f"buffer_load_dwordx4 {v(PB+12*p+4*j,4)}, v{cGQ[j]}, {srd(SWS)}, s{sT2} offen{LDF}")
    a(f"{lab}:")
a(f"""
  s_cmp_lg_u64 s[64:65], 0
  s_cbranch_scc1 L_gloop
L_gdone:
  s_setprio 3
""")
stamp(7)
a("s_waitcnt vmcnt(0)")
stamp(8)
for p in range(1, 16):
    for q in range(0, 12, 2):
        a(f"v_pk_add_f32 {v(PB+q,2)}, {v(PB+q,2)}, {v(PB+12*p+q,2)}")
for j in range(3):
    r = PB + 4 * j
    a(f"v_cvt_pk_bf16_f32 v{r}, v{r}, v{r+1}\nv_cvt_pk_bf16_f32 v{r+1}, v{r+2}, v{r+3}")
a(f"ds_write_b64 v{cLQ[0]}, {v(PB,2)}\nds_write_b64 v{cLQ[1]}, {v(PB+4,2)}")
a(f"""
  v_cmp_gt_u32 vcc, {684-512}, v0
  s_and_saveexec_b64 s[94:95], vcc
  ds_write_b64 v{cLQ[2]}, {v(PB+8,2)}
  s_mov_b64 exec, -1
  v_mul_u32_u24 v{vT[0]}, 80, v0
  v_add_u32 v{vT[0]}, {KVT+72}, v{vT[0]}
  v_mov_b32 v{vT[2]}, 0
  v_mov_b32 v{vT[3]}, 0
  v_cmp_gt_u32 vcc, 76, v0
  s_and_saveexec_b64 s[94:95], vcc
  ds_write_b64 v{vT[0]}, v[{vT[2]}:{vT[3]}]
  s_mov_b64 exec, -1
  s_mul_i32 s{sT2}, s{sTG}, 5120
  s_add_u32 s{sT2}, s{sT2}, {PQ}
  v_add_u32 v{vT[0]}, s{sT2}, v{cL16}
  v_bfe_u32 v{vT[3]}, v{vLANE}, 2, 2
  v_lshl_add_u32 v{vT[1]}, v{vG}, 2, v{vT[3]}
  v_and_b32 v{vT[2]}, 3, v{vLANE}
  s_movk_i32 s{sT3}, 144
  v_mul_u32_u24 v{vT[1]}, s{sT3}, v{vT[1]}
  v_lshl_add_u32 v{vRA[0]}, v{vT[2]}, 3, v{vT[1]}
  s_waitcnt lgkmcnt(0)
  s_barrier
""")
stamp(9)
KPHQ = 180; KOUT = 136; KNB = 32
for c in range(5): a(f"ds_read_b128 {v(KPHQ+4*c,4)}, v{vT[0]} offset:{c*1024}")
num_and_store(KPHQ, KNB, KOUT, cKV, False)
OF = 32
FB = 144; NFB = 8
CACC = 176
pc_setup()
a(f"""
  v_lshlrev_b32 v{vT[5]}, 2, v{vN}
  v_lshlrev_b32 v{vT[9]}, 3, v{vLANE}
  s_lshl_b32 s{sT3}, s{sTB}, 9
  s_add_u32 s{sPEND}, s{sT3}, {WS_F2}
  v_add_u32 v{vRA[1]}, 65536, v{vRA[0]}
  s_barrier
""")
stamp(27)
a("s_setprio 1")
poll_all("L_opoll", sPEND, vT[9], CO)
a(f"""
  buffer_load_dword v{vT[6]}, v{vT[5]}, {srd(SWS)}, s{sPB} offen{LDF}
  buffer_load_dword v{vT[7]}, v{vT[5]}, {srd(SWS)}, s{sPB} offen offset:64{LDF}
""")
stamp(11)
for ks in range(NKL):
    for tt in range(2):
        a(f"buffer_load_dwordx4 {v(OF+8*ks+4*tt,4)}, v{vT[ks//4]}, {srd(SWS)}, s{sT5 if tt==0 else sT4} offen offset:{(ks%4)*1024}{LDF}")
stamp(26)
a(f"s_cmp_eq_u32 s{sT0}, 1\ns_cbranch_scc1 L_pc_b1")
def phaseC(b):
    seq = [(ks, t) for ks in range(NKL) for t in range(5)]
    def rd(i):
        ks, t = seq[i]
        ad = wo_addr[b * 18 + ks]
        return [f"ds_read_b64_tr_b16 {v(FB+4*(i%NFB)+2*hh,2)}, v{vRA[(ad + hh*2304 + 32*t) >> 16]} offset:{(ad + hh*2304 + 32*t) & 0xffff}" for hh in range(2)]
    DEPTH = 6
    for i in range(DEPTH):
        for x_ in rd(i): a(x_)
    for i, (ks, t) in enumerate(seq):
        w = []
        if t == 0: w.append(f"vmcnt({2*(NKL-1-ks)})")
        w.append(f"lgkmcnt({2*min(DEPTH-1, len(seq)-1-i)})")
        a("s_waitcnt " + " ".join(w))
        if ks == 5 and t == 0:
            arrive(CK4, vT[10], vT[11])
            a("s_waitcnt lgkmcnt(0)")
        nx = rd(i + DEPTH) if i + DEPTH < len(seq) else []
        for tt in range(2):
            acc = CACC + 20 * tt + 4 * t
            a(f"v_mfma_f32_16x16x32_bf16 {v(acc,4)}, {v(FB+4*(i%NFB),4)}, {v(OF+8*ks+4*tt,4)}, {v(acc,4) if ks else '0'}")
            if nx: a(nx[tt])
phaseC(0)
a("s_branch L_pc_done")
a("L_pc_b1:")
phaseC(1)
a("L_pc_done:")
stamp(12)
cwait(CQX, 4, vT[10], vT[11])
a(f"s_mul_i32 s{sT2}, s{sTG}, 10240\ns_add_u32 s{sT2}, s{sT2}, {QX}\nv_add_u32 v{vT[1]}, s{sT2}, v{vT[0]}")
for i in range(10): a(f"ds_read_b128 {v(100+4*i,4)}, v{vT[1]} offset:{1024*i}")
for i in range(10):
    a(f"s_waitcnt lgkmcnt({9-i})")
    a(f"v_pk_add_f32 {v(CACC+4*i,2)}, {v(CACC+4*i,2)}, {v(100+4*i,2)}\nv_pk_add_f32 {v(CACC+4*i+2,2)}, {v(CACC+4*i+2,2)}, {v(102+4*i,2)}")
E0 = 32
for i in range(20):
    a(f"v_cvt_pk_bf16_f32 v{E0+i}, v{CACC+2*i}, v{CACC+2*i+1}")
a(f"""
  s_cmp_eq_u32 s{sT0}, 1
  s_cselect_b64 vcc, -1, 0
  v_cndmask_b32 v{vT[6]}, v{vT[6]}, v{vT[7]}, vcc
  v_cvt_pk_bf16_f32 v{vT[6]}, v{vT[6]}, v{vT[6]}
  v_lshlrev_b32 v{vT[6]}, 16, v{vT[6]}
  v_mul_f32 v{vT[6]}, s{sL+2}, v{vT[6]}
  v_exp_f32 v{vT[6]}, v{vT[6]}
  v_add_f32 v{vT[6]}, 1.0, v{vT[6]}
  v_rcp_f32 v{vT[6]}, v{vT[6]}
  v_cvt_pk_bf16_f32 v{vT[6]}, v{vT[6]}, v{vT[6]}
  v_lshlrev_b32 v{vT[6]}, 16, v{vT[6]}
  v_sub_f32 v{vT[7]}, 1.0, v{vT[6]}
  v_cvt_pk_bf16_f32 v{vT[7]}, v{vT[7]}, v{vT[7]}
  v_lshlrev_b32 v{vT[7]}, 16, v{vT[7]}
  v_cndmask_b32 v{vT[8]}, v{vT[6]}, v{vT[7]}, vcc
  v_cndmask_b32 v{vT[10]}, v{vT[7]}, v{vT[6]}, vcc
""")
for i in range(10):
    a(f"v_cndmask_b32 v{E0+20+i}, v{E0+10+i}, v{E0+i}, vcc\nv_cndmask_b32 v{E0+32+i}, v{E0+i}, v{E0+10+i}, vcc")
a(f"""
  s_mul_i32 s{sT2}, s{sWV}, 3072
  v_add_u32 v{vT[1]}, s{sT2}, v{vT[0]}
  s_xor_b32 s{sT3}, s{sWV}, 2
  s_mul_i32 s{sT3}, s{sT3}, 3072
  v_add_u32 v{vT[2]}, s{sT3}, v{vT[0]}
  v_add_u32 v{vT[1]}, {EPI}, v{vT[1]}
  v_add_u32 v{vT[2]}, {EPI}, v{vT[2]}
  ds_write_b128 v{vT[1]}, {v(E0+20,4)}
  ds_write_b128 v{vT[1]}, {v(E0+24,4)} offset:1024
  ds_write_b64 v{vT[1]}, {v(E0+28,2)} offset:2048
  v_mov_b32 v{vT[5]}, {CNT+CE}
  v_mov_b32 v{vT[9]}, 1
  s_waitcnt lgkmcnt(0)
  s_mov_b64 exec, 1
  ds_add_u32 v{vT[5]}, v{vT[9]}
  s_mov_b64 exec, -1
  s_lshl_b32 s{sT2}, s{sTB}, 6
  s_lshl_b32 s{sT3}, s{sT1}, 5
  s_add_u32 s{sT2}, s{sT2}, s{sT3}
  s_lshl_b32 s{sT3}, s{sT0}, 4
  s_add_u32 s{sT2}, s{sT2}, s{sT3}
  v_add_u32 v{vT[3]}, s{sT2}, v{vN}
  s_movk_i32 s{sT3}, 1152
  v_mul_lo_u32 v{vT[3]}, v{vT[3]}, s{sT3}
  v_lshl_add_u32 v{vT[3]}, v{vG}, 3, v{vT[3]}
  s_mul_i32 s{sT3}, s{sCB}, 144
  v_add_u32 v{vT[3]}, s{sT3}, v{vT[3]}
  v_cmp_lt_u32 vcc, 1, v{vG}
  v_mov_b32 v{vT[4]}, {BIG}
  v_cndmask_b32 v{vT[4]}, v{vT[3]}, v{vT[4]}, vcc
""")
W0 = 80
for i in range(10):
    r = E0 + 32 + i
    a(f"""
  v_lshlrev_b32 v{W0+2*i}, 16, v{r}
  v_and_b32 v{W0+2*i+1}, 0xffff0000, v{r}
  v_pk_mul_f32 {v(W0+2*i,2)}, {v(W0+2*i,2)}, {v(vT[8],2)} op_sel_hi:[1,0]
  v_cvt_pk_bf16_f32 v{r}, v{W0+2*i}, v{W0+2*i+1}
  v_lshlrev_b32 v{W0+2*i}, 16, v{r}
  v_and_b32 v{W0+2*i+1}, 0xffff0000, v{r}
""")
cwait(CE, 4, vT[5], vT[9])
a(f"""
  ds_read_b128 {v(E0+20,4)}, v{vT[2]}
  ds_read_b128 {v(E0+24,4)}, v{vT[2]} offset:1024
  ds_read_b64 {v(E0+28,2)}, v{vT[2]} offset:2048
  s_waitcnt lgkmcnt(0)
""")
for t in range(5):
    for h in range(2):
        i = 2 * t + h
        r = E0 + 20 + i; w = W0 + 20 + 2 * (i & 1)
        a(f"""
  v_lshlrev_b32 v{w}, 16, v{r}
  v_and_b32 v{w+1}, 0xffff0000, v{r}
  v_pk_mul_f32 {v(w,2)}, {v(w,2)}, {v(vT[10],2)} op_sel_hi:[1,0]
  v_cvt_pk_bf16_f32 v{r}, v{w}, v{w+1}
  v_lshlrev_b32 v{w}, 16, v{r}
  v_and_b32 v{w+1}, 0xffff0000, v{r}
  v_pk_add_f32 {v(w,2)}, {v(w,2)}, {v(W0+2*i,2)}
  v_cvt_pk_bf16_f32 v{E0+i}, v{w}, v{w+1}
""")
    a(f"buffer_store_dwordx2 {v(E0+2*t,2)}, v{vT[3] if t < 4 else vT[4]}, {srd(SOUT)}, 0 offen offset:{32*t}")
stamp(13)
a("s_branch L_fin")

a("L_qpost:")
a("s_waitcnt lgkmcnt(0)")
for m in stage2_mfmas(P0, A2L, KB0): a(m)
for m in stage2_mfmas(P1, A2L, KB1): a(m)
cwait(C1, 4)
for kk in grpR + grpA: a(wo_item2(kk, cW2))
stamp(7)
QS = [32 + 4 * i for i in range(20)]
tr_base(vRA[0])
a(f"s_lshr_b32 s{sT3}, s{sTG}, 1\ns_mul_i32 s{sT3}, s{sT3}, {KST}\nv_add_u32 v{vRA[0]}, s{sT3}, v{vRA[0]}\nv_add_u32 v{vRA[1]}, 65536, v{vRA[0]}")
a(f"s_waitcnt vmcnt({2*len(grpA)})")
arrive(CQA); cwait(CQA, 4)
for j in range(4):
    for t in range(5):
        for hh in range(2):
            o = wo_addr[14 + j] + hh * 2304 + 32 * t
            assert wo_addr[18 + 14 + j] == wo_addr[14 + j] + KST
            a(f"ds_read_b64_tr_b16 {v(QS[5*j+t]+2*hh,2)}, v{vRA[o >> 16]} offset:{o & 0xffff}")
a("s_waitcnt lgkmcnt(0)")
arrive(CQB); cwait(CQB, 4)
for kk in grpC: a(wo_item2(kk, cW2))
for x in softmax_list(P0, EPk, PH0): a(x)
cwait(CPS, 4)
for kk in grpB: a(wo_item2(kk, cW2))
a(f"s_mul_i32 s{sT2}, s{sTG}, 5120\ns_add_u32 s{sT2}, s{sT2}, {PQ}\nv_add_u32 v{vT[8]}, s{sT2}, v{cL16}")
for c in range(5): a(f"ds_write_b128 v{vT[8]}, {v(PH0+4*c,4)} offset:{c*1024}")
for x in softmax_list(P1, EPk, PH1): a(x)
a("s_waitcnt lgkmcnt(0)")
stamp(8)
a("s_barrier")
stamp(9)
num_and_store(PH1, 112, 164, cKV, True)
pc_setup()
a("s_setprio 3")
a("s_barrier")
cwait(CO, 1, vT[10], vT[11])
for j in range(4):
    ks = 14 + j
    for tt in range(2):
        a(f"buffer_load_dwordx4 {v(112+8*j+4*tt,4)}, v{vT[ks//4]}, {srd(SWS)}, s{sT5 if tt==0 else sT4} offen offset:{(ks%4)*1024}{LDF}")
for j in range(4):
    a(f"s_waitcnt vmcnt({2*(3-j)})")
    for t in range(5):
        for tt in range(2):
            acc = 164 + 20 * tt + 4 * t
            a(f"v_mfma_f32_16x16x32_bf16 {v(acc,4)}, {v(QS[5*j+t],4)}, {v(112+8*j+4*tt,4)}, {v(acc,4) if j else '0'}")
cwait(CK4, 4, vT[10], vT[11])
a(f"s_mul_i32 s{sT2}, s{sTG}, 10240\ns_add_u32 s{sT2}, s{sT2}, {QX}\nv_add_u32 v{vT[1]}, s{sT2}, v{vT[0]}")
for i in range(10): a(f"ds_write_b128 v{vT[1]}, {v(164+4*i,4)} offset:{1024*i}")
a("s_waitcnt lgkmcnt(0)")
arrive(CQX, vT[10], vT[11])
a("L_fin:")
if STAMPS:
    a(f"""
  s_and_b32 s{sT2}, s{sWV}, 3
  s_cmp_lg_u32 s{sT2}, 0
  s_cbranch_scc1 L_end
  s_waitcnt vmcnt(0)
  s_memrealtime s[94:95]
  s_waitcnt lgkmcnt(0)
  v_writelane_b32 v{vSTAMP}, s94, 14
  s_getreg_b32 s94, hwreg(HW_REG_XCC_ID)
  s_getreg_b32 s95, hwreg(HW_REG_HW_ID)
  v_writelane_b32 v{vSTAMP}, s94, 15
  v_writelane_b32 v{vSTAMP}, s95, 16
  v_lshlrev_b32 v{vT[0]}, 2, v{vLANE}
  s_lshl_b32 s{sT2}, s2, 9
  s_lshl_b32 s{sT3}, s{sROLE}, 8
  s_add_u32 s{sT2}, s{sT2}, s{sT3}
  s_add_u32 s{sT2}, s{sT2}, {WS_DBG}
  buffer_store_dword v{vSTAMP}, v{vT[0]}, {srd(SWS)}, s{sT2} offen
""")
a("L_end:\n  s_endpgm")

hdr = open('cdna_kernels/' + NAME + '.s.ref').read().split('; Override launch')[0]
out = kernel_file(a.text(), "grid=(256,1,1) block=(512,1,1) lds=163840", 256, hdr_comment=hdr)
outp = [x for x in sys.argv[1:] if not x.startswith('--') and not x.startswith('o:')]
open(outp[0] if outp else 'k.s', 'w').write(out)
```

```python
import sys
from asmlib import *

STAMPS = '--stamps' in sys.argv
OPT = dict(x[2:].split('=') for x in sys.argv if x.startswith('o:'))
def opt(k, d): return type(d)(OPT.get(k, d))
NB0 = opt('nb0', 3)

XSL = 16384; NXS = 3
WSL = 16384; NWS = 6; W0L = NXS * XSL
assert W0L + NWS * WSL <= 156672
KST = 4608
TAB = 34 * KST
T2 = TAB
GW = TAB + 3840
ZR = GW + 1152
CNT = ZR + 1408
PF = 0
WQ = 9 * KST
PST = 27 * KST
VF = PST + 11264
assert VF + 20480 <= TAB
KVT = 28 * KST
PQ = KVT + 6400
assert PQ + 20480 <= TAB
OST = PQ
EPI = PQ
HX = 0
NKL = 14
both = lambda r: [b * 18 + ks for ks in r for b in range(2)]
wo_addr = {}
grpR = both(range(14, 18)); grpA = both(range(0, 5)); grpC = both(range(5, 9)); grpB = both(range(9, 14))
for kk, b_ in zip(grpR, range(9, 17)): wo_addr[kk] = b_ * KST
for kk, b_ in zip(grpA, range(17, 27)): wo_addr[kk] = b_ * KST
for kk, b_ in zip(grpC, range(9, 17)): wo_addr[kk] = b_ * KST
for kk, b_ in zip(grpB, list(range(0, 9)) + [27]): wo_addr[kk] = b_ * KST
QX = 17 * KST
C1, CPF, CKV, CPS, CQA, CQB, CK4, CQX, CO, CE, CG = 0, 4, 8, 12, 16, 20, 24, 28, 32, 36, 40

WS_O = 4 << 20; WS_GATE = 10 << 20; WS_DBG = 16 << 20
WS_F1 = 11 << 20; WS_F2 = 12 << 20
sNON = 80
vNON = 12
BIG = 0x7FFF0000

SX, SW, SWS, SWOA, SWOB, SOUT, SDBG, SPHI, SGATE = 4, 8, 12, 16, 20, 24, 28, 32, 36
def srd(s): return f"s[{s}:{s+3}]"
sT, sG, sB, sHQ, sWV, sTG, sROLE, sK, sT0, sT1, sT2, sT3 = 40, 41, 42, 43, 44, 45, 46, 47, 48, 49, 50, 51
sMX, sMWA, sMQ2, sMQ = 52, 53, 54, 55
sROT, sTB, sCB, sRETRY = 56, 57, 58, 59
sL = 60
sPA = 64
sMASK = 88; sPEND = 90; sT4, sT5 = 91, 92; sTILE = 93
sPB = 96; sH144 = 97; sPW = 98; sTH = 99; sM2 = 100

vLANE, vN, vG = 1, 2, 3
vT = list(range(4, 16))
vXOFF, vWA, vWB, vWQ, vWO = 16, 17, 18, 19, 20
vRA = [21, 22, 23, 24, 25]
vRX = [26, 27]
vOST = [28, 29, 30]
vSTAMP = 31
vXOFF2 = 15
XB, ACC, RING = 32, 64, 192
KC = 224
cPS = [KC + i for i in range(3)]
cAF, cB01, cB2 = KC + 3, KC + 4, KC + 5
cGQ = [KC + 8, KC + 9, KC + 10]; cLQ = [KC + 11, KC + 12, KC + 13]
cSA, cSB = KC + 14, KC + 15
cSEL = [KC + 16, KC + 20]
cA2, cKV, cL16, cPFW, cW2 = KC + 24, KC + 25, KC + 26, KC + 27, KC + 28

a = Asm()
def stamp(idx):
    if not STAMPS: return
    a(f"s_memrealtime s[94:95]\ns_waitcnt lgkmcnt(0)\nv_writelane_b32 v{vSTAMP}, s94, {idx}")
def v(i, n=1): return f"v{i}" if n == 1 else f"v[{i}:{i+n-1}]"
class VM:
    def __init__(self, ops=()): self.ops = list(ops)
    def add(self, tag, n=1): self.ops += [tag] * n
    def wait_for(self, tag):
        idx = max(i for i, t in enumerate(self.ops) if t == tag)
        return min(63, len(self.ops) - 1 - idx)
vm = VM()
def interleave(main, fill, per=1):
    fill = list(fill)
    for m in main:
        a(m)
        for _ in range(per):
            if fill: a(fill.pop(0))
    for f in fill: a(f)
nl = [0]
def arrive(c, t0=vT[0], t1=vT[1]):
    a(f"""
  v_mov_b32 v{t0}, {CNT + c}
  v_mov_b32 v{t1}, 1
  s_mov_b64 exec, 1
  ds_add_u32 v{t0}, v{t1}
  s_mov_b64 exec, -1""")
def cwait(c, n, t0=vT[0], t1=vT[1]):
    nl[0] += 1; L = f"L_cw{nl[0]}"
    a(f"""
  v_mov_b32 v{t0}, {CNT + c}
  s_mov_b32 s{sRETRY}, 0
{L}:
  ds_read_b32 v{t1}, v{t0}
  s_waitcnt lgkmcnt(0)
  v_readfirstlane_b32 s{sT2}, v{t1}
  s_add_u32 s{sRETRY}, s{sRETRY}, 1
  s_cmp_gt_u32 s{sRETRY}, 2000000
  s_cbranch_scc1 {L}d
  s_cmp_ge_u32 s{sT2}, {n}
  s_cbranch_scc1 {L}d
  s_sleep 1
  s_branch {L}
{L}d:""")

a(f"""
  s_cmp_ge_u32 s2, 256
  s_cbranch_scc1 L_end
  s_load_dwordx16 s[64:79], s[0:1], 0
  s_load_dwordx8 s[80:87], s[0:1], 64
  s_getpc_b64 s[94:95]
L_pc:
  v_and_b32 v{vLANE}, 63, v0
  v_lshrrev_b32 v{vT[0]}, 6, v0
  s_lshr_b32 s{sT1}, s2, 3
  s_and_b32 s{sT0}, s2, 7
  v_readfirstlane_b32 s{sPW}, v{vT[0]}
  s_cmp_ge_u32 s{sPW}, 2
  s_cbranch_scc1 L_nopf
  s_lshl_b32 s{sT2}, s{sPW}, 5
  s_add_u32 s{sT2}, s{sT2}, s{sT1}
  s_lshl_b32 s{sT2}, s{sT2}, 10
  v_lshlrev_b32 v{vT[1]}, 4, v{vLANE}
  v_add_u32 v{vT[1]}, s{sT2}, v{vT[1]}
  v_min_u32 v{vT[1]}, L_end-L_pc, v{vT[1]}
  global_load_dword v{63}, v{vT[1]}, s[94:95]
L_nopf:
""")
if STAMPS: a(f"v_mov_b32 v{vSTAMP}, 0")
stamp(0)
a(f"""
  s_and_b32 s{sT}, s{sT0}, 1
  s_lshl_b32 s{sT}, s{sT}, 3
  s_and_b32 s{sT2}, s{sT1}, 7
  s_add_u32 s{sT}, s{sT}, s{sT2}
  s_lshr_b32 s{sG}, s{sT0}, 1
  s_lshl_b32 s{sG}, s{sG}, 2
  s_lshr_b32 s{sT3}, s{sT1}, 3
  s_add_u32 s{sG}, s{sG}, s{sT3}
  s_lshr_b32 s{sB}, s{sG}, 3
  s_and_b32 s{sHQ}, s{sG}, 7
  s_mul_i32 s{sT2}, s{sT2}, 9
  s_lshr_b32 s{sT2}, s{sT2}, 3
  s_mul_i32 s{sT3}, s{sT3}, 9
  s_lshr_b32 s{sT3}, s{sT3}, 2
  s_add_u32 s{sROT}, s{sT2}, s{sT3}
  s_sub_u32 s{sT2}, s{sROT}, 9
  s_cmp_ge_u32 s{sROT}, 9
  s_cselect_b32 s{sROT}, s{sT2}, s{sROT}
  s_lshl_b32 s{sROT}, s{sROT}, 1
  s_and_b32 s{sTB}, s{sT1}, 3
  s_lshl_b32 s{sT2}, s{sT0}, 2
  s_add_u32 s{sTB}, s{sTB}, s{sT2}
  s_lshr_b32 s{sCB}, s{sT1}, 2
  s_lshl_b32 s{sT2}, s{sPW}, 2
  s_lshr_b32 s{sWV}, 0x31647520, s{sT2}
  s_and_b32 s{sWV}, s{sWV}, 7
  s_and_b32 s{sTG}, s{sWV}, 3
  s_lshr_b32 s{sROLE}, s{sWV}, 2
  s_and_b32 s{sTH}, s{sPW}, 1
  v_and_b32 v{vN}, 15, v{vLANE}
  v_lshrrev_b32 v{vG}, 4, v{vLANE}
  v_mov_b32 v15, 0
  v_mov_b32 v16, 0
  v_mov_b32 v21, 0
  v_mov_b32 v{cGQ[0]}, 0
  v_mov_b32 v{cGQ[1]}, 0
  v_mov_b32 v{cGQ[2]}, 0
  v_mov_b32 v{cSA}, 0
  s_mul_i32 s{sH144}, s{sHQ}, 144
  s_mov_b32 s{SX+2}, {2048*1152}
  s_mov_b32 s{SX+3}, 0x00020000
  s_mov_b32 s{SW+2}, {576*3456}
  s_mov_b32 s{SW+3}, 0x00020000
  s_mov_b32 s{SPHI+2}, {32*648}
  s_mov_b32 s{SPHI+3}, 0x00020000
  s_mov_b32 s{SWS+2}, 0x10000000
  s_mov_b32 s{SWS+3}, 0x00020000
  s_mov_b32 s{SWOA+2}, {576*1152}
  s_mov_b32 s{SWOA+3}, 0x00020000
  s_mov_b32 s{SWOB+2}, {576*1152}
  s_mov_b32 s{SWOB+3}, 0x00020000
  s_mov_b32 s{SOUT+2}, {2048*1152}
  s_mov_b32 s{SOUT+3}, 0x00020000
  s_mov_b32 s{SDBG+2}, 256
  s_mov_b32 s{SDBG+3}, 0x00020000
  s_mov_b32 s{SGATE+2}, 1152
  s_mov_b32 s{SGATE+3}, 0x00020000
""")
def srd_bases():
    a(f"""
  s_cmp_eq_u32 s{sB}, 1
  s_waitcnt lgkmcnt(0)
  s_mov_b32 s{SX}, s64
  s_mov_b32 s{SX+1}, s65
  s_cselect_b32 s{SW}, s74, s66
  s_cselect_b32 s{SW+1}, s75, s67
  s_cselect_b32 s{SPHI}, s76, s68
  s_cselect_b32 s{SPHI+1}, s77, s69
  s_mov_b32 s{SGATE}, s80
  s_mov_b32 s{SGATE+1}, s81
""")
def srd_rest():
    a(f"""
  s_mov_b32 s{SWS}, s86
  s_mov_b32 s{SWS+1}, s87
  s_mov_b32 s{SWOA}, s70
  s_mov_b32 s{SWOA+1}, s71
  s_mov_b32 s{SWOB}, s78
  s_mov_b32 s{SWOB+1}, s79
  s_mov_b32 s{SOUT}, s82
  s_mov_b32 s{SOUT+1}, s83
  s_mov_b32 s{SDBG}, s84
  s_mov_b32 s{SDBG+1}, s85
""")
def dma_off(ci, nper):
    magic = {30: (0x8889, 20), 9: (0xE38F, 19)}[nper]
    t = vT
    a(f"""
  s_mov_b32 s{sT3}, {magic[0]}
  v_mul_u32_u24 v{t[3]}, s{sT3}, v{ci}
  v_lshrrev_b32 v{t[3]}, {magic[1]}, v{t[3]}
  v_mul_u32_u24 v{t[4]}, {nper}, v{t[3]}
  v_sub_u32 v{t[4]}, v{ci}, v{t[4]}
""")
    if nper == 30:
        a(f"v_and_b32 v{t[5]}, 1, v{t[3]}\nv_xor_b32 v{t[4]}, v{t[4]}, v{t[5]}")
    a(f"""
  v_bfe_u32 v{t[5]}, v{t[3]}, 2, 2
  v_lshlrev_b32 v{t[5]}, 3, v{t[5]}
  v_lshrrev_b32 v{t[6]}, 4, v{t[3]}
  v_lshl_add_u32 v{t[5]}, v{t[6]}, 2, v{t[5]}
  v_and_b32 v{t[6]}, 3, v{t[3]}
  v_add_u32 v{t[5]}, v{t[5]}, v{t[6]}
""")
    return t[5], t[4]
def w_offs():
    a(f"""
  v_lshrrev_b32 v{vT[3]}, 5, v{vLANE}
  s_lshl_b32 s{sT2}, s{sT4}, 1
  v_add_u32 v{vT[3]}, s{sT2}, v{vT[3]}
  v_and_b32 v{vT[4]}, 1, v{vT[3]}
  v_lshl_add_u32 v{vT[4]}, v{vT[3]}, 1, v{vT[4]}  ; swz16
  v_and_b32 v{vT[5]}, 31, v{vLANE}
  v_xor_b32 v{vT[4]}, v{vT[4]}, v{vT[5]}        ; unit
  v_mul_u32_u24 v{vT[8]}, 26, v{vT[4]}
  v_lshrrev_b32 v{vT[8]}, 8, v{vT[8]}           ; seg
  v_mul_u32_u24 v{vT[9]}, 10, v{vT[8]}
  v_sub_u32 v{vT[9]}, v{vT[4]}, v{vT[9]}        ; j16
  s_movk_i32 s{sT3}, 1152
  v_mul_u32_u24 v{vT[5]}, s{sT3}, v{vT[8]}
  v_lshl_add_u32 v{vT[5]}, v{vT[9]}, 4, v{vT[5]}
  v_add_u32 v{vT[5]}, s{sH144}, v{vT[5]}
  v_lshrrev_b32 v{vT[6]}, 2, v{vT[3]}
  v_lshlrev_b32 v{vT[6]}, 3, v{vT[6]}
  v_and_b32 v{vT[7]}, 3, v{vT[3]}
  v_add_u32 v{vT[6]}, v{vT[6]}, v{vT[7]}        ; k for j=0
  s_movk_i32 s{sT3}, 3456
  v_mad_u32_u24 v{vT[5]}, v{vT[6]}, s{sT3}, v{vT[5]}
  v_cmp_eq_u32 vcc, 9, v{vT[9]}
  v_cmp_lt_u32 s[94:95], 29, v{vT[4]}
  s_or_b64 vcc, vcc, s[94:95]
  v_mov_b32 v{vT[8]}, {BIG}
  v_cndmask_b32 v{vWL[0]}, v{vT[5]}, v{vT[8]}, vcc
""")
sK2 = 3
vWL = [21, 22, 23, 24]
def x_items(pr):
    sl = (pr % NXS) * XSL
    return f"""
  s_lshl_b32 s{sT2}, s{sK}, 6
  s_add_u32 s{sT3}, s{sT2}, {16*1152}
  s_add_u32 m0, s{sMX}, {sl}
  buffer_load_dwordx4 v{vXOFF}, {srd(SX)}, s{sT2} offen lds
  s_add_u32 m0, s{sMX}, {sl + 1024}
  buffer_load_dwordx4 v{vXOFF2}, {srd(SX)}, s{sT2} offen lds
  s_add_u32 m0, s{sMX}, {sl + 2048}
  buffer_load_dwordx4 v{vXOFF}, {srd(SX)}, s{sT3} offen lds
  s_add_u32 m0, s{sMX}, {sl + 3072}
  buffer_load_dwordx4 v{vXOFF2}, {srd(SX)}, s{sT3} offen lds
  s_add_u32 s{sK}, s{sK}, 2
  s_cmp_eq_u32 s{sK}, 18
  s_cselect_b32 s{sK}, 0, s{sK}"""
def w_items(ks):
    sl = ((ks + 1) % NWS) * WSL
    o = f"\n  s_mul_i32 s{sT3}, s{sK2}, {32*3456}"
    for j, dk in enumerate((0, 16, 4, 20)):
        if j: o += f"\n  s_add_u32 s{sT2}, s{sT3}, {dk*3456}"
        o += f"""
  s_add_u32 m0, s{sMWA}, {sl + 4096*j}
  buffer_load_dwordx4 v{vWL[0]}, {srd(SW)}, s{sT2 if j else sT3} offen lds"""
    return o + f"""
  s_add_u32 s{sK2}, s{sK2}, 1
  s_cmp_eq_u32 s{sK2}, 18
  s_cselect_b32 s{sK2}, 0, s{sK2}"""
def issue_x(pr): a(x_items(pr)); vm.add(('x', pr), 4)
def issue_w(ks): a(w_items(ks)); vm.add(('w', ks), 4)
SM = 32
a(f"s_cmp_lt_u32 s{sPW}, 4\ns_cbranch_scc1 L_pc0")
a(f"""
  s_and_b32 s{sT4}, s{sPW}, 3
  v_lshrrev_b32 v{vT[0]}, 3, v{vLANE}
  v_and_b32 v{vT[2]}, 7, v{vLANE}
  v_xor_b32 v{vT[2]}, v{vT[2]}, v{vG}
  s_lshl_b32 s{sT2}, s{sT}, 7
  s_lshl_b32 s{sT3}, s{sT4}, 5
  s_add_u32 s{sT2}, s{sT2}, s{sT3}
  v_add_u32 v{vT[0]}, s{sT2}, v{vT[0]}
  s_movk_i32 s{sT3}, 1152
  v_mul_lo_u32 v{vT[0]}, v{vT[0]}, s{sT3}
  v_lshl_add_u32 v{vXOFF}, v{vT[2]}, 4, v{vT[0]}
  v_xor_b32 v{vT[2]}, 4, v{vT[2]}
  v_lshl_add_u32 v{vXOFF2}, v{vT[2]}, 4, v{vT[0]}
  v_add_u32 v{vXOFF2}, {8*1152}, v{vXOFF2}
  s_lshl_b32 s{sMX}, s{sT4}, 12
  s_lshl_b32 s{sMWA}, s{sT4}, 10
  s_add_u32 s{sMWA}, s{sMWA}, {W0L}
  s_mov_b32 s{sK}, s{sROT}
  s_mov_b32 s{sK2}, s{sROT}
""")
w_offs()
srd_bases()
stamp(1)
issue_x(0); issue_w(0); issue_w(1)
NI0 = opt('ni0', 0)
if NI0: issue_x(1); issue_w(2); issue_w(3)
stamp(2)
a("s_branch L_pc1")
a("L_pc0:")
srd_bases()
stamp(1)
if opt('l2pf', 0):
    a(f"""
  v_lshrrev_b32 v{vT[0]}, 1, v{vLANE}
  s_movk_i32 s{sT3}, 3456
  v_mul_u32_u24 v{vT[0]}, s{sT3}, v{vT[0]}
  v_and_b32 v{vT[1]}, 1, v{vLANE}
  v_mul_u32_u24 v{vT[1]}, 140, v{vT[1]}
  v_add3_u32 v{vT[0]}, v{vT[0]}, v{vT[1]}, s{sH144}
  s_lshl_b32 s{sT2}, s{sT}, 7
  s_lshl_b32 s{sT3}, s{sTH}, 6
  s_add_u32 s{sT2}, s{sT2}, s{sT3}
  v_add_u32 v{vT[1]}, s{sT2}, v{vLANE}
  s_movk_i32 s{sT3}, 1152
  v_mul_lo_u32 v{vT[1]}, v{vT[1]}, s{sT3}
  s_lshr_b32 s{sT2}, s{sPW}, 1
  s_lshl_b32 s{sT2}, s{sT2}, 1
  s_add_u32 s{sT2}, s{sT2}, s{sROT}
  s_add_u32 s{sT2}, s{sT2}, 2
  s_sub_u32 s{sT3}, s{sT2}, 18
  s_cmp_ge_u32 s{sT2}, 18
  s_cselect_b32 s{sT2}, s{sT3}, s{sT2}
  s_lshl_b32 s{sT2}, s{sT2}, 6
  buffer_load_dword v{50}, v{vT[1]}, {srd(SX)}, s{sT2} offen
""")
    for rep in range(opt('l2pf', 0)):
        a(f"""
  s_add_u32 s{sT2}, s{sROT}, s{sPW}
  s_add_u32 s{sT2}, s{sT2}, {2 + 4*rep}
  s_sub_u32 s{sT3}, s{sT2}, 18
  s_cmp_ge_u32 s{sT2}, 18
  s_cselect_b32 s{sT2}, s{sT3}, s{sT2}
  s_mul_i32 s{sT2}, s{sT2}, {32*3456}
  buffer_load_dword v{51+3*rep}, v{vT[0]}, {srd(SW)}, s{sT2} offen
  buffer_load_dword v{52+3*rep}, v{vT[0]}, {srd(SW)}, s{sT2} offen offset:1152
  buffer_load_dword v{53+3*rep}, v{vT[0]}, {srd(SW)}, s{sT2} offen offset:2304
""")
a(f"s_mul_i32 s{sT2}, s{sHQ}, {4*648}\nv_lshlrev_b32 v{vT[0]}, 1, v0")
for j in range(6): a(f"buffer_load_ushort v{SM+j}, v{vT[0]}, {srd(SPHI)}, s{sT2} offen offset:{512*j}")
a(f"v_lshlrev_b32 v{vT[0]}, 3, v0\nbuffer_load_dwordx2 v[{SM+6}:{SM+7}], v{vT[0]}, {srd(SGATE)}, 0 offen")
for j in range(6):
    a(f"""
  v_add_u32 v{vT[5]}, {256*j}, v0
  s_mov_b32 s{sT3}, 0xCA46
  v_mul_u32_u24 v{vT[6]}, s{sT3}, v{vT[5]}
  v_lshrrev_b32 v{vT[6]}, 24, v{vT[6]}
  s_movk_i32 s{sT3}, 324
  v_mul_u32_u24 v{vT[7]}, s{sT3}, v{vT[6]}
  v_sub_u32 v{vT[7]}, v{vT[5]}, v{vT[7]}
  s_mov_b32 s{sT3}, 0xE38F
  v_mul_u32_u24 v{vT[8]}, s{sT3}, v{vT[7]}
  v_lshrrev_b32 v{vT[8]}, 20, v{vT[8]}
  v_mul_u32_u24 v{vT[9]}, 18, v{vT[8]}
  v_sub_u32 v{vT[9]}, v{vT[7]}, v{vT[9]}
  v_mul_u32_u24 v{vT[10]}, 20, v{vT[6]}
  v_add_u32 v{vT[10]}, v{vT[10]}, v{vT[9]}
  v_mul_u32_u24 v{vT[10]}, 48, v{vT[10]}
  v_and_b32 v{vT[6]}, 1, v{vT[6]}
  v_lshl_add_u32 v{vT[8]}, v{vT[6]}, 1, v{vT[8]}
  v_lshl_add_u32 v{vT[10]}, v{vT[8]}, 1, v{vT[10]}
  v_add_u32 v{SM+8+j}, {T2}, v{vT[10]}
""")
a(f"""
  v_mov_b32 v{vT[0]}, 0
  v_mov_b32 v{vT[1]}, 0
  v_mov_b32 v{vT[2]}, 0
  v_mov_b32 v{vT[3]}, 0
  v_lshlrev_b32 v{vT[4]}, 4, v0
  v_add_u32 v{vT[4]}, {T2}, v{vT[4]}
  v_cmp_gt_u32 vcc, 240, v0
  s_and_saveexec_b64 s[94:95], vcc
  ds_write_b128 v{vT[4]}, v[{vT[0]}:{vT[3]}]
  v_cmp_gt_u32 vcc, 92, v0
  s_and_b64 exec, exec, vcc
  ds_write_b128 v{vT[4]}, v[{vT[0]}:{vT[3]}] offset:{ZR - T2}
  s_mov_b64 exec, -1
  v_mov_b32 v{SM+14}, v0
""")
stamp(2)
a("L_pc1:")
srd_rest()
a(f"""
  s_waitcnt lgkmcnt(0)
  s_barrier
  s_lshl_b32 s{sT2}, s{sWV}, 6
  v_add_u32 v0, s{sT2}, v{vLANE}
  s_or_b32 s{sT2}, s2, s{sPW}
  s_cmp_lg_u32 s{sT2}, 0
  s_cbranch_scc1 L_nononce
  s_memrealtime s[94:95]
  s_waitcnt lgkmcnt(0)
  s_or_b32 s94, s94, 1
  s_xor_b32 s95, s95, 0x5bd1e995
  v_mov_b32 v{vT[6]}, s94
  v_mov_b32 v{vT[7]}, s95
  v_mov_b32 v{vT[5]}, 0
  s_mov_b64 exec, 1
  buffer_store_dwordx2 v[{vT[6]}:{vT[7]}], v{vT[5]}, {srd(SDBG)}, 0 offen sc1
  s_mov_b64 exec, -1
L_nononce:
  s_lshl_b32 s{sTILE}, s{sT}, 3
  s_lshl_b32 s{sT2}, s{sTG}, 1
  s_add_u32 s{sTILE}, s{sTILE}, s{sT2}
  s_add_u32 s{sTILE}, s{sTILE}, s{sROLE}
  s_lshl_b32 s{sT2}, s{sB}, 7
  s_add_u32 s{sT2}, s{sT2}, s{sTILE}
  s_mul_i32 s{sT2}, s{sT2}, 18432
  s_add_u32 s{sT2}, s{sT2}, {WS_O}
  s_mul_i32 s{sT3}, s{sHQ}, 9
""")
for j in range(3):
    a(f"""
  v_add_u32 v{vT[0]}, {4*j}, v{vG}
  v_add_u32 v{vT[1]}, s{sT3}, v{vT[0]}
  v_lshlrev_b32 v{vT[1]}, 8, v{vT[1]}
  v_lshl_add_u32 v{vT[1]}, v{vN}, 4, v{vT[1]}
  v_add_u32 v{vOST[j]}, s{sT2}, v{vT[1]}
""")
a(f"""
  v_cmp_lt_u32 vcc, 0, v{vG}
  v_mov_b32 v{vT[0]}, {BIG}
  v_cndmask_b32 v{vOST[2]}, v{vOST[2]}, v{vT[0]}, vcc
  s_lshl_b32 s{sPB}, s{sG}, 4
  s_add_u32 s{sPB}, s{sPB}, s{sT}
  s_lshl_b32 s{sPB}, s{sPB}, 14
""")
a(f"s_mul_i32 s{sT2}, s{sTG}, 36\nv_add_u32 v{vT[7]}, s{sT2}, v{vLANE}\nv_min_u32 v{vT[7]}, 143, v{vT[7]}")
k, u = dma_off(vT[7], 9)
a(f"""
  s_movk_i32 s{sT3}, 1152
  v_mul_u32_u24 v{vT[8]}, s{sT3}, v{k}
  v_lshl_add_u32 v{vT[8]}, v{u}, 4, v{vT[8]}
  s_mul_i32 s{sT3}, s{sCB}, 144
  v_add_u32 v{vWO}, s{sT3}, v{vT[8]}
  s_mul_i32 s{sMQ}, s{sTG}, 576
  s_add_u32 s{sMQ2}, s{sMQ}, 2304
  s_mov_b32 s{sL}, 0x3fb8aa3b
  s_mov_b32 s{sL+1}, 0x3fb8aa3b
  s_mov_b32 s{sL+2}, 0xbfb8aa3b
  s_mov_b32 s{sL+3}, 0xbfb8aa3b
  s_mov_b32 s{sMASK}, 0x00f0000f
  s_mov_b32 s{sMASK+1}, 0xf0000f00
""")
def table_writes():
    for j in range(5): a(f"ds_write_b16 v{SM+8+j}, v{SM+j}")
    a(f"""
  v_cmp_gt_u32 vcc, {1296-1280}, v{SM+14}
  s_and_saveexec_b64 s[94:95], vcc
  ds_write_b16 v{SM+13}, v{SM+5}
  s_mov_b64 exec, -1
  v_lshlrev_b32 v{vT[5]}, 3, v{SM+14}
  v_add_u32 v{vT[5]}, {GW}, v{vT[5]}
  v_cmp_gt_u32 vcc, 144, v{SM+14}
  s_and_saveexec_b64 s[94:95], vcc
  ds_write_b64 v{vT[5]}, v[{SM+6}:{SM+7}]
  s_mov_b64 exec, -1
""")
EX36 = "s_mov_b32 exec_lo, -1\n  s_mov_b32 exec_hi, 0xf"
def wo_item2(kk, v2):
    if opt('nowo', 0): return "s_nop 0"
    addr = wo_addr[kk]
    s_ = SWOA if kk < 18 else SWOB
    return f"""
  s_mov_b32 s{sT3}, {(kk % 18) * 32 * 1152}
  s_add_u32 m0, s{sMQ}, {addr}
  {EX36}
  buffer_load_dwordx4 v{vWO}, {srd(s_)}, s{sT3} offen lds
  s_add_u32 m0, s{sMQ2}, {addr}
  buffer_load_dwordx4 v{v2}, {srd(s_)}, s{sT3} offen lds
  s_mov_b64 exec, -1"""
KOFF8 = [0, 4, 9, 13]
TILEV = [[0,1,2,3],[4,5,6,7],[8,9,10,11],[12,13,14,15],[10,11,16,17]]

NONLD = f"""
  v_mov_b32 v{vT[5]}, 0
  buffer_load_dwordx2 v[{vNON}:{vNON+1}], v{vT[5]}, {srd(SDBG)}, 0 offen sc1"""
def get_nonce():
    nl[0] += 1; L = f"L_non{nl[0]}"
    a(f"""
  v_readfirstlane_b32 s{sNON}, v{vNON}
  v_readfirstlane_b32 s{sNON+1}, v{vNON+1}
  s_mov_b32 s{sRETRY}, 0
  s_cmp_lg_u32 s{sNON}, 0
  s_cbranch_scc1 {L}d
{L}:
  v_mov_b32 v{vT[5]}, 0
  buffer_load_dwordx2 v[{vNON}:{vNON+1}], v{vT[5]}, {srd(SDBG)}, 0 offen sc1
  s_waitcnt vmcnt(0)
  v_readfirstlane_b32 s{sNON}, v{vNON}
  v_readfirstlane_b32 s{sNON+1}, v{vNON+1}
  s_add_u32 s{sRETRY}, s{sRETRY}, 1
  s_cmp_gt_u32 s{sRETRY}, 100000
  s_cbranch_scc1 {L}d
  s_cmp_eq_u32 s{sNON}, 0
  s_cbranch_scc1 {L}
{L}d:""")
def set_flag(soff):
    a(f"""
  v_mov_b32 v{vT[6]}, s{sNON}
  v_mov_b32 v{vT[7]}, s{sNON+1}
  v_mov_b32 v{vT[5]}, 0
  s_waitcnt vmcnt(0)
  s_mov_b64 exec, 1
  buffer_store_dwordx2 v[{vT[6]}:{vT[7]}], v{vT[5]}, {srd(SWS)}, s{soff} offen sc1
  s_mov_b64 exec, -1""")
def diag_addr(dst, rows, pitch, base):
    a(f"""
  v_mul_u32_u24 v{dst}, {rows}, v{vG}
  v_and_b32 v{vT[1]}, 3, v{vN}
  v_add_u32 v{dst}, v{dst}, v{vT[1]}
  v_mul_u32_u24 v{dst}, {pitch}, v{dst}
  v_add_u32 v{dst}, {base}, v{dst}
  v_mov_b32 v{vT[1]}, {ZR}
  v_cndmask_b32 v{dst}, v{vT[1]}, v{dst}, s[{sMASK}:{sMASK+1}]
""")
SEQ2 = [(t, c) for t in range(5) for c in range(3)]
def stage2_mfmas(P, af, kb):
    return [f"v_mfma_f32_16x16x32_bf16 {v(P+4*t,4)}, {v(af[j],4)}, {v(kb+4*c,4)}, {v(P+4*t,4) if c > 0 else '0'}" for j, (t, c) in enumerate(SEQ2)]
A2L = [64 + 4 * j for j in range(15)]
KB0, KB1 = 32, 44
P0, EPk, P1 = 124, 144, 164
PH0, PH1 = 184, 204
D0, D1 = 64, 124
def softmax_list(P, EP, ph):
    o = []
    mx, mn, mx2, mn2 = vT[0], vT[2], vT[4], vT[5]
    o += [f"v_max3_f32 v{mx}, v{P}, v{P+1}, v{P+2}", f"v_min3_f32 v{mn}, v{P}, v{P+1}, v{P+2}",
          f"v_max3_f32 v{mx2}, v{P+3}, v{P+4}, v{P+5}", f"v_min3_f32 v{mn2}, v{P+3}, v{P+4}, v{P+5}"]
    for i in range(6, 18, 4):
        o += [f"v_max3_f32 v{mx}, v{mx}, v{P+i}, v{P+i+1}", f"v_min3_f32 v{mn}, v{mn}, v{P+i}, v{P+i+1}",
              f"v_max3_f32 v{mx2}, v{mx2}, v{P+i+2}, v{P+i+3}", f"v_min3_f32 v{mn2}, v{mn2}, v{P+i+2}, v{P+i+3}"]
    o += [f"v_max_f32 v{mx}, v{mx}, v{mx2}", f"v_min_f32 v{mn}, v{mn}, v{mn2}",
          f"v_mul_f32 v{mx}, s{sL+2}, v{mx}", f"v_mul_f32 v{mn}, s{sL}, v{mn}"]
    for i in range(9):
        o += [f"v_pk_fma_f32 {v(EP+2*i,2)}, {v(P+2*i,2)}, s[{sL}:{sL+1}], {v(mx,2)} op_sel_hi:[1,1,0]",
              f"v_pk_fma_f32 {v(P+2*i,2)}, {v(P+2*i,2)}, s[{sL+2}:{sL+3}], {v(mn,2)} op_sel_hi:[1,1,0]"]
    for i in range(18): o += [f"v_exp_f32 v{EP+i}, v{EP+i}", f"v_exp_f32 v{P+i}, v{P+i}"]
    sp, sm = vT[4], vT[6]
    o += [f"v_pk_add_f32 {v(sp,2)}, {v(EP,2)}, {v(EP+2,2)}", f"v_pk_add_f32 {v(sm,2)}, {v(P,2)}, {v(P+2,2)}"]
    for i in range(2, 9):
        o += [f"v_pk_add_f32 {v(sp,2)}, {v(sp,2)}, {v(EP+2*i,2)}", f"v_pk_add_f32 {v(sm,2)}, {v(sm,2)}, {v(P+2*i,2)}"]
    o += [f"v_add_f32 v{sp}, v{sp}, v{sp+1}", f"v_add_f32 v{sm}, v{sm}, v{sm+1}", f"v_rcp_f32 v{sp}, v{sp}", f"v_rcp_f32 v{sm}, v{sm}"]
    for i in range(9):
        o += [f"v_pk_mul_f32 {v(EP+2*i,2)}, {v(EP+2*i,2)}, {v(sp,2)} op_sel_hi:[1,0]",
              f"v_pk_mul_f32 {v(P+2*i,2)}, {v(P+2*i,2)}, {v(sm,2)} op_sel_hi:[1,0]"]
    for i in range(9): o.append(f"v_cvt_pk_bf16_f32 v{ph+i}, v{EP+2*i}, v{EP+2*i+1}")
    for i in range(9): o.append(f"v_cvt_pk_bf16_f32 v{ph+9+i}, v{P+2*i}, v{P+2*i+1}")
    o += [f"v_mov_b32 v{ph+18}, 0", f"v_mov_b32 v{ph+19}, 0"]
    return o
def merge(valu, mf, every=4):
    mf = list(mf)
    for i, x in enumerate(valu):
        if mf and i % every == 0: a(mf.pop(0))
        a(x)
    for m in mf: a(m)

def num_and_store(phq, nb, out, kvaddr, reuse):
    seq = [(t, c) for t in range(5) for c in range(5)]
    for b0 in (0, 13):
        batch = seq[b0:b0+13]
        nbb = nb if reuse else nb + 4 * b0
        if b0 and reuse: a("s_nop 7")
        for j, (t, c) in enumerate(batch):
            a(f"ds_read_b128 {v(nbb+4*j,4)}, v{kvaddr} offset:{t*320 + c*16}")
        if b0 == 0:
            a(f"""
  s_mul_i32 s{sT2}, s{sWV}, 2304
  s_add_u32 s{sT2}, s{sT2}, {OST}
  s_movk_i32 s{sT3}, 144
  v_mul_u32_u24 v{vT[3]}, s{sT3}, v{vN}
  v_add_u32 v{vT[3]}, s{sT2}, v{vT[3]}
  v_mul_u32_u24 v{vT[4]}, 36, v{vG}
  v_add_u32 v{vT[4]}, v{vT[3]}, v{vT[4]}
  v_lshl_add_u32 v{vT[2]}, v{vG}, 4, v{vT[3]}
  s_lshl_b32 s{sT2}, s{sTILE}, 7
  s_lshl_b32 s{sT3}, s{sG}, 3
  s_add_u32 s{sT2}, s{sT2}, s{sT3}
  s_add_u32 s{sT0}, s{sT2}, {WS_F2}
""")
        for j, (t, c) in enumerate(batch):
            a(f"s_waitcnt lgkmcnt({len(batch)-1-j})")
            if b0 == 0 and j == 0: a("s_barrier")
            cc = v(out + 4*t, 4) if c > 0 else '0'
            a(f"v_mfma_f32_16x16x32_bf16 {v(out+4*t,4)}, {v(nbb+4*j,4)}, {v(phq+4*c,4)}, {cc}")
    a(f"v_add_f32 v{vT[0]}, 0x358637bd, v{out+18}\nv_rcp_f32 v{vT[0]}, v{vT[0]}")
    for i in range(9): a(f"v_pk_mul_f32 {v(out+2*i,2)}, {v(out+2*i,2)}, {v(vT[0],2)} op_sel_hi:[1,0]")
    for i in range(9): a(f"v_cvt_pk_bf16_f32 v{out+20+i}, v{out+2*i}, v{out+2*i+1}")
    stamp(24)
    for i in range(0, 8, 2):
        a(f"ds_write2_b32 v{vT[4]}, v{out+20+i}, v{out+21+i} offset0:{i} offset1:{i+1}")
    a(f"ds_write_b32 v{vT[4]}, v{out+28} offset:32")
    a("s_waitcnt lgkmcnt(0)")
    for j in range(3): a(f"ds_read_b128 {v(out+4*j,4)}, v{vT[2]} offset:{64*j}")
    for j in range(3):
        a(f"s_waitcnt lgkmcnt({2-j})\nbuffer_store_dwordx4 {v(out+4*j,4)}, v{vOST[j]}, {srd(SWS)}, 0 offen sc1")
    stamp(25)
    set_flag(sT0)
    stamp(10)
def tr_base(dst):
    a(f"""
  v_bfe_u32 v{vT[3]}, v{vLANE}, 2, 2
  v_lshl_add_u32 v{vT[1]}, v{vG}, 2, v{vT[3]}
  v_and_b32 v{vT[2]}, 3, v{vLANE}
  s_movk_i32 s{sT3}, 144
  v_mul_u32_u24 v{vT[1]}, s{sT3}, v{vT[1]}
  v_lshl_add_u32 v{dst}, v{vT[2]}, 3, v{vT[1]}
""")
def pc_setup():
    a(f"""
  s_lshr_b32 s{sT0}, s{sTG}, 1
  s_and_b32 s{sT1}, s{sTG}, 1
  s_lshl_b32 s{sT2}, s{sTB}, 2
  s_lshl_b32 s{sT3}, s{sT1}, 1
  s_add_u32 s{sT2}, s{sT2}, s{sT3}
  s_lshl_b32 s{sT3}, s{sT0}, 7
  s_add_u32 s{sT3}, s{sT3}, s{sT2}
  s_mul_i32 s{sT5}, s{sT3}, 18432
  s_add_u32 s{sT5}, s{sT5}, {WS_O}
  s_add_u32 s{sT4}, s{sT5}, 18432
  v_lshlrev_b32 v{vT[0]}, 4, v{vLANE}
  v_add_u32 v{vT[1]}, 4096, v{vT[0]}
  v_add_u32 v{vT[2]}, 8192, v{vT[0]}
  v_add_u32 v{vT[3]}, 12288, v{vT[0]}
  v_add_u32 v{vT[4]}, 16384, v{vT[0]}
  s_lshl_b32 s{sT2}, s{sT2}, 6
  s_add_u32 s{sPB}, s{sT2}, {WS_GATE}
""")

vRA8 = [21, 22, 23, 24, 25, 19, 14, 10]
DEP = opt('dep', 6)
def pass1(role):
    steps = [('t', t) for t in range(5)] + ([('v', 0), ('v', 1), ('g', 0)] if role == 0 else [('v', 2), ('v', 3), ('v', 4)])
    a(f"""
  v_lshrrev_b32 v{vT[0]}, 1, v{vN}
  v_xor_b32 v{vT[0]}, v{vT[0]}, v{vG}
  v_lshlrev_b32 v{vT[0]}, 4, v{vT[0]}
  v_lshl_add_u32 v{vT[0]}, v{vN}, 7, v{vT[0]}
  s_lshl_b32 s{sT2}, s{sTH}, 13
  v_add_u32 v{vRX[0]}, s{sT2}, v{vT[0]}
  v_xor_b32 v{vRX[1]}, 64, v{vRX[0]}
  v_bfe_u32 v{vT[0]}, v{vLANE}, 2, 2
  v_lshl_add_u32 v{vT[1]}, v{vG}, 2, v{vT[0]}
  v_and_b32 v{vT[2]}, 3, v{vLANE}
  v_and_b32 v{vT[3]}, 1, v{vT[0]}
  v_lshlrev_b32 v{vT[3]}, 1, v{vT[3]}
  v_and_b32 v{vT[4]}, 7, v{vT[1]}
  v_lshl_add_u32 v{vT[3]}, v{vT[4]}, 2, v{vT[3]}
  v_lshlrev_b32 v{vT[4]}, 9, v{vT[1]}
  v_add_u32 v{vT[4]}, {W0L}, v{vT[4]}
  v_lshlrev_b32 v{vT[2]}, 3, v{vT[2]}
""")
    for i, (ty, t) in enumerate(steps):
        if ty == 'g':
            a(f"v_lshlrev_b32 v{vRA8[i]}, 4, v{vG}\nv_add_u32 v{vRA8[i]}, {GW}, v{vRA8[i]}\ns_mov_b32 s{sT5}, s{sROT}")
            continue
        units = [(20 if role == 0 else 0) + KOFF8[c] + t for c in range(4)] if ty == 't' else [40 + u for u in TILEV[t]]
        packed = sum(u << (8 * c) for c, u in enumerate(units))
        a(f"""
  s_mov_b32 s{sT3}, {packed}
  v_lshrrev_b32 v{vT[0]}, v{vT[2]}, s{sT3}
  v_and_b32 v{vT[0]}, 0xff, v{vT[0]}
  v_xor_b32 v{vT[0]}, v{vT[0]}, v{vT[3]}
  v_lshl_add_u32 v{vRA8[i]}, v{vT[0]}, 3, v{vT[4]}
""")
    base = [0]
    def setbase(sl):
        want = (sl // 3) * 3 * WSL
        out = []
        if want != base[0]:
            d = want - base[0]
            for i, (ty, t) in enumerate(steps):
                if ty == 'g': continue
                r = vRA8[i]
                out.append(f"v_add_u32 v{r}, {d}, v{r}" if d > 0 else f"v_subrev_u32 v{r}, {-d}, v{r}")
            base[0] = want
        return out
    def xregs(ks, tt): return XB + 16 * (ks & 1) + 4 * tt
    lds = []
    def wreads(st):
        ks, i = divmod(st, 8)
        ty, t = steps[i]
        pre = setbase((ks + 1) % NWS) if i == 0 else []
        off = ((ks + 1) % NWS) * WSL - base[0]
        fb = RING + 4 * (st % 8)
        if ty == 'g':
            pre = [(None, f"s_lshl_b32 s{sT4}, s{sT5}, 6\nv_add_u32 v{vT[7]}, s{sT4}, v{vRA8[i]}\ns_add_u32 s{sT5}, s{sT5}, 1\ns_cmp_eq_u32 s{sT5}, 18\ns_cselect_b32 s{sT5}, 0, s{sT5}")]
            return pre + [(st, f"ds_read_b128 {v(fb,4)}, v{vT[7]}")]
        pre = [(None, x_) for x_ in pre]
        return pre + [(st, f"ds_read_b64_tr_b16 {v(fb + 2*hh, 2)}, v{vRA8[i]} offset:{off + hh*8192}") for hh in range(2)]
    def xread(ks, tt):
        xo = ((ks // 2) % NXS) * XSL
        return (8 * ks, f"ds_read_b128 {v(xregs(ks, tt), 4)}, v{vRX[ks & 1]} offset:{xo + 2048*tt}")
    def emit(it):
        tag, txt = it
        if opt('noreads', 0) and tag is not None and tag >= 8: txt = "s_nop 0"
        a(txt)
        if tag is not None: lds.append(tag)
    def mfma(st, tt):
        ks, i = divmod(st, 8)
        ty, t = steps[i]
        fb = RING + 4 * (st % 8)
        acc = ACC + 16 * i + 4 * tt
        c = v(acc, 4) if ks > 0 else '0'
        A, B = (v(xregs(ks,tt),4), v(fb,4)) if ty == 'v' else (v(fb,4), v(xregs(ks,tt),4))
        if opt('nomfma', 0): return "s_nop 0"
        return f"v_mfma_f32_16x16x32_bf16 {v(acc,4)}, {A}, {B}, {c}"
    a("s_waitcnt vmcnt(0)")
    table_writes()
    a("s_waitcnt lgkmcnt(0)\ns_barrier")
    stamp(3)
    for tt in range(4): emit(xread(0, tt))
    for st in range(DEP):
        for it in wreads(st): emit(it)
    NST = 144
    fifo = []
    for st in range(NST):
        while any(t_ == st for t_, _ in fifo): emit(fifo.pop(0))
        idx = max(i for i, x_ in enumerate(lds) if x_ == st)
        a(f"s_waitcnt lgkmcnt({min(15, len(lds) - 1 - idx)})")
        if (st + DEP) % 8 == 0:
            while fifo: emit(fifo.pop(0))
            a("s_barrier")
        if st == 64: a(NONLD)
        nst = st + DEP
        if nst < NST:
            fifo += wreads(nst)
            j = nst % 8
            if j < 4: fifo.append(xread(nst // 8, j))
        for tt in range(4):
            a(mfma(st, tt))
            if fifo: emit(fifo.pop(0))
def loader():
    nW, nX = (4, 2) if NI0 else (2, 1)
    def need(ks): return min(vm.wait_for(('w', ks)), vm.wait_for(('x', ks // 2)))
    a(f"s_waitcnt vmcnt({need(0)})\ns_barrier")
    stamp(3)
    def refill(ks, maxw):
        nonlocal nW, nX
        c = 0
        while c < maxw:
            if nX < 9 and 2 * nX <= nW + 1 and 2 * (nX - NXS) + 1 <= ks: issue_x(nX); nX += 1
            if nW < 18 and nW - NWS <= ks - 1: issue_w(nW); nW += 1; c += 1
            else: break
        if nX < 9 and 2 * nX <= nW + 1 and 2 * (nX - NXS) + 1 <= ks: issue_x(nX); nX += 1
    if opt('norefill', 0):
        global w_items, x_items
        w_items = lambda ks: "s_nop 0"
        x_items = lambda pr: "s_nop 0"
    refill(-1, 2)
    for ks in range(18):
        if ks + 1 < 18: a(f"s_waitcnt vmcnt({need(ks + 1)})")
        a("s_barrier")
        refill(ks, 2)
        if ks == 8: a(NONLD); vm.add('non')
        if ks == opt('wopf', 12):
            a(f"""
  s_lshr_b32 s{sT2}, s2, 3
  s_mul_i32 s{sT2}, s{sT2}, 20736
  s_mul_i32 s{sT3}, s{sTH}, 10368
  s_add_u32 s{sT2}, s{sT2}, s{sT3}
  v_lshlrev_b32 v{vT[0]}, 7, v{vLANE}
  v_add_u32 v{vT[1]}, 8192, v{vT[0]}
  v_min_u32 v{vT[1]}, {80*128}, v{vT[1]}
  s_bitcmp1_b32 s{sPW}, 1
  s_cbranch_scc1 L_wopfB
  buffer_load_dword v{60}, v{vT[0]}, {srd(SWOA)}, s{sT2} offen
  buffer_load_dword v{61}, v{vT[1]}, {srd(SWOA)}, s{sT2} offen
  s_branch L_wopfD
L_wopfB:
  buffer_load_dword v{60}, v{vT[0]}, {srd(SWOB)}, s{sT2} offen
  buffer_load_dword v{61}, v{vT[1]}, {srd(SWOB)}, s{sT2} offen
L_wopfD:""")
            vm.add('wopf', 2)
    assert nW == 18 and nX == 9, (nW, nX)
def handoff(role):
    own = (0, 1) if role == 0 else (2, 3)
    snd = (2, 3) if role == 0 else (0, 1)
    SND = RING
    a(f"""
  s_mul_i32 s{sT2}, s{sTH}, 5120
  s_add_u32 s{sT2}, s{sT2}, {HX + role * 10240}
  v_lshlrev_b32 v{vT[0]}, 4, v{vLANE}
  v_add_u32 v{vT[2]}, s{sT2}, v{vT[0]}
  v_lshlrev_b32 v{vT[1]}, 3, v{vLANE}
  v_add_u32 v{vT[3]}, s{sT2}, v{vT[1]}
""")
    for j, tt in enumerate(snd):
        for t in range(5):
            s_ = ACC + 16 * t + 4 * tt
            a(f"v_cvt_pk_bf16_f32 v{SND+12*j+2*t}, v{s_}, v{s_+1}\nv_cvt_pk_bf16_f32 v{SND+12*j+2*t+1}, v{s_+2}, v{s_+3}")
        a(f"ds_write_b128 v{vT[2]}, {v(SND+12*j,4)} offset:{2560*j}\nds_write_b128 v{vT[2]}, {v(SND+12*j+4,4)} offset:{2560*j+1024}\nds_write_b64 v{vT[3]}, {v(SND+12*j+8,2)} offset:{2560*j+2048}")
    cts = [0, 1] if role == 0 else [2, 3, 4]
    a(f"s_mul_i32 s{sT2}, s{sTH}, 10240\ns_add_u32 s{sT2}, s{sT2}, {VF}\nv_add_u32 v{vT[4]}, s{sT2}, v{vT[0]}")
    if role == 1: a(f"v_cmp_eq_u32 vcc, 8, v{vN}\nv_mov_b32 v{vT[1]}, 0x3f803f80")
    for i, ct in enumerate(cts):
        for j in range(2):
            b_ = ACC + 16 * (5 + i) + 8 * j
            for q in range(4): a(f"v_cvt_pk_bf16_f32 v{b_+q}, v{b_+2*q}, v{b_+2*q+1}")
            if ct == 2:
                for q in range(4): a(f"v_cndmask_b32 v{b_+q}, v{b_+q}, v{vT[1]}, vcc")
            a(f"ds_write_b128 v{vT[4]}, {v(b_,4)} offset:{5120*j + ct*1024}")
    a("s_waitcnt lgkmcnt(0)")
    arrive(C1)
    for kb, tt in zip((KB0, KB1), own):
        for t in range(5):
            s_ = ACC + 16 * t + 4 * tt
            a(f"v_cvt_pk_bf16_f32 v{kb+2*t}, v{s_}, v{s_+1}\nv_cvt_pk_bf16_f32 v{kb+2*t+1}, v{s_+2}, v{s_+3}")
        a(f"v_mov_b32 v{kb+10}, 0\nv_mov_b32 v{kb+11}, 0")
def a2_reads(addr):
    for j, (t, c) in enumerate(SEQ2): a(f"ds_read_b128 {v(A2L[j],4)}, v{addr} offset:{t*192 + c*16}")


cA2q, cKVq = cA2, cKV
a(f"v_lshlrev_b32 v{cL16}, 4, v{vLANE}")
diag_addr(cA2, 20, 48, T2)
diag_addr(cKV, 19, 80, KVT)
a(f"v_add_u32 v{cW2}, {4*1152}, v{vWO}")
a(f"s_cmp_eq_u32 s{sROLE}, 1\ns_cbranch_scc1 L_noKc")
a(f"""
  s_and_b32 s{sT4}, s{sTG}, 1                 ; half
  s_lshr_b32 s{sT5}, s{sTG}, 1                ; c0
  s_lshl_b32 s{sT2}, s{sTG}, 10
  v_add_u32 v{cAF}, s{sT2}, v{cL16}
  s_mul_i32 s{sT2}, s{sT4}, 3072
  s_add_u32 s{sT2}, s{sT2}, {VF}
  v_add_u32 v{cB01}, s{sT2}, v{cL16}
  v_add_u32 v{cB2}, {VF + 2048}, v{cL16}
  s_lshl_b32 s{sT1}, s{sT4}, 1
  v_lshrrev_b32 v{vT[7]}, 1, v{vG}
  v_add_u32 v{vT[7]}, s{sT1}, v{vT[7]}        ; hr
  v_and_b32 v{vT[9]}, 1, v{vG}
  v_lshlrev_b32 v{vT[9]}, 4, v{vT[9]}
  s_lshl_b32 s{sT1}, s{sT5}, 5
  s_add_u32 s{sT1}, s{sT1}, {PST}
  v_add_u32 v{vT[9]}, s{sT1}, v{vT[9]}        ; PST + c0*32 + (g&1)*16
  v_cmp_lt_u32 s[{sM2}:{sM2+1}], 7, v{vN}
""")
for ci in range(3):
    if ci == 0: pre = f"s_mul_i32 s{sT2}, s{sT4}, 48\n  s_mov_b32 s{sT3}, 0"
    elif ci == 1: pre = f"s_mul_i32 s{sT2}, s{sT4}, 24\n  s_add_u32 s{sT2}, s{sT2}, 16\n  s_lshl_b32 s{sT3}, s{sT4}, 4"
    else: pre = f"s_mov_b32 s{sT2}, 32\n  s_movk_i32 s{sT3}, 200"
    a(f"""
  {pre}
  v_mov_b32 v{vT[4]}, s{sT3}
  v_cndmask_b32 v{vT[4]}, 0, v{vT[4]}, s[{sM2}:{sM2+1}]
  v_add3_u32 v{vT[4]}, v{vT[4]}, v{vN}, s{sT2}
  v_mul_u32_u24 v{vT[5]}, 57, v{vT[4]}
  v_lshrrev_b32 v{vT[5]}, 10, v{vT[5]}
  v_mul_u32_u24 v{vT[6]}, 18, v{vT[5]}
  v_sub_u32 v{vT[6]}, v{vT[4]}, v{vT[6]}
""")
    if ci == 2:
        a(f"""
  v_cmp_eq_u32 vcc, 240, v{vT[4]}
  v_cndmask_b32 v{vT[5]}, v{vT[5]}, v{vT[7]}, vcc
  v_cndmask_b32 v{vT[6]}, v{vT[6]}, 18, vcc
""")
    a(f"""
  v_mul_u32_u24 v{vT[8]}, 19, v{vT[7]}
  v_add_u32 v{vT[8]}, v{vT[8]}, v{vT[6]}
  s_movk_i32 s{sT2}, 144
  v_mad_u32_u24 v{vT[8]}, v{vT[8]}, s{sT2}, v{vT[9]}
  v_cmp_eq_u32 vcc, v{vT[5]}, v{vT[7]}
  v_mov_b32 v{vT[10]}, {PST + 10944}
  v_cndmask_b32 v{cPS[ci]}, v{vT[10]}, v{vT[8]}, vcc
""")
a(f"v_lshlrev_b32 v{cSA}, 3, v{vLANE}")
for j in range(3):
    a(f"""
  v_add_u32 v{vT[0]}, {256*j}, v0
  s_mov_b32 s{sT3}, 0xE38F
  v_mul_u32_u24 v{vT[1]}, s{sT3}, v{vT[0]}
  v_lshrrev_b32 v{vT[1]}, 19, v{vT[1]}
  v_mul_u32_u24 v{vT[2]}, 9, v{vT[1]}
  v_sub_u32 v{vT[2]}, v{vT[0]}, v{vT[2]}
  v_lshlrev_b32 v{cGQ[j]}, 4, v{vT[0]}
  v_mul_u32_u24 v{cLQ[j]}, 80, v{vT[1]}
  v_lshl_add_u32 v{cLQ[j]}, v{vT[2]}, 3, v{cLQ[j]}
  v_add_u32 v{cLQ[j]}, {KVT}, v{cLQ[j]}
""")
a(f"""
  v_cmp_gt_u32 vcc, {684-512}, v0
  v_mov_b32 v{vT[0]}, {BIG}
  v_cndmask_b32 v{cGQ[2]}, v{vT[0]}, v{cGQ[2]}, vcc
  v_lshrrev_b32 v{vT[2]}, 3, v{vN}
  v_and_b32 v{vT[1]}, 1, v{vN}
  v_lshlrev_b32 v{vT[1]}, 4, v{vT[1]}
  v_mov_b32 v{vT[3]}, 0x3f80
  v_lshlrev_b32 v{vT[3]}, v{vT[1]}, v{vT[3]}
  v_bfe_u32 v{vT[1]}, v{vN}, 1, 2
  v_lshl_add_u32 v{vT[1]}, v{vT[2]}, 2, v{vT[1]}
  v_and_b32 v{vT[2]}, 1, v{vG}
  v_lshlrev_b32 v{vT[2]}, 2, v{vT[2]}
  v_sub_u32 v{vT[1]}, v{vT[1]}, v{vT[2]}
  v_lshrrev_b32 v{vT[2]}, 1, v{vG}
  v_lshl_add_u32 v{vT[1]}, v{vT[2]}, 4, v{vT[1]}
""")
for half in range(2):
    for j2 in range(4):
        a(f"v_cmp_eq_u32 vcc, {16*half + j2}, v{vT[1]}\nv_cndmask_b32 v{cSEL[half]+j2}, 0, v{vT[3]}, vcc")
a(f"""
  s_mul_i32 s{sT2}, s{sTG}, 10240
  v_add_u32 v{cPFW}, s{sT2}, v{cL16}
""")

a("L_noKc:")
a(f"s_cmp_ge_u32 s{sPW}, 4\ns_cbranch_scc1 L_loader")
a(f"s_cmp_eq_u32 s{sROLE}, 1\ns_cbranch_scc1 L_qcomp")
pass1(0)
a("s_setprio 3")
stamp(4)
handoff(0)
a2_reads(cA2)
a(f"""
  v_cmp_eq_u32 vcc, 1, v{vG}
  v_cndmask_b32 v{vT[0]}, v{ACC+112}, v{ACC+116}, vcc
  v_cmp_eq_u32 vcc, 2, v{vG}
  v_cndmask_b32 v{vT[0]}, v{vT[0]}, v{ACC+120}, vcc
  v_cmp_eq_u32 vcc, 3, v{vG}
  v_cndmask_b32 v{vT[0]}, v{vT[0]}, v{ACC+124}, vcc
  v_lshlrev_b32 v{vT[2]}, 2, v{vLANE}
  s_lshl_b32 s{sT2}, s{sT}, 9
  s_lshl_b32 s{sT3}, s{sTH}, 8
  s_add_u32 s{sT2}, s{sT2}, s{sT3}
  s_add_u32 s{sT2}, s{sT2}, {WS_GATE}
  s_cmp_eq_u32 s{sG}, 0
  s_cselect_b32 s{sT2}, s{sT2}, {BIG}
  s_waitcnt vmcnt(0)
  buffer_store_dword v{vT[0]}, v{vT[2]}, {srd(SWS)}, s{sT2} offen sc1
""")
get_nonce()
a("s_branch L_kpost")
a("L_qcomp:")
pass1(1)
stamp(4)
handoff(1)
a2_reads(cA2)
a("s_waitcnt vmcnt(0)")
get_nonce()
a("s_branch L_qpost")
a("L_loader:")
loader()
a2_reads(cA2)
get_nonce()
stamp(4)
a(f"""
  s_mul_i32 s{sT3}, s{sTH}, 5120
  s_mul_i32 s{sT4}, s{sROLE}, 10240
  s_add_u32 s{sT3}, s{sT3}, s{sT4}
  v_add_u32 v{vT[2]}, s{sT3}, v{cL16}
  v_lshlrev_b32 v{vT[3]}, 3, v{vLANE}
  v_add_u32 v{vT[3]}, s{sT3}, v{vT[3]}
  s_cmp_eq_u32 s{sROLE}, 1
  s_cbranch_scc1 L_lq
  s_setprio 3
L_lq:
""")
cwait(C1, 4)
for j, kb in enumerate((KB0, KB1)):
    a(f"ds_read_b128 {v(kb,4)}, v{vT[2]} offset:{HX+2560*j}\nds_read_b128 {v(kb+4,4)}, v{vT[2]} offset:{HX+2560*j+1024}\nds_read_b64 {v(kb+8,2)}, v{vT[3]} offset:{HX+2560*j+2048}")
    a(f"v_mov_b32 v{kb+10}, 0\nv_mov_b32 v{kb+11}, 0")
a("s_waitcnt lgkmcnt(0)")
arrive(C1)
a(f"s_cmp_eq_u32 s{sROLE}, 1\ns_cbranch_scc1 L_qpost")
a("L_kpost:")
a("s_waitcnt lgkmcnt(0)")
stamp(17)
for m in stage2_mfmas(P0, A2L, KB0): a(m)
merge(softmax_list(P0, EPk, PH0), stage2_mfmas(P1, A2L, KB1), every=3)
stamp(18)
tr0 = [f"v_mfma_f32_16x16x32_bf16 {v(D0+4*(2*c+h),4)}, {v(PH0+4*c,4)}, {v(cSEL[h],4)}, 0" for c in range(5) for h in range(2)]
merge(softmax_list(P1, EPk, PH1), tr0, every=4)
stamp(19)
for c in range(5):
    for h in range(2):
        a(f"v_mfma_f32_16x16x32_bf16 {v(D1+4*(2*c+h),4)}, {v(PH1+4*c,4)}, {v(cSEL[h],4)}, 0")
for rt in range(10):
    d = D0 + 4 * rt
    a(f"v_cvt_pk_bf16_f32 v{d}, v{d}, v{d+1}\nv_cvt_pk_bf16_f32 v{d+1}, v{d+2}, v{d+3}")
cwait(C1, 8)
for rt in range(10):
    d = D0 + 4 * rt; e = D1 + 4 * rt
    a(f"v_cvt_pk_bf16_f32 v{d+2}, v{e}, v{e+1}\nv_cvt_pk_bf16_f32 v{d+3}, v{e+2}, v{e+3}")
    a(f"ds_write_b128 v{cPFW}, {v(d,4)} offset:{PF + rt*1024}")
a("s_waitcnt lgkmcnt(0)")
stamp(20)
arrive(CPF)
cwait(CPF, 4)
stamp(5)
KV = 160
BF = 32
AFR = 80
for ci in range(3):
    for tg in range(4):
        if ci == 0: a(f"ds_read_b128 {v(AFR+4*tg,4)}, v{cAF} offset:{tg*10240}")
        ad, of = (cB01, ci * 1024) if ci < 2 else (cB2, 0)
        a(f"ds_read_b128 {v(BF+16*ci+4*tg,4)}, v{ad} offset:{of + tg*5120}")
def kv_mf(j, ci):
    acc = KV + 4 * (3 * j + ci)
    return [f"v_mfma_f32_16x16x32_bf16 {v(acc,4)}, {v(AFR+16*j+4*tg,4)}, {v(BF+16*ci+4*tg,4)}, {v(acc,4) if tg else '0'}" for tg in range(4)]
a("s_waitcnt lgkmcnt(8)")
for tg in range(4): a(f"ds_read_b128 {v(AFR+16+4*tg,4)}, v{cAF} offset:{4096 + tg*10240}")
for m in kv_mf(0, 0): a(m)
a("s_waitcnt lgkmcnt(8)")
for tg in range(4): a(f"ds_read_b128 {v(AFR+32+4*tg,4)}, v{cAF} offset:{8192 + tg*10240}")
for m in kv_mf(0, 1): a(m)
a("s_waitcnt lgkmcnt(8)")
for m in kv_mf(0, 2): a(m)
a("s_waitcnt lgkmcnt(4)")
for ci in range(3):
    for m in kv_mf(1, ci): a(m)
for ci in range(3): a(f"ds_write_b128 v{cPS[ci]}, {v(KV+4*ci,4)}")
a(f"s_waitcnt lgkmcnt(3)\ns_cmp_ge_u32 s{sTG}, 2\ns_cbranch_scc1 L_kvskip")
for ci in range(3):
    for m in kv_mf(2, ci): a(m)
a("s_mov_b32 exec_lo, 0xffff\ns_mov_b32 exec_hi, 0xffff")
for ci in range(3): a(f"ds_write_b128 v{cPS[ci]}, {v(KV+24+4*ci,4)} offset:128")
a("s_mov_b64 exec, -1\nL_kvskip:")
for ci in range(3): a(f"ds_write_b128 v{cPS[ci]}, {v(KV+12+4*ci,4)} offset:64")
a(f"""
  s_lshl_b32 s{sT4}, s{sG}, 9
  s_add_u32 s{sT4}, s{sT4}, {WS_F1}
  s_lshl_b32 s{sT0}, s{sT}, 5
  s_lshl_b32 s{sT3}, s{sTG}, 3
  s_add_u32 s{sT0}, s{sT0}, s{sT3}
  s_add_u32 s{sT0}, s{sT0}, s{sT4}
  v_lshlrev_b32 v{vT[4]}, 4, v0
  v_add_u32 v{vT[4]}, {PST}, v{vT[4]}
  s_waitcnt lgkmcnt(0)
""")
stamp(21)
arrive(CKV)
cwait(CKV, 4)
stamp(22)
for j in range(3): a(f"ds_read_b128 {v(32+4*j,4)}, v{vT[4]} offset:{4096*j}")
for j in range(3):
    a(f"s_waitcnt lgkmcnt({2-j})\nbuffer_store_dwordx4 {v(32+4*j,4)}, v{cGQ[j]}, {srd(SWS)}, s{sPB} offen sc1")
stamp(23)
set_flag(sT0)
arrive(CPS)
stamp(6)
def poll_all(lab, soff, addr, cnt):
    a(f"""
  s_cmp_lg_u32 s{sWV}, 0
  s_cbranch_scc1 {lab}_w
  s_mov_b32 s{sRETRY}, 0
{lab}:
  buffer_load_dwordx2 v[{vT[6]}:{vT[7]}], v{addr}, {srd(SWS)}, s{soff} offen sc1
  s_waitcnt vmcnt(0)
  v_cmp_ne_u32 vcc, s{sNON}, v{vT[6]}
  v_cmp_ne_u32 s[{sM2}:{sM2+1}], s{sNON+1}, v{vT[7]}
  s_or_b64 vcc, vcc, s[{sM2}:{sM2+1}]
  s_add_u32 s{sRETRY}, s{sRETRY}, 1
  s_cmp_gt_u32 s{sRETRY}, 40000
  s_cbranch_scc1 {lab}_d
  s_cmp_eq_u64 vcc, 0
  s_cbranch_scc1 {lab}_d
  s_sleep 1
  s_branch {lab}
{lab}_d:""")
    arrive(cnt, vT[6], vT[7])
    a(f"{lab}_w:")
    cwait(cnt, 1, vT[6], vT[7])
PB = 32
LDF = '' if opt('plain', 1) else ' sc1'
a(f"""
  s_lshl_b32 s{sT5}, s{sG}, 18
  s_mov_b32 s64, 0x11111111
  s_mov_b32 s65, 0x11111111
  s_mov_b32 s{sRETRY}, 0
  v_mov_b32 v{vT[4]}, {CNT + CG}
  s_setprio 0
L_gloop:
  s_cmp_lg_u32 s{sWV}, 0
  s_cbranch_scc1 L_gread
  buffer_load_dwordx2 v[{vT[6]}:{vT[7]}], v{cSA}, {srd(SWS)}, s{sT4} offen sc1
  s_waitcnt vmcnt(0)
  v_cmp_eq_u32 vcc, s{sNON}, v{vT[6]}
  v_cmp_eq_u32 s[{sM2}:{sM2+1}], s{sNON+1}, v{vT[7]}
  s_and_b64 vcc, vcc, s[{sM2}:{sM2+1}]
  s_lshr_b64 s[{sM2}:{sM2+1}], vcc, 1
  s_and_b64 vcc, vcc, s[{sM2}:{sM2+1}]
  s_lshr_b64 s[{sM2}:{sM2+1}], vcc, 2
  s_and_b64 vcc, vcc, s[{sM2}:{sM2+1}]
  v_mov_b32 v{vT[6]}, vcc_lo
  v_mov_b32 v{vT[7]}, vcc_hi
  ds_write_b64 v{vT[4]}, v[{vT[6]}:{vT[7]}]
L_gread:
  ds_read_b64 v[{vT[6]}:{vT[7]}], v{vT[4]}
  s_waitcnt lgkmcnt(0)
  v_readfirstlane_b32 s{sM2}, v{vT[6]}
  v_readfirstlane_b32 s{sM2+1}, v{vT[7]}
  s_add_u32 s{sRETRY}, s{sRETRY}, 1
  s_cmp_gt_u32 s{sRETRY}, 400000
  s_cbranch_scc1 L_gdone
  s_and_b64 s[{sM2}:{sM2+1}], s[{sM2}:{sM2+1}], s[64:65]
  s_cbranch_scc1 L_gnew
  s_sleep 2
  s_branch L_gloop
L_gnew:
  s_andn2_b64 s[64:65], s[64:65], s[{sM2}:{sM2+1}]
""")
for p in range(16):
    lab = f"L_gl{p}"
    a(f"s_bitcmp1_b64 s[{sM2}:{sM2+1}], {4*p}\ns_cbranch_scc0 {lab}")
    a(f"s_add_u32 s{sT2}, s{sT5}, {p*16384}")
    for j in range(3):
        a(f"buffer_load_dwordx4 {v(PB+12*p+4*j,4)}, v{cGQ[j]}, {srd(SWS)}, s{sT2} offen{LDF}")
    a(f"{lab}:")
a(f"""
  s_cmp_lg_u64 s[64:65], 0
  s_cbranch_scc1 L_gloop
L_gdone:
  s_setprio 3
""")
stamp(7)
a("s_waitcnt vmcnt(0)")
stamp(8)
for p in range(1, 16):
    for q in range(0, 12, 2):
        a(f"v_pk_add_f32 {v(PB+q,2)}, {v(PB+q,2)}, {v(PB+12*p+q,2)}")
for j in range(3):
    r = PB + 4 * j
    a(f"v_cvt_pk_bf16_f32 v{r}, v{r}, v{r+1}\nv_cvt_pk_bf16_f32 v{r+1}, v{r+2}, v{r+3}")
a(f"ds_write_b64 v{cLQ[0]}, {v(PB,2)}\nds_write_b64 v{cLQ[1]}, {v(PB+4,2)}")
a(f"""
  v_cmp_gt_u32 vcc, {684-512}, v0
  s_and_saveexec_b64 s[94:95], vcc
  ds_write_b64 v{cLQ[2]}, {v(PB+8,2)}
  s_mov_b64 exec, -1
  v_mul_u32_u24 v{vT[0]}, 80, v0
  v_add_u32 v{vT[0]}, {KVT+72}, v{vT[0]}
  v_mov_b32 v{vT[2]}, 0
  v_mov_b32 v{vT[3]}, 0
  v_cmp_gt_u32 vcc, 76, v0
  s_and_saveexec_b64 s[94:95], vcc
  ds_write_b64 v{vT[0]}, v[{vT[2]}:{vT[3]}]
  s_mov_b64 exec, -1
  s_mul_i32 s{sT2}, s{sTG}, 5120
  s_add_u32 s{sT2}, s{sT2}, {PQ}
  v_add_u32 v{vT[0]}, s{sT2}, v{cL16}
  v_bfe_u32 v{vT[3]}, v{vLANE}, 2, 2
  v_lshl_add_u32 v{vT[1]}, v{vG}, 2, v{vT[3]}
  v_and_b32 v{vT[2]}, 3, v{vLANE}
  s_movk_i32 s{sT3}, 144
  v_mul_u32_u24 v{vT[1]}, s{sT3}, v{vT[1]}
  v_lshl_add_u32 v{vRA[0]}, v{vT[2]}, 3, v{vT[1]}
  s_waitcnt lgkmcnt(0)
  s_barrier
""")
stamp(9)
KPHQ = 180; KOUT = 136; KNB = 32
for c in range(5): a(f"ds_read_b128 {v(KPHQ+4*c,4)}, v{vT[0]} offset:{c*1024}")
num_and_store(KPHQ, KNB, KOUT, cKV, False)
OF = 32
FB = 144; NFB = 8
CACC = 176
pc_setup()
a(f"""
  v_lshlrev_b32 v{vT[5]}, 2, v{vN}
  v_lshlrev_b32 v{vT[9]}, 3, v{vLANE}
  s_lshl_b32 s{sT3}, s{sTB}, 9
  s_add_u32 s{sPEND}, s{sT3}, {WS_F2}
  v_add_u32 v{vRA[1]}, 65536, v{vRA[0]}
  s_barrier
""")
stamp(27)
a("s_setprio 1")
poll_all("L_opoll", sPEND, vT[9], CO)
a(f"""
  buffer_load_dword v{vT[6]}, v{vT[5]}, {srd(SWS)}, s{sPB} offen{LDF}
  buffer_load_dword v{vT[7]}, v{vT[5]}, {srd(SWS)}, s{sPB} offen offset:64{LDF}
""")
stamp(11)
for ks in range(NKL):
    for tt in range(2):
        a(f"buffer_load_dwordx4 {v(OF+8*ks+4*tt,4)}, v{vT[ks//4]}, {srd(SWS)}, s{sT5 if tt==0 else sT4} offen offset:{(ks%4)*1024}{LDF}")
stamp(26)
a(f"s_cmp_eq_u32 s{sT0}, 1\ns_cbranch_scc1 L_pc_b1")
def phaseC(b):
    seq = [(ks, t) for ks in range(NKL) for t in range(5)]
    def rd(i):
        ks, t = seq[i]
        ad = wo_addr[b * 18 + ks]
        return [f"ds_read_b64_tr_b16 {v(FB+4*(i%NFB)+2*hh,2)}, v{vRA[(ad + hh*2304 + 32*t) >> 16]} offset:{(ad + hh*2304 + 32*t) & 0xffff}" for hh in range(2)]
    DEPTH = 6
    for i in range(DEPTH):
        for x_ in rd(i): a(x_)
    for i, (ks, t) in enumerate(seq):
        w = []
        if t == 0: w.append(f"vmcnt({2*(NKL-1-ks)})")
        w.append(f"lgkmcnt({2*min(DEPTH-1, len(seq)-1-i)})")
        a("s_waitcnt " + " ".join(w))
        if ks == 5 and t == 0:
            arrive(CK4, vT[10], vT[11])
            a("s_waitcnt lgkmcnt(0)")
        nx = rd(i + DEPTH) if i + DEPTH < len(seq) else []
        for tt in range(2):
            acc = CACC + 20 * tt + 4 * t
            a(f"v_mfma_f32_16x16x32_bf16 {v(acc,4)}, {v(FB+4*(i%NFB),4)}, {v(OF+8*ks+4*tt,4)}, {v(acc,4) if ks else '0'}")
            if nx: a(nx[tt])
phaseC(0)
a("s_branch L_pc_done")
a("L_pc_b1:")
phaseC(1)
a("L_pc_done:")
stamp(12)
cwait(CQX, 4, vT[10], vT[11])
a(f"s_mul_i32 s{sT2}, s{sTG}, 10240\ns_add_u32 s{sT2}, s{sT2}, {QX}\nv_add_u32 v{vT[1]}, s{sT2}, v{vT[0]}")
for i in range(10): a(f"ds_read_b128 {v(100+4*i,4)}, v{vT[1]} offset:{1024*i}")
for i in range(10):
    a(f"s_waitcnt lgkmcnt({9-i})")
    a(f"v_pk_add_f32 {v(CACC+4*i,2)}, {v(CACC+4*i,2)}, {v(100+4*i,2)}\nv_pk_add_f32 {v(CACC+4*i+2,2)}, {v(CACC+4*i+2,2)}, {v(102+4*i,2)}")
E0 = 32
for i in range(20):
    a(f"v_cvt_pk_bf16_f32 v{E0+i}, v{CACC+2*i}, v{CACC+2*i+1}")
a(f"""
  s_cmp_eq_u32 s{sT0}, 1
  s_cselect_b64 vcc, -1, 0
  v_cndmask_b32 v{vT[6]}, v{vT[6]}, v{vT[7]}, vcc
  v_cvt_pk_bf16_f32 v{vT[6]}, v{vT[6]}, v{vT[6]}
  v_lshlrev_b32 v{vT[6]}, 16, v{vT[6]}
  v_mul_f32 v{vT[6]}, s{sL+2}, v{vT[6]}
  v_exp_f32 v{vT[6]}, v{vT[6]}
  v_add_f32 v{vT[6]}, 1.0, v{vT[6]}
  v_rcp_f32 v{vT[6]}, v{vT[6]}
  v_cvt_pk_bf16_f32 v{vT[6]}, v{vT[6]}, v{vT[6]}
  v_lshlrev_b32 v{vT[6]}, 16, v{vT[6]}
  v_sub_f32 v{vT[7]}, 1.0, v{vT[6]}
  v_cvt_pk_bf16_f32 v{vT[7]}, v{vT[7]}, v{vT[7]}
  v_lshlrev_b32 v{vT[7]}, 16, v{vT[7]}
  v_cndmask_b32 v{vT[8]}, v{vT[6]}, v{vT[7]}, vcc
  v_cndmask_b32 v{vT[10]}, v{vT[7]}, v{vT[6]}, vcc
""")
for i in range(10):
    a(f"v_cndmask_b32 v{E0+20+i}, v{E0+10+i}, v{E0+i}, vcc\nv_cndmask_b32 v{E0+32+i}, v{E0+i}, v{E0+10+i}, vcc")
a(f"""
  s_mul_i32 s{sT2}, s{sWV}, 3072
  v_add_u32 v{vT[1]}, s{sT2}, v{vT[0]}
  s_xor_b32 s{sT3}, s{sWV}, 2
  s_mul_i32 s{sT3}, s{sT3}, 3072
  v_add_u32 v{vT[2]}, s{sT3}, v{vT[0]}
  v_add_u32 v{vT[1]}, {EPI}, v{vT[1]}
  v_add_u32 v{vT[2]}, {EPI}, v{vT[2]}
  ds_write_b128 v{vT[1]}, {v(E0+20,4)}
  ds_write_b128 v{vT[1]}, {v(E0+24,4)} offset:1024
  ds_write_b64 v{vT[1]}, {v(E0+28,2)} offset:2048
  v_mov_b32 v{vT[5]}, {CNT+CE}
  v_mov_b32 v{vT[9]}, 1
  s_waitcnt lgkmcnt(0)
  s_mov_b64 exec, 1
  ds_add_u32 v{vT[5]}, v{vT[9]}
  s_mov_b64 exec, -1
  s_lshl_b32 s{sT2}, s{sTB}, 6
  s_lshl_b32 s{sT3}, s{sT1}, 5
  s_add_u32 s{sT2}, s{sT2}, s{sT3}
  s_lshl_b32 s{sT3}, s{sT0}, 4
  s_add_u32 s{sT2}, s{sT2}, s{sT3}
  v_add_u32 v{vT[3]}, s{sT2}, v{vN}
  s_movk_i32 s{sT3}, 1152
  v_mul_lo_u32 v{vT[3]}, v{vT[3]}, s{sT3}
  v_lshl_add_u32 v{vT[3]}, v{vG}, 3, v{vT[3]}
  s_mul_i32 s{sT3}, s{sCB}, 144
  v_add_u32 v{vT[3]}, s{sT3}, v{vT[3]}
  v_cmp_lt_u32 vcc, 1, v{vG}
  v_mov_b32 v{vT[4]}, {BIG}
  v_cndmask_b32 v{vT[4]}, v{vT[3]}, v{vT[4]}, vcc
""")
W0 = 80
for i in range(10):
    r = E0 + 32 + i
    a(f"""
  v_lshlrev_b32 v{W0+2*i}, 16, v{r}
  v_and_b32 v{W0+2*i+1}, 0xffff0000, v{r}
  v_pk_mul_f32 {v(W0+2*i,2)}, {v(W0+2*i,2)}, {v(vT[8],2)} op_sel_hi:[1,0]
  v_cvt_pk_bf16_f32 v{r}, v{W0+2*i}, v{W0+2*i+1}
  v_lshlrev_b32 v{W0+2*i}, 16, v{r}
  v_and_b32 v{W0+2*i+1}, 0xffff0000, v{r}
""")
cwait(CE, 4, vT[5], vT[9])
a(f"""
  ds_read_b128 {v(E0+20,4)}, v{vT[2]}
  ds_read_b128 {v(E0+24,4)}, v{vT[2]} offset:1024
  ds_read_b64 {v(E0+28,2)}, v{vT[2]} offset:2048
  s_waitcnt lgkmcnt(0)
""")
for t in range(5):
    for h in range(2):
        i = 2 * t + h
        r = E0 + 20 + i; w = W0 + 20 + 2 * (i & 1)
        a(f"""
  v_lshlrev_b32 v{w}, 16, v{r}
  v_and_b32 v{w+1}, 0xffff0000, v{r}
  v_pk_mul_f32 {v(w,2)}, {v(w,2)}, {v(vT[10],2)} op_sel_hi:[1,0]
  v_cvt_pk_bf16_f32 v{r}, v{w}, v{w+1}
  v_lshlrev_b32 v{w}, 16, v{r}
  v_and_b32 v{w+1}, 0xffff0000, v{r}
  v_pk_add_f32 {v(w,2)}, {v(w,2)}, {v(W0+2*i,2)}
  v_cvt_pk_bf16_f32 v{E0+i}, v{w}, v{w+1}
""")
    a(f"buffer_store_dwordx2 {v(E0+2*t,2)}, v{vT[3] if t < 4 else vT[4]}, {srd(SOUT)}, 0 offen offset:{32*t}")
stamp(13)
a("s_branch L_fin")

a("L_qpost:")
a("s_waitcnt lgkmcnt(0)")
for m in stage2_mfmas(P0, A2L, KB0): a(m)
for m in stage2_mfmas(P1, A2L, KB1): a(m)
cwait(C1, 4)
for kk in grpR + grpA: a(wo_item2(kk, cW2))
stamp(7)
QS = [32 + 4 * i for i in range(20)]
tr_base(vRA[0])
a(f"s_lshr_b32 s{sT3}, s{sTG}, 1\ns_mul_i32 s{sT3}, s{sT3}, {KST}\nv_add_u32 v{vRA[0]}, s{sT3}, v{vRA[0]}\nv_add_u32 v{vRA[1]}, 65536, v{vRA[0]}")
a(f"s_waitcnt vmcnt({2*len(grpA)})")
arrive(CQA); cwait(CQA, 4)
for j in range(4):
    for t in range(5):
        for hh in range(2):
            o = wo_addr[14 + j] + hh * 2304 + 32 * t
            assert wo_addr[18 + 14 + j] == wo_addr[14 + j] + KST
            a(f"ds_read_b64_tr_b16 {v(QS[5*j+t]+2*hh,2)}, v{vRA[o >> 16]} offset:{o & 0xffff}")
a("s_waitcnt lgkmcnt(0)")
arrive(CQB); cwait(CQB, 4)
for kk in grpC: a(wo_item2(kk, cW2))
for x in softmax_list(P0, EPk, PH0): a(x)
cwait(CPS, 4)
for kk in grpB: a(wo_item2(kk, cW2))
a(f"s_mul_i32 s{sT2}, s{sTG}, 5120\ns_add_u32 s{sT2}, s{sT2}, {PQ}\nv_add_u32 v{vT[8]}, s{sT2}, v{cL16}")
for c in range(5): a(f"ds_write_b128 v{vT[8]}, {v(PH0+4*c,4)} offset:{c*1024}")
for x in softmax_list(P1, EPk, PH1): a(x)
a("s_waitcnt lgkmcnt(0)")
stamp(8)
a("s_barrier")
stamp(9)
num_and_store(PH1, 112, 164, cKV, True)
pc_setup()
a("s_setprio 3")
a("s_barrier")
cwait(CO, 1, vT[10], vT[11])
for j in range(4):
    ks = 14 + j
    for tt in range(2):
        a(f"buffer_load_dwordx4 {v(112+8*j+4*tt,4)}, v{vT[ks//4]}, {srd(SWS)}, s{sT5 if tt==0 else sT4} offen offset:{(ks%4)*1024}{LDF}")
for j in range(4):
    a(f"s_waitcnt vmcnt({2*(3-j)})")
    for t in range(5):
        for tt in range(2):
            acc = 164 + 20 * tt + 4 * t
            a(f"v_mfma_f32_16x16x32_bf16 {v(acc,4)}, {v(QS[5*j+t],4)}, {v(112+8*j+4*tt,4)}, {v(acc,4) if j else '0'}")
cwait(CK4, 4, vT[10], vT[11])
a(f"s_mul_i32 s{sT2}, s{sTG}, 10240\ns_add_u32 s{sT2}, s{sT2}, {QX}\nv_add_u32 v{vT[1]}, s{sT2}, v{vT[0]}")
for i in range(10): a(f"ds_write_b128 v{vT[1]}, {v(164+4*i,4)} offset:{1024*i}")
a("s_waitcnt lgkmcnt(0)")
arrive(CQX, vT[10], vT[11])
a("L_fin:")
if STAMPS:
    a(f"""
  s_and_b32 s{sT2}, s{sWV}, 3
  s_cmp_lg_u32 s{sT2}, 0
  s_cbranch_scc1 L_end
  s_waitcnt vmcnt(0)
  s_memrealtime s[94:95]
  s_waitcnt lgkmcnt(0)
  v_writelane_b32 v{vSTAMP}, s94, 14
  s_getreg_b32 s94, hwreg(HW_REG_XCC_ID)
  s_getreg_b32 s95, hwreg(HW_REG_HW_ID)
  v_writelane_b32 v{vSTAMP}, s94, 15
  v_writelane_b32 v{vSTAMP}, s95, 16
  v_lshlrev_b32 v{vT[0]}, 2, v{vLANE}
  DBGCODE
  s_lshl_b32 s{sT2}, s2, 9
  s_lshl_b32 s{sT3}, s{sROLE}, 8
  s_add_u32 s{sT2}, s{sT2}, s{sT3}
  s_add_u32 s{sT2}, s{sT2}, {WS_DBG}
  buffer_store_dword v{vSTAMP}, v{vT[0]}, {srd(SWS)}, s{sT2} offen
""")
a("L_end:\n  s_endpgm")
for i_, l_ in enumerate(a.lines):
    if 'DBGCODE' in l_:
        a.lines[i_] = (f"""  s_cmp_lg_u32 s{sROLE}, 0
  s_cbranch_scc1 L_nodbg
  v_not_b32 v{vT[1]}, v{vSTAMP}
  v_cmp_eq_u32 vcc, 0, v{vLANE}
  s_nop 1
  v_cndmask_b32 v{vT[1]}, v{vSTAMP}, v{vT[1]}, vcc
  v_add_u32 v{vT[2]}, 8, v{vT[0]}
  s_mov_b32 exec_lo, 0x7fff
  s_mov_b32 exec_hi, 0
  buffer_atomic_umax v{vT[1]}, v{vT[2]}, {srd(SDBG)}, 0 offen
  s_mov_b64 exec, -1
L_nodbg:""" if opt('dbg', 0) else "")

hdr = open('cdna_kernels/' + NAME + '.s.ref').read().split('; Override launch')[0]
out = kernel_file(a.text(), "grid=(256,1,1) block=(512,1,1) lds=163840", 256, hdr_comment=hdr)
outp = [x for x in sys.argv[1:] if not x.startswith('--') and not x.startswith('o:')]
open(outp[0] if outp else 'k.s', 'w').write(out)
```

```python
import sys
from asmlib import *

STAMPS = '--stamps' in sys.argv
OPT = dict(x[2:].split('=') for x in sys.argv if x.startswith('o:'))
def opt(k, d): return type(d)(OPT.get(k, d))
NB0 = opt('nb0', 3)
PP = opt('pp', 1)

XSL = 16384; NXS = 3
WSL = 16384; NWS = 6; W0L = NXS * XSL
assert W0L + NWS * WSL <= 156672
KST = 4608
TAB = 34 * KST
T2 = TAB
GW = TAB + 3840
ZR = GW + 1152
CNT = ZR + 1408
PF = 0; HX = 0
VF = 135680
wq_addr = [65536 + 4608 * i for i in range(14)] + [49152 + 4608 * i for i in range(3)] + [41472]
def wq_time(i):
    lo, hi = wq_addr[i], wq_addr[i] + 4608
    if lo < 65536: return 18
    if opt('wqlate', 1): return 17
    return 12 + (hi - 1 - 49152) // 16384
PST = 0
KVT = PST
PQ = 81920
OST = PQ
EPI = 8192
HU = 2304
regions = [(0, 6400, 'Z'), (6400, 40960, 'B'), (40960, 81920, 'A'), (81920, 102400, 'Z'),
           (102400, 135680, 'A'), (135680, 156160, 'B'), (156160, 156672, 'A'), (156672, 161664, 'Z')]
units = []
for u in range(161664 // HU):
    lo, hi = u * HU, (u + 1) * HU
    units.append((max(t for a_, b_, t in regions if a_ < hi and lo < b_), lo))
units.sort()
need_order = [(b * 18 + ks, hh) for ks in range(18) for b in range(2) for hh in range(2) if b * 18 + ks != 35]
uA = [lo for t, lo in units if t == 'A']; uB = [lo for t, lo in units if t == 'B']; uZ = [lo for t, lo in units if t == 'Z']
save_u = [uB.pop(), uB.pop()]
uZ += save_u
wo_addr = {(35, 0): save_u[0], (35, 1): save_u[1]}
grp = {'A': [], 'B': [(35, 0), (35, 1)], 'Z': []}
it_ = iter(need_order)
for t, lst in ((('B', uB), ('A', uA), ('Z', uZ)) if opt('wolate', 0) == 3 else (('A', uA), ('B', uB), ('Z', uZ))):
    for lo in lst:
        x_ = next(it_, None)
        if x_ is None: break
        wo_addr[x_] = lo; grp[t].append(x_)
assert next(it_, None) is None, "wo does not fit"
if opt('wolate', 0) == 3:
    grp['Z'] = grp['A'] + grp['Z']; grp['A'] = []
if opt('wolate', 0) in (1, 2):
    grp['Z'] = grp['B'][2:] + grp['Z']; grp['B'] = grp['B'][:2]
if opt('wolate', 0) == 2:
    grp['Z'] = grp['A'] + grp['Z']; grp['A'] = []
C1, CPF, CKV, CPS, CKD, CK4, CO, CE, CG = 0, 4, 8, 12, 16, 24, 32, 36, 40
CWA, CWD = 64, 128

WS_O = 4 << 20; WS_GATE = 10 << 20; WS_DBG = 16 << 20
WS_F1 = 11 << 20; WS_F2 = 12 << 20; WS_F4 = 13 << 20; WS_WOC = 14 << 20
sNON = 80
vNON = 12
BIG = 0x7FFF0000

SX, SW, SWS, SWOA, SWOB, SOUT, SDBG, SPHI, SGATE = 4, 8, 12, 16, 20, 24, 28, 32, 36
def srd(s): return f"s[{s}:{s+3}]"
sT, sG, sB, sHQ, sWV, sTG, sROLE, sK, sT0, sT1, sT2, sT3 = 40, 41, 42, 43, 44, 45, 46, 47, 48, 49, 50, 51
sMX, sMWA, sMQ2, sMQ = 52, 53, 54, 55
sROT, sTB, sCB, sRETRY = 56, 57, 58, 59
sL = 60
sPA = 64
sWOC = 66; sMASK = 88; sPEND = 90; sT4, sT5 = 91, 92; sTILE = 93
sPB = 96; sH144 = 97; sPW = 98; sTH = 99; sM2 = 100

vLANE, vN, vG = 1, 2, 3
vT = list(range(4, 16))
vXOFF, vWA, vWB, vWQ, vWO = 16, 17, 18, 19, 20
vRA = [21, 22, 23, 24, 25]
vRX = [26, 27]
vOST = [28, 29, 30]
vSTAMP = 31
vXOFF2 = 15
XB, ACC, RING, NRING = 32, 64, 204, 5
QX0, QACC, QRING = 32, 176, 216
KC = 224
cPS = [KC + i for i in range(3)]
cAF, cB01, cB2 = KC + 3, KC + 4, KC + 5
cGQ = [KC + 8, KC + 9, KC + 10]; cLQ = [KC + 11, KC + 12, KC + 13]
cSA, cSB = KC + 14, KC + 15
cSEL = [KC + 16, KC + 20]
cA2, cKV, cL16, cPFW, cW2 = KC + 24, KC + 25, KC + 26, KC + 27, KC + 28

a = Asm()
def stamp(idx):
    if not STAMPS: return
    a(f"s_memrealtime s[94:95]\ns_waitcnt lgkmcnt(0)\nv_writelane_b32 v{vSTAMP}, s94, {idx}")
def v(i, n=1): return f"v{i}" if n == 1 else f"v[{i}:{i+n-1}]"
class VM:
    def __init__(self, ops=()): self.ops = list(ops)
    def add(self, tag, n=1): self.ops += [tag] * n
    def wait_for(self, tag):
        idx = max(i for i, t in enumerate(self.ops) if t == tag)
        return min(63, len(self.ops) - 1 - idx)
vm = VM()
def interleave(main, fill, per=1):
    fill = list(fill)
    for m in main:
        a(m)
        for _ in range(per):
            if fill: a(fill.pop(0))
    for f in fill: a(f)
nl = [0]
def arrive(c, t0=vT[0], t1=vT[1]):
    a(f"""
  v_mov_b32 v{t0}, {CNT + c}
  v_mov_b32 v{t1}, 1
  s_mov_b64 exec, 1
  ds_add_u32 v{t0}, v{t1}
  s_mov_b64 exec, -1""")
HI = [0]
def cwait(c, n, t0=vT[0], t1=vT[1]):
    _cwait(c, n, t0, t1)
    if HI[0]: a(f"s_setprio {HI[0]}")
def _cwait(c, n, t0, t1):
    nl[0] += 1; L = f"L_cw{nl[0]}"
    a(f"""
  v_mov_b32 v{t0}, {CNT + c}
  s_mov_b32 s{sRETRY}, 0
{L}:
  ds_read_b32 v{t1}, v{t0}
  s_waitcnt lgkmcnt(0)
  v_readfirstlane_b32 s{sT2}, v{t1}
  s_add_u32 s{sRETRY}, s{sRETRY}, 1
  s_cmp_gt_u32 s{sRETRY}, 2000000
  s_cbranch_scc1 {L}d
  s_cmp_ge_u32 s{sT2}, {n}
  s_cbranch_scc1 {L}d
  s_setprio 0
  s_sleep 1
  s_branch {L}
{L}d:""")

a(f"""
  s_cmp_ge_u32 s2, 256
  s_cbranch_scc1 L_end
  s_load_dwordx16 s[64:79], s[0:1], 0
  s_load_dwordx8 s[80:87], s[0:1], 64
  s_getpc_b64 s[94:95]
L_pc:
  v_and_b32 v{vLANE}, 63, v0
  v_lshrrev_b32 v{vT[0]}, 6, v0
  s_lshr_b32 s{sT1}, s2, 3
  s_and_b32 s{sT0}, s2, 7
  v_readfirstlane_b32 s{sPW}, v{vT[0]}
  s_cmp_ge_u32 s{sPW}, 2
  s_cbranch_scc1 L_nopf
  s_lshl_b32 s{sT2}, s{sPW}, 5
  s_add_u32 s{sT2}, s{sT2}, s{sT1}
  s_lshl_b32 s{sT2}, s{sT2}, 10
  v_lshlrev_b32 v{vT[1]}, 4, v{vLANE}
  v_add_u32 v{vT[1]}, s{sT2}, v{vT[1]}
  v_min_u32 v{vT[1]}, L_end-L_pc, v{vT[1]}
  global_load_dword v{63}, v{vT[1]}, s[94:95]
L_nopf:
""")
if STAMPS: a(f"v_mov_b32 v{vSTAMP}, 0")
stamp(0)
a(f"""
  s_and_b32 s{sT}, s{sT0}, 1
  s_lshl_b32 s{sT}, s{sT}, 3
  s_and_b32 s{sT2}, s{sT1}, 7
  s_add_u32 s{sT}, s{sT}, s{sT2}
  s_lshr_b32 s{sG}, s{sT0}, 1
  s_lshl_b32 s{sG}, s{sG}, 2
  s_lshr_b32 s{sT3}, s{sT1}, 3
  s_add_u32 s{sG}, s{sG}, s{sT3}
  s_lshr_b32 s{sB}, s{sG}, 3
  s_and_b32 s{sHQ}, s{sG}, 7
  s_mul_i32 s{sT2}, s{sT2}, 9
  s_lshr_b32 s{sT2}, s{sT2}, 3
  s_mul_i32 s{sT3}, s{sT3}, 9
  s_lshr_b32 s{sT3}, s{sT3}, 2
  s_add_u32 s{sROT}, s{sT2}, s{sT3}
  s_sub_u32 s{sT2}, s{sROT}, 9
  s_cmp_ge_u32 s{sROT}, 9
  s_cselect_b32 s{sROT}, s{sT2}, s{sROT}
  s_lshl_b32 s{sROT}, s{sROT}, 1
  s_and_b32 s{sTB}, s{sT1}, 3
  s_lshl_b32 s{sT2}, s{sT0}, 2
  s_add_u32 s{sTB}, s{sTB}, s{sT2}
  s_lshr_b32 s{sCB}, s{sT1}, 2
  s_lshl_b32 s{sT2}, s{sPW}, 2
  s_lshr_b32 s{sWV}, 0x76543120, s{sT2}
  s_and_b32 s{sWV}, s{sWV}, 7
  s_and_b32 s{sTG}, s{sWV}, 3
  s_lshr_b32 s{sROLE}, s{sWV}, 2
  s_and_b32 s{sTH}, s{sPW}, 1
  v_and_b32 v{vN}, 15, v{vLANE}
  v_lshrrev_b32 v{vG}, 4, v{vLANE}
  v_mov_b32 v15, 0
  v_mov_b32 v16, 0
  v_mov_b32 v21, 0
  v_mov_b32 v22, 0
  v_mov_b32 v152, 0x7fff0000
  v_mov_b32 v153, 0x7fff0000
  v_mov_b32 v{cGQ[0]}, 0
  v_mov_b32 v{cGQ[1]}, 0
  v_mov_b32 v{cGQ[2]}, 0
  v_mov_b32 v{cSA}, 0
  s_mul_i32 s{sH144}, s{sHQ}, 144
  s_mov_b32 s{SX+2}, {2048*1152}
  s_mov_b32 s{SX+3}, 0x00020000
  s_mov_b32 s{SW+2}, {576*3456}
  s_mov_b32 s{SW+3}, 0x00020000
  s_mov_b32 s{SPHI+2}, {32*648}
  s_mov_b32 s{SPHI+3}, 0x00020000
  s_mov_b32 s{SWS+2}, 0x10000000
  s_mov_b32 s{SWS+3}, 0x00020000
  s_mov_b32 s{SWOA+2}, {576*1152}
  s_mov_b32 s{SWOA+3}, 0x00020000
  s_mov_b32 s{SWOB+2}, {576*1152}
  s_mov_b32 s{SWOB+3}, 0x00020000
  s_mov_b32 s{SOUT+2}, {2048*1152}
  s_mov_b32 s{SOUT+3}, 0x00020000
  s_mov_b32 s{SDBG+2}, 256
  s_mov_b32 s{SDBG+3}, 0x00020000
  s_mov_b32 s{SGATE+2}, 1152
  s_mov_b32 s{SGATE+3}, 0x00020000
""")
def srd_bases():
    a(f"""
  s_cmp_eq_u32 s{sB}, 1
  s_waitcnt lgkmcnt(0)
  s_mov_b32 s{SX}, s64
  s_mov_b32 s{SX+1}, s65
  s_cselect_b32 s{SW}, s74, s66
  s_cselect_b32 s{SW+1}, s75, s67
  s_cselect_b32 s{SPHI}, s76, s68
  s_cselect_b32 s{SPHI+1}, s77, s69
  s_mov_b32 s{SGATE}, s80
  s_mov_b32 s{SGATE+1}, s81
""")
def srd_rest():
    a(f"""
  s_mov_b32 s{SWS}, s86
  s_mov_b32 s{SWS+1}, s87
  s_mov_b32 s{SWOA}, s70
  s_mov_b32 s{SWOA+1}, s71
  s_mov_b32 s{SWOB}, s78
  s_mov_b32 s{SWOB+1}, s79
  s_mov_b32 s{SOUT}, s82
  s_mov_b32 s{SOUT+1}, s83
  s_mov_b32 s{SDBG}, s84
  s_mov_b32 s{SDBG+1}, s85
""")
def dma_off(ci, nper):
    magic = {30: (0x8889, 20), 9: (0xE38F, 19)}[nper]
    t = vT
    a(f"""
  s_mov_b32 s{sT3}, {magic[0]}
  v_mul_u32_u24 v{t[3]}, s{sT3}, v{ci}
  v_lshrrev_b32 v{t[3]}, {magic[1]}, v{t[3]}
  v_mul_u32_u24 v{t[4]}, {nper}, v{t[3]}
  v_sub_u32 v{t[4]}, v{ci}, v{t[4]}
""")
    if nper == 30:
        a(f"v_and_b32 v{t[5]}, 1, v{t[3]}\nv_xor_b32 v{t[4]}, v{t[4]}, v{t[5]}")
    a(f"""
  v_bfe_u32 v{t[5]}, v{t[3]}, 2, 2
  v_lshlrev_b32 v{t[5]}, 3, v{t[5]}
  v_lshrrev_b32 v{t[6]}, 4, v{t[3]}
  v_lshl_add_u32 v{t[5]}, v{t[6]}, 2, v{t[5]}
  v_and_b32 v{t[6]}, 3, v{t[3]}
  v_add_u32 v{t[5]}, v{t[5]}, v{t[6]}
""")
    return t[5], t[4]
def w_offs():
    a(f"""
  v_lshrrev_b32 v{vT[3]}, 5, v{vLANE}
  s_lshl_b32 s{sT2}, s{sT4}, 1
  v_add_u32 v{vT[3]}, s{sT2}, v{vT[3]}          ; rho&7
  v_and_b32 v{vT[4]}, 1, v{vT[3]}
  v_lshl_add_u32 v{vT[4]}, v{vT[3]}, 1, v{vT[4]}  ; swz16
  v_and_b32 v{vT[5]}, 31, v{vLANE}
  v_xor_b32 v{vT[4]}, v{vT[4]}, v{vT[5]}        ; unit
  v_lshrrev_b32 v{vT[8]}, 4, v{vT[4]}           ; seg
  v_and_b32 v{vT[9]}, 15, v{vT[4]}              ; j16
  v_lshrrev_b32 v{vT[6]}, 2, v{vT[3]}
  v_lshlrev_b32 v{vT[6]}, 3, v{vT[6]}
  v_and_b32 v{vT[7]}, 3, v{vT[3]}
  v_add_u32 v{vT[6]}, v{vT[6]}, v{vT[7]}        ; k for j=0
  s_movk_i32 s{sT3}, 3456
  v_mul_u32_u24 v{vT[5]}, s{sT3}, v{vT[6]}
  v_lshl_add_u32 v{vT[5]}, v{vT[9]}, 4, v{vT[5]}
  v_add_u32 v{vT[5]}, s{sH144}, v{vT[5]}
  s_movk_i32 s{sT3}, 1152
  v_mad_u32_u24 v{vT[6]}, v{vT[8]}, s{sT3}, v{vT[5]}
  v_add_u32 v{vT[6]}, 1152, v{vT[6]}            ; k / v
  s_mov_b32 s{sT3}, {32*3456}
  v_mad_u32_u24 v{vT[5]}, v{vT[8]}, s{sT3}, v{vT[5]}
  v_cmp_lt_u32 vcc, 8, v{vT[9]}
  v_mov_b32 v{vT[8]}, {BIG}
  v_cndmask_b32 v{vWL[0]}, v{vT[6]}, v{vT[8]}, vcc
  v_cndmask_b32 v{vWL[1]}, v{vT[5]}, v{vT[8]}, vcc
""")
sK2 = 3
vWL = [21, 22, 23, 24]
def x_items(pr):
    sl = (pr % NXS) * XSL
    return f"""
  s_lshl_b32 s{sT2}, s{sK}, 6
  s_add_u32 s{sT3}, s{sT2}, {16*1152}
  s_add_u32 m0, s{sMX}, {sl}
  buffer_load_dwordx4 v{vXOFF}, {srd(SX)}, s{sT2} offen lds
  s_add_u32 m0, s{sMX}, {sl + 1024}
  buffer_load_dwordx4 v{vXOFF2}, {srd(SX)}, s{sT2} offen lds
  s_add_u32 m0, s{sMX}, {sl + 2048}
  buffer_load_dwordx4 v{vXOFF}, {srd(SX)}, s{sT3} offen lds
  s_add_u32 m0, s{sMX}, {sl + 3072}
  buffer_load_dwordx4 v{vXOFF2}, {srd(SX)}, s{sT3} offen lds
  s_add_u32 s{sK}, s{sK}, 2
  s_cmp_eq_u32 s{sK}, 18
  s_cselect_b32 s{sK}, 0, s{sK}"""
def w_items(ks):
    sl = ((ks + 1) % NWS) * WSL
    o = f"\n  s_mul_i32 s{sT3}, s{sK2}, {32*3456}"
    for j, dk in enumerate((0, 16, 4, 20)):
        if j: o += f"\n  s_add_u32 s{sT2}, s{sT3}, {dk*3456}"
        o += f"""
  s_add_u32 m0, s{sMWA}, {sl + 4096*j}
  buffer_load_dwordx4 v{vWL[0]}, {srd(SW)}, s{sT2 if j else sT3} offen lds"""
    return o + f"""
  s_add_u32 s{sK2}, s{sK2}, 1
  s_cmp_eq_u32 s{sK2}, 18
  s_cselect_b32 s{sK2}, 0, s{sK2}"""
def issue_q(i):
    a(f"""
  s_mul_i32 s{sT3}, s{sK2}, {32*3456}
  s_add_u32 s{sT2}, s{sT3}, {4*3456}
  s_add_u32 m0, s{sMQ}, {wq_addr[i]}
  s_mov_b32 exec_hi, 0xf
  buffer_load_dwordx4 v{vWQ}, {srd(SW)}, s{sT3} offen lds
  s_add_u32 m0, s{sMQ}, {wq_addr[i] + 2304}
  buffer_load_dwordx4 v{vWQ}, {srd(SW)}, s{sT2} offen lds
  s_mov_b32 exec_hi, -1
  s_add_u32 s{sK2}, s{sK2}, 1
  s_cmp_eq_u32 s{sK2}, 18
  s_cselect_b32 s{sK2}, 0, s{sK2}""")
    vm.add(('q', i), 2)
def issue_x(pr): a(x_items(pr)); vm.add(('x', pr), 4)
def issue_w(ks): a(w_items(ks)); vm.add(('w', ks), 4)
SM = 32
a(f"s_cmp_lt_u32 s{sPW}, 4\ns_cbranch_scc1 L_pc0")
a(f"""
  s_and_b32 s{sT4}, s{sPW}, 3
  v_lshrrev_b32 v{vT[0]}, 3, v{vLANE}
  v_and_b32 v{vT[2]}, 7, v{vLANE}
  v_xor_b32 v{vT[2]}, v{vT[2]}, v{vG}
  s_lshl_b32 s{sT2}, s{sT}, 7
  s_lshl_b32 s{sT3}, s{sT4}, 5
  s_add_u32 s{sT2}, s{sT2}, s{sT3}
  v_add_u32 v{vT[0]}, s{sT2}, v{vT[0]}
  s_movk_i32 s{sT3}, 1152
  v_mul_lo_u32 v{vT[0]}, v{vT[0]}, s{sT3}
  v_lshl_add_u32 v{vXOFF}, v{vT[2]}, 4, v{vT[0]}
  v_xor_b32 v{vT[2]}, 4, v{vT[2]}
  v_lshl_add_u32 v{vXOFF2}, v{vT[2]}, 4, v{vT[0]}
  v_add_u32 v{vXOFF2}, {8*1152}, v{vXOFF2}
  s_lshl_b32 s{sMX}, s{sT4}, 12
  s_lshl_b32 s{sMWA}, s{sT4}, 10
  s_add_u32 s{sMWA}, s{sMWA}, {W0L}
  s_mov_b32 s{sK}, s{sROT}
  s_mov_b32 s{sK2}, s{sROT}
""")
w_offs()
srd_bases()
stamp(1)
issue_x(0); issue_w(0); issue_w(1)
NI0 = opt('ni0', 0)
if NI0: issue_x(1); issue_w(2); issue_w(3)
stamp(2)
a("s_branch L_pc1")
a("L_pc0:")
srd_bases()
srd_rest()
stamp(1)
if opt('l2pf', 0):
    a(f"""
  v_lshrrev_b32 v{vT[0]}, 1, v{vLANE}
  s_movk_i32 s{sT3}, 3456
  v_mul_u32_u24 v{vT[0]}, s{sT3}, v{vT[0]}
  v_and_b32 v{vT[1]}, 1, v{vLANE}
  v_mul_u32_u24 v{vT[1]}, 140, v{vT[1]}
  v_add3_u32 v{vT[0]}, v{vT[0]}, v{vT[1]}, s{sH144}
  s_lshl_b32 s{sT2}, s{sT}, 7
  s_lshl_b32 s{sT3}, s{sTH}, 6
  s_add_u32 s{sT2}, s{sT2}, s{sT3}
  v_add_u32 v{vT[1]}, s{sT2}, v{vLANE}
  s_movk_i32 s{sT3}, 1152
  v_mul_lo_u32 v{vT[1]}, v{vT[1]}, s{sT3}
  s_lshr_b32 s{sT2}, s{sPW}, 1
  s_lshl_b32 s{sT2}, s{sT2}, 1
  s_add_u32 s{sT2}, s{sT2}, s{sROT}
  s_add_u32 s{sT2}, s{sT2}, 2
  s_sub_u32 s{sT3}, s{sT2}, 18
  s_cmp_ge_u32 s{sT2}, 18
  s_cselect_b32 s{sT2}, s{sT3}, s{sT2}
  s_lshl_b32 s{sT2}, s{sT2}, 6
  buffer_load_dword v{50}, v{vT[1]}, {srd(SX)}, s{sT2} offen
""")
    for rep in range(opt('l2pf', 0)):
        a(f"""
  s_add_u32 s{sT2}, s{sROT}, s{sPW}
  s_add_u32 s{sT2}, s{sT2}, {2 + 4*rep}
  s_sub_u32 s{sT3}, s{sT2}, 18
  s_cmp_ge_u32 s{sT2}, 18
  s_cselect_b32 s{sT2}, s{sT3}, s{sT2}
  s_mul_i32 s{sT2}, s{sT2}, {32*3456}
  buffer_load_dword v{51+3*rep}, v{vT[0]}, {srd(SW)}, s{sT2} offen
  buffer_load_dword v{52+3*rep}, v{vT[0]}, {srd(SW)}, s{sT2} offen offset:1152
  buffer_load_dword v{53+3*rep}, v{vT[0]}, {srd(SW)}, s{sT2} offen offset:2304
""")
a(f"s_mul_i32 s{sT2}, s{sHQ}, {4*648}\nv_lshlrev_b32 v{vT[0]}, 1, v0")
for j in range(6): a(f"buffer_load_ushort v{SM+j}, v{vT[0]}, {srd(SPHI)}, s{sT2} offen offset:{512*j}")
a(f"v_lshlrev_b32 v{vT[0]}, 3, v0\nbuffer_load_dwordx2 v[{SM+6}:{SM+7}], v{vT[0]}, {srd(SGATE)}, 0 offen")
CW = 144
a(f"""
  s_lshr_b32 s{sT0}, s2, 7            ; b
  s_bfe_u32 s{sT1}, s2, 0x30004       ; cb
  s_and_b32 s{sT2}, s2, 15            ; r
  s_mul_i32 s{sT2}, s{sT2}, 36
  s_mul_i32 s{sT4}, s{sT1}, 144
  s_mul_i32 s{sT5}, s{sT1}, 165888
  s_mul_i32 s{sT3}, s{sT0}, 4608
  s_add_u32 s{sT5}, s{sT5}, s{sT3}
  s_add_u32 s{sT5}, s{sT5}, {WS_WOC}
""")
for j in range(2):
    a(f"""
  v_add_u32 v{vT[0]}, {256*j}, v0
  v_min_u32 v{vT[0]}, 323, v{vT[0]}
  s_mov_b32 s{sT3}, 0xE38F
  v_mul_u32_u24 v{vT[1]}, s{sT3}, v{vT[0]}
  v_lshrrev_b32 v{vT[1]}, 19, v{vT[1]}          ; row
  v_mul_u32_u24 v{vT[2]}, 9, v{vT[1]}
  v_sub_u32 v{vT[2]}, v{vT[0]}, v{vT[2]}        ; u
  v_add_u32 v{vT[1]}, s{sT2}, v{vT[1]}          ; k
  s_movk_i32 s{sT3}, 1152
  v_mul_u32_u24 v{vT[3]}, s{sT3}, v{vT[1]}
  v_lshl_add_u32 v{vT[3]}, v{vT[2]}, 4, v{vT[3]}
  s_cmp_eq_u32 s{sT0}, 1
  s_cbranch_scc1 L_cwB{j}
  buffer_load_dwordx4 v[{CW+4*j}:{CW+4*j+3}], v{vT[3]}, {srd(SWOA)}, s{sT4} offen
  s_branch L_cwD{j}
L_cwB{j}:
  buffer_load_dwordx4 v[{CW+4*j}:{CW+4*j+3}], v{vT[3]}, {srd(SWOB)}, s{sT4} offen
L_cwD{j}:
  v_lshrrev_b32 v{vT[4]}, 5, v{vT[1]}
  s_movk_i32 s{sT3}, 9216
  v_mul_u32_u24 v{vT[4]}, s{sT3}, v{vT[4]}
  v_bfe_u32 v{vT[5]}, v{vT[1]}, 2, 1
  s_movk_i32 s{sT3}, 2304
  v_mad_u32_u24 v{vT[4]}, v{vT[5]}, s{sT3}, v{vT[4]}
  v_bfe_u32 v{vT[5]}, v{vT[1]}, 3, 2
  v_and_b32 v{vT[6]}, 3, v{vT[1]}
  v_lshl_add_u32 v{vT[5]}, v{vT[5]}, 2, v{vT[6]}
  s_movk_i32 s{sT3}, 144
  v_mad_u32_u24 v{vT[4]}, v{vT[5]}, s{sT3}, v{vT[4]}
  v_lshl_add_u32 v{vT[4]}, v{vT[2]}, 4, v{vT[4]}
  v_add_u32 v{CW+8+j}, s{sT5}, v{vT[4]}
""")
for j in range(6):
    a(f"""
  v_add_u32 v{vT[5]}, {256*j}, v0
  s_mov_b32 s{sT3}, 0xCA46
  v_mul_u32_u24 v{vT[6]}, s{sT3}, v{vT[5]}
  v_lshrrev_b32 v{vT[6]}, 24, v{vT[6]}
  s_movk_i32 s{sT3}, 324
  v_mul_u32_u24 v{vT[7]}, s{sT3}, v{vT[6]}
  v_sub_u32 v{vT[7]}, v{vT[5]}, v{vT[7]}
  s_mov_b32 s{sT3}, 0xE38F
  v_mul_u32_u24 v{vT[8]}, s{sT3}, v{vT[7]}
  v_lshrrev_b32 v{vT[8]}, 20, v{vT[8]}
  v_mul_u32_u24 v{vT[9]}, 18, v{vT[8]}
  v_sub_u32 v{vT[9]}, v{vT[7]}, v{vT[9]}
  v_mul_u32_u24 v{vT[10]}, 20, v{vT[6]}
  v_add_u32 v{vT[10]}, v{vT[10]}, v{vT[9]}
  v_mul_u32_u24 v{vT[10]}, 48, v{vT[10]}
  v_and_b32 v{vT[6]}, 1, v{vT[6]}
  v_lshl_add_u32 v{vT[8]}, v{vT[6]}, 1, v{vT[8]}
  v_lshl_add_u32 v{vT[10]}, v{vT[8]}, 1, v{vT[10]}
  v_add_u32 v{SM+8+j}, {T2}, v{vT[10]}
""")
a(f"""
  v_mov_b32 v{vT[0]}, 0
  v_mov_b32 v{vT[1]}, 0
  v_mov_b32 v{vT[2]}, 0
  v_mov_b32 v{vT[3]}, 0
  v_lshlrev_b32 v{vT[4]}, 4, v0
  v_add_u32 v{vT[4]}, {T2}, v{vT[4]}
  v_cmp_gt_u32 vcc, 240, v0
  s_and_saveexec_b64 s[94:95], vcc
  ds_write_b128 v{vT[4]}, v[{vT[0]}:{vT[3]}]
  v_cmp_gt_u32 vcc, 100, v0
  s_and_b64 exec, exec, vcc
  ds_write_b128 v{vT[4]}, v[{vT[0]}:{vT[3]}] offset:{ZR - T2}
  s_mov_b64 exec, -1
  v_mov_b32 v{SM+14}, v0
""")
stamp(2)
a("L_pc1:")
srd_rest()
a(f"""
  s_waitcnt lgkmcnt(0)
  s_barrier
  s_lshl_b32 s{sT2}, s{sWV}, 6
  v_add_u32 v0, s{sT2}, v{vLANE}
  s_or_b32 s{sT2}, s2, s{sPW}
  s_cmp_lg_u32 s{sT2}, 0
  s_cbranch_scc1 L_nononce
  s_memrealtime s[94:95]
  s_waitcnt lgkmcnt(0)
  s_or_b32 s94, s94, 1
  s_xor_b32 s95, s95, 0x5bd1e995
  v_mov_b32 v{vT[6]}, s94
  v_mov_b32 v{vT[7]}, s95
  v_mov_b32 v{vT[5]}, 0
  s_mov_b64 exec, 1
  buffer_store_dwordx2 v[{vT[6]}:{vT[7]}], v{vT[5]}, {srd(SDBG)}, 0 offen sc1
  s_mov_b64 exec, -1
L_nononce:
  s_lshl_b32 s{sTILE}, s{sT}, 3
  s_lshl_b32 s{sT2}, s{sTG}, 1
  s_add_u32 s{sTILE}, s{sTILE}, s{sT2}
  s_add_u32 s{sTILE}, s{sTILE}, s{sROLE}
  s_lshl_b32 s{sT2}, s{sB}, 7
  s_add_u32 s{sT2}, s{sT2}, s{sTILE}
  s_mul_i32 s{sT2}, s{sT2}, 18432
  s_add_u32 s{sT2}, s{sT2}, {WS_O}
  s_mul_i32 s{sT3}, s{sHQ}, 9
""")
for j in range(3):
    a(f"""
  v_add_u32 v{vT[0]}, {4*j}, v{vG}
  v_add_u32 v{vT[1]}, s{sT3}, v{vT[0]}
  v_lshlrev_b32 v{vT[1]}, 8, v{vT[1]}
  v_lshl_add_u32 v{vT[1]}, v{vN}, 4, v{vT[1]}
  v_add_u32 v{vOST[j]}, s{sT2}, v{vT[1]}
""")
a(f"""
  v_cmp_lt_u32 vcc, 0, v{vG}
  v_mov_b32 v{vT[0]}, {BIG}
  v_cndmask_b32 v{vOST[2]}, v{vOST[2]}, v{vT[0]}, vcc
  s_lshl_b32 s{sPB}, s{sG}, 4
  s_add_u32 s{sPB}, s{sPB}, s{sT}
  s_lshl_b32 s{sPB}, s{sPB}, 14
""")
a(f"s_mul_i32 s{sT2}, s{sTG}, 36\nv_add_u32 v{vT[7]}, s{sT2}, v{vLANE}\nv_min_u32 v{vT[7]}, 143, v{vT[7]}")
k, u = dma_off(vT[7], 9)
a(f"""
  s_movk_i32 s{sT3}, 3456
  v_mul_u32_u24 v{vT[8]}, s{sT3}, v{k}
  v_lshl_add_u32 v{vT[8]}, v{u}, 4, v{vT[8]}
  v_add_u32 v{vWQ}, s{sH144}, v{vT[8]}
  s_movk_i32 s{sT3}, 1152
  v_mul_u32_u24 v{vT[8]}, s{sT3}, v{k}
  v_lshl_add_u32 v{vT[8]}, v{u}, 4, v{vT[8]}
  s_mul_i32 s{sT3}, s{sCB}, 144
  v_add_u32 v{vWO}, s{sT3}, v{vT[8]}
  s_mul_i32 s{sMQ}, s{sTG}, 576
  s_lshl_b32 s{sMQ2}, s{sTG}, 10
  s_mul_i32 s{sWOC}, s{sCB}, 165888
  s_add_u32 s{sWOC}, s{sWOC}, s{sMQ2}
  s_add_u32 s{sWOC}, s{sWOC}, {WS_WOC}
  s_mov_b32 s{sL}, 0x3fb8aa3b
  s_mov_b32 s{sL+1}, 0x3fb8aa3b
  s_mov_b32 s{sL+2}, 0xbfb8aa3b
  s_mov_b32 s{sL+3}, 0xbfb8aa3b
  s_mov_b32 s{sMASK}, 0x00f0000f
  s_mov_b32 s{sMASK+1}, 0xf0000f00
""")
def table_writes():
    for j in range(5): a(f"ds_write_b16 v{SM+8+j}, v{SM+j}")
    a(f"""
  v_cmp_gt_u32 vcc, {1296-1280}, v{SM+14}
  s_and_saveexec_b64 s[94:95], vcc
  ds_write_b16 v{SM+13}, v{SM+5}
  s_mov_b64 exec, -1
  v_lshlrev_b32 v{vT[5]}, 3, v{SM+14}
  v_add_u32 v{vT[5]}, {GW}, v{vT[5]}
  v_cmp_gt_u32 vcc, 144, v{SM+14}
  s_and_saveexec_b64 s[94:95], vcc
  ds_write_b64 v{vT[5]}, v[{SM+6}:{SM+7}]
  s_mov_b64 exec, -1
""")
EX36 = "s_mov_b32 exec_lo, -1\n  s_mov_b32 exec_hi, 0xf"
def wo_src(kk, hh): return ((kk % 18) * 2 + kk // 18) * 4608 + hh * 2304
def wo_items(lst, v2):
    runs = []
    for x_ in lst:
        sa, da = wo_src(*x_), wo_addr[x_]
        if runs and runs[-1][0] + runs[-1][2] == sa and runs[-1][1] + runs[-1][2] == da: runs[-1][2] += HU
        else: runs.append([sa, da, HU])
    n = 0
    for sa, da, L in runs:
        for o in range(0, L, 4096):
            rem = L - o
            if rem < 4096: a(f"v_cmp_gt_u32 vcc, {rem}, v{v2}\ns_mov_b64 exec, vcc")
            a(f"""
  s_add_u32 s{sT3}, s{sWOC}, {sa + o}
  s_add_u32 m0, s{sMQ2}, {da + o}
  buffer_load_dwordx4 v{cL16}, {srd(SWS)}, s{sT3} offen lds""")
            if rem < 4096: a("s_mov_b64 exec, -1")
            n += 1
    return n
def wo_ready():
    a(f"""
  s_lshl_b32 s{sT3}, s{sCB}, 10
  s_add_u32 s{sT3}, s{sT3}, {WS_F4}
  s_mov_b32 s{sRETRY}, 0
L_wordy:
  buffer_load_dwordx4 v[{vT[8]}:{vT[11]}], v{cL16}, {srd(SWS)}, s{sT3} offen sc1
  s_waitcnt vmcnt(0)
  v_cmp_ne_u32 vcc, s{sNON}, v{vT[8]}
  v_cmp_ne_u32 s[{sM2}:{sM2+1}], s{sNON+1}, v{vT[9]}
  s_or_b64 vcc, vcc, s[{sM2}:{sM2+1}]
  v_cmp_ne_u32 s[{sM2}:{sM2+1}], s{sNON}, v{vT[10]}
  s_or_b64 vcc, vcc, s[{sM2}:{sM2+1}]
  v_cmp_ne_u32 s[{sM2}:{sM2+1}], s{sNON+1}, v{vT[11]}
  s_or_b64 vcc, vcc, s[{sM2}:{sM2+1}]
  s_cbranch_scc0 L_wordyd
  s_add_u32 s{sRETRY}, s{sRETRY}, 1
  s_cmp_lt_u32 s{sRETRY}, 100000
  s_cbranch_scc1 L_wordy
L_wordyd:""")
KOFF8 = [0, 4, 9, 13]
TILEV = [[0,1,2,3],[4,5,6,7],[8,9,10,11],[12,13,14,15],[10,11,16,17]]

NONLD = f"""
  v_mov_b32 v{vT[5]}, 0
  buffer_load_dwordx2 v[{vNON}:{vNON+1}], v{vT[5]}, {srd(SDBG)}, 0 offen sc1"""
def get_nonce():
    nl[0] += 1; L = f"L_non{nl[0]}"
    a(f"""
  v_readfirstlane_b32 s{sNON}, v{vNON}
  v_readfirstlane_b32 s{sNON+1}, v{vNON+1}
  s_mov_b32 s{sRETRY}, 0
  s_cmp_lg_u32 s{sNON}, 0
  s_cbranch_scc1 {L}d
{L}:
  v_mov_b32 v{vT[5]}, 0
  buffer_load_dwordx2 v[{vNON}:{vNON+1}], v{vT[5]}, {srd(SDBG)}, 0 offen sc1
  s_waitcnt vmcnt(0)
  v_readfirstlane_b32 s{sNON}, v{vNON}
  v_readfirstlane_b32 s{sNON+1}, v{vNON+1}
  s_add_u32 s{sRETRY}, s{sRETRY}, 1
  s_cmp_gt_u32 s{sRETRY}, 100000
  s_cbranch_scc1 {L}d
  s_cmp_eq_u32 s{sNON}, 0
  s_cbranch_scc1 {L}
{L}d:""")
def set_flag(soff, nrep):
    a(f"""
  v_mov_b32 v{vT[6]}, s{sNON}
  v_mov_b32 v{vT[7]}, s{sNON+1}
  v_lshlrev_b32 v{vT[5]}, 9, v{vLANE}
  s_waitcnt vmcnt(0)
  s_mov_b64 exec, {(1 << nrep) - 1}
  buffer_store_dwordx2 v[{vT[6]}:{vT[7]}], v{vT[5]}, {srd(SWS)}, s{soff} offen sc1
  s_mov_b64 exec, -1""")
def diag_addr(dst, rows, pitch, base):
    a(f"""
  v_mul_u32_u24 v{dst}, {rows}, v{vG}
  v_and_b32 v{vT[1]}, 3, v{vN}
  v_add_u32 v{dst}, v{dst}, v{vT[1]}
  v_mul_u32_u24 v{dst}, {pitch}, v{dst}
  v_add_u32 v{dst}, {base}, v{dst}
  v_mov_b32 v{vT[1]}, {ZR}
  v_cndmask_b32 v{dst}, v{vT[1]}, v{dst}, s[{sMASK}:{sMASK+1}]
""")
SEQ2 = [(t, c) for t in range(5) for c in range(3)]
def stage2_mfmas(P, af, kb):
    return [f"v_mfma_f32_16x16x32_bf16 {v(P+4*t,4)}, {v(af[j],4)}, {v(kb+4*c,4)}, {v(P+4*t,4) if c > 0 else '0'}" for j, (t, c) in enumerate(SEQ2)]
A2L = [144 + 4 * j for j in range(15)]
KB0, KB1 = 32, 44
P0, EPk, P1 = 64, 84, 104
PH0, PH1 = 124, 204
D0, D1 = 144, 64
def softmax_list(P, EP, ph):
    o = []
    mx, mn, mx2, mn2 = vT[0], vT[2], vT[4], vT[5]
    o += [f"v_max3_f32 v{mx}, v{P}, v{P+1}, v{P+2}", f"v_min3_f32 v{mn}, v{P}, v{P+1}, v{P+2}",
          f"v_max3_f32 v{mx2}, v{P+3}, v{P+4}, v{P+5}", f"v_min3_f32 v{mn2}, v{P+3}, v{P+4}, v{P+5}"]
    for i in range(6, 18, 4):
        o += [f"v_max3_f32 v{mx}, v{mx}, v{P+i}, v{P+i+1}", f"v_min3_f32 v{mn}, v{mn}, v{P+i}, v{P+i+1}",
              f"v_max3_f32 v{mx2}, v{mx2}, v{P+i+2}, v{P+i+3}", f"v_min3_f32 v{mn2}, v{mn2}, v{P+i+2}, v{P+i+3}"]
    o += [f"v_max_f32 v{mx}, v{mx}, v{mx2}", f"v_min_f32 v{mn}, v{mn}, v{mn2}",
          f"v_mul_f32 v{mx}, s{sL+2}, v{mx}", f"v_mul_f32 v{mn}, s{sL}, v{mn}"]
    for i in range(9):
        o += [f"v_pk_fma_f32 {v(EP+2*i,2)}, {v(P+2*i,2)}, s[{sL}:{sL+1}], {v(mx,2)} op_sel_hi:[1,1,0]",
              f"v_pk_fma_f32 {v(P+2*i,2)}, {v(P+2*i,2)}, s[{sL+2}:{sL+3}], {v(mn,2)} op_sel_hi:[1,1,0]"]
    for i in range(18): o += [f"v_exp_f32 v{EP+i}, v{EP+i}", f"v_exp_f32 v{P+i}, v{P+i}"]
    sp, sm = vT[4], vT[6]
    o += [f"v_pk_add_f32 {v(sp,2)}, {v(EP,2)}, {v(EP+2,2)}", f"v_pk_add_f32 {v(sm,2)}, {v(P,2)}, {v(P+2,2)}"]
    for i in range(2, 9):
        o += [f"v_pk_add_f32 {v(sp,2)}, {v(sp,2)}, {v(EP+2*i,2)}", f"v_pk_add_f32 {v(sm,2)}, {v(sm,2)}, {v(P+2*i,2)}"]
    o += [f"v_add_f32 v{sp}, v{sp}, v{sp+1}", f"v_add_f32 v{sm}, v{sm}, v{sm+1}", f"v_rcp_f32 v{sp}, v{sp}", f"v_rcp_f32 v{sm}, v{sm}"]
    for i in range(9):
        o += [f"v_pk_mul_f32 {v(EP+2*i,2)}, {v(EP+2*i,2)}, {v(sp,2)} op_sel_hi:[1,0]",
              f"v_pk_mul_f32 {v(P+2*i,2)}, {v(P+2*i,2)}, {v(sm,2)} op_sel_hi:[1,0]"]
    for i in range(9): o.append(f"v_cvt_pk_bf16_f32 v{ph+i}, v{EP+2*i}, v{EP+2*i+1}")
    for i in range(9): o.append(f"v_cvt_pk_bf16_f32 v{ph+9+i}, v{P+2*i}, v{P+2*i+1}")
    o += [f"v_mov_b32 v{ph+18}, 0", f"v_mov_b32 v{ph+19}, 0"]
    return o
def merge(valu, mf, every=4):
    mf = list(mf)
    for i, x in enumerate(valu):
        if mf and i % every == 0: a(mf.pop(0))
        a(x)
    for m in mf: a(m)

def num_and_store(phq, nb, out, kvaddr, reuse):
    seq = [(t, c) for t in range(5) for c in range(5)]
    for b0 in (0, 13):
        batch = seq[b0:b0+13]
        nbb = nb if reuse else nb + 4 * b0
        if b0 and reuse: a("s_nop 7")
        for j, (t, c) in enumerate(batch):
            a(f"ds_read_b128 {v(nbb+4*j,4)}, v{kvaddr} offset:{t*320 + c*16}")
        if b0 == 0:
            a(f"""
  s_mul_i32 s{sT2}, s{sWV}, 2304
  s_add_u32 s{sT2}, s{sT2}, {OST}
  s_movk_i32 s{sT3}, 144
  v_mul_u32_u24 v{vT[3]}, s{sT3}, v{vN}
  v_add_u32 v{vT[3]}, s{sT2}, v{vT[3]}
  v_mul_u32_u24 v{vT[4]}, 36, v{vG}
  v_add_u32 v{vT[4]}, v{vT[3]}, v{vT[4]}
  v_lshl_add_u32 v{vT[2]}, v{vG}, 4, v{vT[3]}
  s_lshr_b32 s{sT2}, s{sTILE}, 2
  s_lshl_b32 s{sT2}, s{sT2}, 12
  s_and_b32 s{sT3}, s{sTILE}, 3
  s_lshl_b32 s{sT3}, s{sT3}, 7
  s_add_u32 s{sT2}, s{sT2}, s{sT3}
  s_lshl_b32 s{sT3}, s{sG}, 3
  s_add_u32 s{sT2}, s{sT2}, s{sT3}
  s_add_u32 s{sT0}, s{sT2}, {WS_F2}
""")
        for j, (t, c) in enumerate(batch):
            a(f"s_waitcnt lgkmcnt({len(batch)-1-j})")
            if b0 == 0 and j == 0: a("s_barrier")
            cc = v(out + 4*t, 4) if c > 0 else '0'
            a(f"v_mfma_f32_16x16x32_bf16 {v(out+4*t,4)}, {v(nbb+4*j,4)}, {v(phq+4*c,4)}, {cc}")
    a(f"v_add_f32 v{vT[0]}, 0x358637bd, v{out+18}\nv_rcp_f32 v{vT[0]}, v{vT[0]}")
    for i in range(9): a(f"v_pk_mul_f32 {v(out+2*i,2)}, {v(out+2*i,2)}, {v(vT[0],2)} op_sel_hi:[1,0]")
    for i in range(9): a(f"v_cvt_pk_bf16_f32 v{out+20+i}, v{out+2*i}, v{out+2*i+1}")
    stamp(24)
    for i in range(0, 8, 2):
        a(f"ds_write2_b32 v{vT[4]}, v{out+20+i}, v{out+21+i} offset0:{i} offset1:{i+1}")
    a(f"ds_write_b32 v{vT[4]}, v{out+28} offset:32")
    a("s_waitcnt lgkmcnt(0)")
    for j in range(3): a(f"ds_read_b128 {v(out+4*j,4)}, v{vT[2]} offset:{64*j}")
    for j in range(3):
        a(f"s_waitcnt lgkmcnt({2-j})\nbuffer_store_dwordx4 {v(out+4*j,4)}, v{vOST[j]}, {srd(SWS)}, 0 offen sc1")
    a("s_barrier")
    stamp(25)
    set_flag(sT0, 8)
    stamp(10)
def tr_base(dst):
    a(f"""
  v_bfe_u32 v{vT[3]}, v{vLANE}, 2, 2
  v_lshl_add_u32 v{vT[1]}, v{vG}, 2, v{vT[3]}
  v_and_b32 v{vT[2]}, 3, v{vLANE}
  s_movk_i32 s{sT3}, 144
  v_mul_u32_u24 v{vT[1]}, s{sT3}, v{vT[1]}
  v_lshl_add_u32 v{dst}, v{vT[2]}, 3, v{vT[1]}
""")
def pc_setup():
    a(f"""
  s_lshr_b32 s{sT0}, s{sTG}, 1
  s_and_b32 s{sT1}, s{sTG}, 1
  s_lshl_b32 s{sT2}, s{sTB}, 2
  s_lshl_b32 s{sT3}, s{sT1}, 1
  s_add_u32 s{sT2}, s{sT2}, s{sT3}
  s_lshl_b32 s{sT3}, s{sT0}, 7
  s_add_u32 s{sT3}, s{sT3}, s{sT2}
  s_mul_i32 s{sT5}, s{sT3}, 18432
  s_add_u32 s{sT5}, s{sT5}, {WS_O}
  s_add_u32 s{sT4}, s{sT5}, 18432
  v_lshlrev_b32 v{vT[0]}, 4, v{vLANE}
  v_add_u32 v{vT[1]}, 4096, v{vT[0]}
  v_add_u32 v{vT[2]}, 8192, v{vT[0]}
  v_add_u32 v{vT[3]}, 12288, v{vT[0]}
  v_add_u32 v{vT[4]}, 16384, v{vT[0]}
  s_lshl_b32 s{sT2}, s{sT2}, 6
  s_add_u32 s{sPB}, s{sT2}, {WS_GATE}
""")

vRA8 = [21, 22, 23, 24, 25]
DEP = 4
def rd_addrs(unitlists, regs, base):
    a(f"""
  v_bfe_u32 v{vT[0]}, v{vLANE}, 2, 2
  v_lshl_add_u32 v{vT[1]}, v{vG}, 2, v{vT[0]}
  v_and_b32 v{vT[2]}, 3, v{vLANE}
  v_and_b32 v{vT[3]}, 1, v{vT[0]}
  v_lshlrev_b32 v{vT[3]}, 1, v{vT[3]}
  v_and_b32 v{vT[4]}, 7, v{vT[1]}
  v_lshl_add_u32 v{vT[3]}, v{vT[4]}, 2, v{vT[3]}
  v_lshlrev_b32 v{vT[4]}, 9, v{vT[1]}
  v_add_u32 v{vT[4]}, {base}, v{vT[4]}
  v_lshlrev_b32 v{vT[2]}, 3, v{vT[2]}
""")
    for units, r in zip(unitlists, regs):
        packed = sum(u << (8 * c) for c, u in enumerate(units))
        a(f"""
  s_mov_b32 s{sT3}, {packed}
  v_lshrrev_b32 v{vT[0]}, v{vT[2]}, s{sT3}
  v_and_b32 v{vT[0]}, 0xff, v{vT[0]}
  v_xor_b32 v{vT[0]}, v{vT[0]}, v{vT[3]}
  v_lshl_add_u32 v{r}, v{vT[0]}, 3, v{vT[4]}
""")
def x_addr(shift_sreg, sh):
    a(f"""
  v_lshrrev_b32 v{vT[0]}, 1, v{vN}
  v_xor_b32 v{vT[0]}, v{vT[0]}, v{vG}
  v_lshlrev_b32 v{vT[0]}, 4, v{vT[0]}
  v_lshl_add_u32 v{vT[0]}, v{vN}, 7, v{vT[0]}
  s_lshl_b32 s{sT2}, s{shift_sreg}, {sh}
  v_add_u32 v{vRX[0]}, s{sT2}, v{vT[0]}
  v_xor_b32 v{vRX[1]}, 64, v{vRX[0]}
""")
def pass1(role):
    x_addr(sTH, 13)
    rd_addrs([[KOFF8[c] + t for c in range(4)] if role == 0 else [32 + u for u in TILEV[t]] for t in range(5)], vRA8, W0L)
    base = [0]
    def setbase(sl):
        want = (sl // 3) * 3 * WSL
        out = []
        if want != base[0]:
            d = want - base[0]
            for r in vRA8: out.append(f"v_add_u32 v{r}, {d}, v{r}" if d > 0 else f"v_subrev_u32 v{r}, {-d}, v{r}")
            base[0] = want
        return out
    def xregs(ks, tt): return XB + 16 * (ks & 1) + 4 * tt
    lds = []
    def wreads(st):
        ks, i = divmod(st, 5)
        pre = setbase((ks + 1) % NWS) if i == 0 else []
        off = ((ks + 1) % NWS) * WSL - base[0]
        fb = RING + 4 * (st % NRING)
        return [(None, x_) for x_ in pre] + [(st, f"ds_read_b64_tr_b16 {v(fb + 2*hh, 2)}, v{vRA8[i]} offset:{off + hh*8192}") for hh in range(2)]
    def xread(ks, tt):
        xo = ((ks // 2) % NXS) * XSL
        return (5 * ks, f"ds_read_b128 {v(xregs(ks, tt), 4)}, v{vRX[ks & 1]} offset:{xo + 2048*tt}")
    def emit(it):
        tag, txt = it
        if opt('noreads', 0) and tag is not None and 5 <= tag < 999: txt = "s_nop 0"
        a(txt)
        if tag is not None: lds.append(tag)
    def mfma(st, tt):
        ks, i = divmod(st, 5)
        fb = RING + 4 * (st % NRING)
        acc = ACC + 16 * i + 4 * tt
        c = v(acc, 4) if ks > 0 else '0'
        A, B = (v(xregs(ks,tt),4), v(fb,4)) if role == 1 else (v(fb,4), v(xregs(ks,tt),4))
        if opt('nomfma', 0): return "s_nop 0"
        return f"v_mfma_f32_16x16x32_bf16 {v(acc,4)}, {A}, {B}, {c}"
    a("s_waitcnt vmcnt(2)")
    table_writes()
    a("s_waitcnt lgkmcnt(0)\ns_barrier")
    stamp(3)
    for tt in range(4): emit(xread(0, tt))
    for st in range(DEP):
        for it in wreads(st): emit(it)
    NST = 90
    fifo = []
    for st in range(NST):
        while any(t_ == st for t_, _ in fifo): emit(fifo.pop(0))
        idx = max(i for i, x_ in enumerate(lds) if x_ == st)
        a(f"s_waitcnt lgkmcnt({min(15, len(lds) - 1 - idx)})")
        if (st + DEP) % 5 == 0:
            while fifo: emit(fifo.pop(0))
            a("s_barrier")
        if st == opt('cst', 8):
            a("s_waitcnt vmcnt(0)")
            for j in range(2): a(f"buffer_store_dwordx4 v[{CW+4*j}:{CW+4*j+3}], v{CW+8+j}, {srd(SWS)}, 0 offen sc1")
            a(NONLD)
        if st == 36:
            a("s_waitcnt vmcnt(0)")
            get_nonce()
            a(f"""
  s_bfe_u32 s{sT3}, s2, 0x30004
  s_lshl_b32 s{sT3}, s{sT3}, 10
  s_lshr_b32 s{sT2}, s2, 7
  s_lshl_b32 s{sT2}, s{sT2}, 9
  s_add_u32 s{sT3}, s{sT3}, s{sT2}
  s_and_b32 s{sT2}, s2, 15
  s_lshl_b32 s{sT2}, s{sT2}, 5
  s_add_u32 s{sT3}, s{sT3}, s{sT2}
  s_lshl_b32 s{sT2}, s{sPW}, 3
  s_add_u32 s{sT3}, s{sT3}, s{sT2}
  s_add_u32 s{sT0}, s{sT3}, {WS_F4}""")
            set_flag(sT0, 1)
        nst = st + DEP
        if nst < NST:
            j = nst % 5
            if j < 2: fifo += [xread(nst // 5, 2 * j), xread(nst // 5, 2 * j + 1)]
            fifo += wreads(nst)
        if 20 <= st < 35:
            t_, c_ = SEQ2[st - 20]
            fifo.append((999, f"ds_read_b128 {v(A2L[st-20],4)}, v{cA2} offset:{t_*192 + c_*16}"))
        for tt in range(4):
            a(mfma(st, tt))
            if fifo: emit(fifo.pop(0))
def loader():
    nW, nX, nQ = 2, 1, 0
    def need(ks): return min(vm.wait_for(('w', ks)), vm.wait_for(('x', ks // 2)))
    x_addr(sTG, 12)
    def xr(ks):
        xo = ((ks // 2) % NXS) * XSL
        for tt in range(2): a(f"ds_read_b128 {v(QX0+8*ks+4*tt, 4)}, v{vRX[ks & 1]} offset:{xo + 2048*tt}")
    a(f"s_waitcnt vmcnt({need(0)})\ns_barrier")
    stamp(3)
    xr(0)
    def refill(ks, maxw):
        nonlocal nW, nX
        c = 0
        while c < maxw:
            if nX < 9 and 2 * nX <= nW + 1 and 2 * (nX - NXS) + 1 <= ks: issue_x(nX); nX += 1
            if nW < 18 and nW - NWS <= ks - 1: issue_w(nW); nW += 1; c += 1
            else: break
        if nX < 9 and 2 * nX <= nW + 1 and 2 * (nX - NXS) + 1 <= ks: issue_x(nX); nX += 1
    if opt('norefill', 0):
        global w_items, x_items
        w_items = lambda ks: "s_nop 0"
        x_items = lambda pr: "s_nop 0"
    refill(-1, opt('rf0', 2))
    for ks in range(18):
        a(f"s_waitcnt vmcnt({need(ks + 1) if ks + 1 < 18 else 63}) lgkmcnt(0)")
        a("s_barrier")
        if ks + 1 < 18: xr(ks + 1)
        refill(ks, opt('rf', 2))
        if ks == 8: a(NONLD); vm.add('non')
        if ks == opt('wqpf', 6):
            a(f"""
  s_and_b32 s{sT2}, s{sT}, 7
  s_mul_i32 s{sT2}, s{sT2}, 72
  s_mul_i32 s{sT3}, s{sTG}, 18
  s_add_u32 s{sT2}, s{sT2}, s{sT3}
  s_mul_i32 s{sT2}, s{sT2}, 3456
  s_add_u32 s{sT2}, s{sT2}, s{sH144}
  v_min_u32 v{vT[0]}, 35, v{vLANE}
  v_lshrrev_b32 v{vT[1]}, 1, v{vT[0]}
  s_movk_i32 s{sT3}, 3456
  v_mul_u32_u24 v{vT[1]}, s{sT3}, v{vT[1]}
  v_and_b32 v{vT[0]}, 1, v{vT[0]}
  v_mul_u32_u24 v{vT[0]}, 140, v{vT[0]}
  v_add_u32 v{vT[0]}, v{vT[0]}, v{vT[1]}
  buffer_load_dword v{17}, v{vT[0]}, {srd(SW)}, s{sT2} offen""")
            vm.add('wqpf')
        if ks == 17: arrive(C1)
        for i_ in range(18):
            if wq_time(i_) == ks: issue_q(i_)
        if ks == opt('wopf', 99):
            a(f"""
  s_lshr_b32 s{sT2}, s2, 3
  s_mul_i32 s{sT2}, s{sT2}, 20736
  s_mul_i32 s{sT3}, s{sTH}, 10368
  s_add_u32 s{sT2}, s{sT2}, s{sT3}
  v_lshlrev_b32 v{vT[0]}, 7, v{vLANE}
  v_add_u32 v{vT[1]}, 8192, v{vT[0]}
  v_min_u32 v{vT[1]}, {80*128}, v{vT[1]}
  s_bitcmp1_b32 s{sPW}, 1
  s_cbranch_scc1 L_wopfB
  buffer_load_dword v{17}, v{vT[0]}, {srd(SWOA)}, s{sT2} offen
  buffer_load_dword v{18}, v{vT[1]}, {srd(SWOA)}, s{sT2} offen
  s_branch L_wopfD
L_wopfB:
  buffer_load_dword v{17}, v{vT[0]}, {srd(SWOB)}, s{sT2} offen
  buffer_load_dword v{18}, v{vT[1]}, {srd(SWOB)}, s{sT2} offen
L_wopfD:""")
            vm.add('wopf', 2)
    assert nW == 18 and nX == 9, (nW, nX)
def a2_reads(addr):
    for j, (t, c) in enumerate(SEQ2): a(f"ds_read_b128 {v(A2L[j],4)}, v{addr} offset:{t*192 + c*16}")


cA2q, cKVq = cA2, cKV
a(f"v_lshlrev_b32 v{cL16}, 4, v{vLANE}")
diag_addr(cA2, 20, 48, T2)
diag_addr(cKV, 19, 80, KVT)
a(f"v_add_u32 v{cW2}, s{sMQ2}, v{cL16}")
a(f"s_cmp_eq_u32 s{sROLE}, 1\ns_cbranch_scc1 L_noKc")
a(f"""
  s_and_b32 s{sT4}, s{sTG}, 1                 ; half
  s_lshr_b32 s{sT5}, s{sTG}, 1                ; c0
  s_lshl_b32 s{sT2}, s{sTG}, 10
  v_add_u32 v{cAF}, s{sT2}, v{cL16}
  s_mul_i32 s{sT2}, s{sT4}, 3072
  s_add_u32 s{sT2}, s{sT2}, {VF}
  v_add_u32 v{cB01}, s{sT2}, v{cL16}
  v_add_u32 v{cB2}, {VF + 2048}, v{cL16}
  s_lshl_b32 s{sT1}, s{sT4}, 1
  v_lshrrev_b32 v{vT[7]}, 1, v{vG}
  v_add_u32 v{vT[7]}, s{sT1}, v{vT[7]}        ; hr
  v_and_b32 v{vT[9]}, 1, v{vG}
  v_lshlrev_b32 v{vT[9]}, 4, v{vT[9]}
  s_lshl_b32 s{sT1}, s{sT5}, 5
  s_add_u32 s{sT1}, s{sT1}, {PST}
  v_add_u32 v{vT[9]}, s{sT1}, v{vT[9]}        ; PST + c0*32 + (g&1)*16
  v_cmp_lt_u32 s[{sM2}:{sM2+1}], 7, v{vN}
""")
for ci in range(3):
    if ci == 0: pre = f"s_mul_i32 s{sT2}, s{sT4}, 48\n  s_mov_b32 s{sT3}, 0"
    elif ci == 1: pre = f"s_mul_i32 s{sT2}, s{sT4}, 24\n  s_add_u32 s{sT2}, s{sT2}, 16\n  s_lshl_b32 s{sT3}, s{sT4}, 4"
    else: pre = f"s_mov_b32 s{sT2}, 32\n  s_movk_i32 s{sT3}, 200"
    a(f"""
  {pre}
  v_mov_b32 v{vT[4]}, s{sT3}
  v_cndmask_b32 v{vT[4]}, 0, v{vT[4]}, s[{sM2}:{sM2+1}]
  v_add3_u32 v{vT[4]}, v{vT[4]}, v{vN}, s{sT2}
  v_mul_u32_u24 v{vT[5]}, 57, v{vT[4]}
  v_lshrrev_b32 v{vT[5]}, 10, v{vT[5]}
  v_mul_u32_u24 v{vT[6]}, 18, v{vT[5]}
  v_sub_u32 v{vT[6]}, v{vT[4]}, v{vT[6]}
""")
    if ci == 2:
        a(f"""
  v_cmp_eq_u32 vcc, 240, v{vT[4]}
  v_cndmask_b32 v{vT[5]}, v{vT[5]}, v{vT[7]}, vcc
  v_cndmask_b32 v{vT[6]}, v{vT[6]}, 18, vcc
""")
    a(f"""
  v_mul_u32_u24 v{vT[8]}, 19, v{vT[7]}
  v_add_u32 v{vT[8]}, v{vT[8]}, v{vT[6]}
  s_movk_i32 s{sT2}, 144
  v_mad_u32_u24 v{vT[8]}, v{vT[8]}, s{sT2}, v{vT[9]}
  v_cmp_eq_u32 vcc, v{vT[5]}, v{vT[7]}
  v_mov_b32 v{vT[10]}, {PST + 10944}
  v_cndmask_b32 v{cPS[ci]}, v{vT[10]}, v{vT[8]}, vcc
""")
a(f"v_lshlrev_b32 v{cSA}, 3, v{vLANE}")
for j in range(3):
    a(f"""
  v_add_u32 v{vT[0]}, {256*j}, v0
  s_mov_b32 s{sT3}, 0xE38F
  v_mul_u32_u24 v{vT[1]}, s{sT3}, v{vT[0]}
  v_lshrrev_b32 v{vT[1]}, 19, v{vT[1]}
  v_mul_u32_u24 v{vT[2]}, 9, v{vT[1]}
  v_sub_u32 v{vT[2]}, v{vT[0]}, v{vT[2]}
  v_lshlrev_b32 v{cGQ[j]}, 4, v{vT[0]}
  v_mul_u32_u24 v{cLQ[j]}, 80, v{vT[1]}
  v_lshl_add_u32 v{cLQ[j]}, v{vT[2]}, 3, v{cLQ[j]}
  v_add_u32 v{cLQ[j]}, {KVT}, v{cLQ[j]}
""")
a(f"""
  v_cmp_gt_u32 vcc, {684-512}, v0
  v_mov_b32 v{vT[0]}, {BIG}
  v_cndmask_b32 v{cGQ[2]}, v{vT[0]}, v{cGQ[2]}, vcc
  v_lshrrev_b32 v{vT[2]}, 3, v{vN}
  v_and_b32 v{vT[1]}, 1, v{vN}
  v_lshlrev_b32 v{vT[1]}, 4, v{vT[1]}
  v_mov_b32 v{vT[3]}, 0x3f80
  v_lshlrev_b32 v{vT[3]}, v{vT[1]}, v{vT[3]}
  v_bfe_u32 v{vT[1]}, v{vN}, 1, 2
  v_lshl_add_u32 v{vT[1]}, v{vT[2]}, 2, v{vT[1]}
  v_and_b32 v{vT[2]}, 1, v{vG}
  v_lshlrev_b32 v{vT[2]}, 2, v{vT[2]}
  v_sub_u32 v{vT[1]}, v{vT[1]}, v{vT[2]}
  v_lshrrev_b32 v{vT[2]}, 1, v{vG}
  v_lshl_add_u32 v{vT[1]}, v{vT[2]}, 4, v{vT[1]}
""")
for half in range(2):
    for j2 in range(4):
        a(f"v_cmp_eq_u32 vcc, {16*half + j2}, v{vT[1]}\nv_cndmask_b32 v{cSEL[half]+j2}, 0, v{vT[3]}, vcc")
a(f"""
  s_mul_i32 s{sT2}, s{sTG}, 10240
  v_add_u32 v{cPFW}, s{sT2}, v{cL16}
""")

a("L_noKc:")
a(f"s_cmp_ge_u32 s{sPW}, 4\ns_cbranch_scc1 L_loader")
a(f"""
  s_mul_i32 s{sT2}, s{sTH}, 5120
  v_add_u32 v{26+2}, 0, v{26+2}
""") if False else None
a(f"s_cmp_ge_u32 s{sPW}, 2\ns_cbranch_scc1 L_vcomp")
def hx_addr():
    a(f"""
  s_mul_i32 s{sT2}, s{sTH}, 5120
  v_add_u32 v{vT[2]}, s{sT2}, v{cL16}
  v_lshlrev_b32 v{vT[3]}, 3, v{vLANE}
  v_add_u32 v{vT[3]}, s{sT2}, v{vT[3]}
""")
pass1(0)
HI[0] = opt('kprio', 3)
a(f"s_setprio {HI[0]}")
stamp(4)
hx_addr()
SND = RING
for j, tt in enumerate((2, 3)):
    for t in range(5):
        s_ = ACC + 16 * t + 4 * tt
        a(f"v_cvt_pk_bf16_f32 v{SND+10*j+2*t}, v{s_}, v{s_+1}\nv_cvt_pk_bf16_f32 v{SND+10*j+2*t+1}, v{s_+2}, v{s_+3}")
    a(f"ds_write_b128 v{vT[2]}, {v(SND+10*j,4)} offset:{HX+2560*j}\nds_write_b128 v{vT[2]}, {v(SND+10*j+4,4)} offset:{HX+2560*j+1024}\nds_write_b64 v{vT[3]}, {v(SND+10*j+8,2)} offset:{HX+2560*j+2048}")
for kb, tt in zip((KB0, KB1), (0, 1)):
    for t in range(5):
        s_ = ACC + 16 * t + 4 * tt
        a(f"v_cvt_pk_bf16_f32 v{kb+2*t}, v{s_}, v{s_+1}\nv_cvt_pk_bf16_f32 v{kb+2*t+1}, v{s_+2}, v{s_+3}")
    a(f"v_mov_b32 v{kb+10}, 0\nv_mov_b32 v{kb+11}, 0")
    if tt == 0:
        a("s_waitcnt lgkmcnt(0)")
        arrive(CK4)
        arrive(C1)
a("s_branch L_kpost")
a("L_vcomp:")
pass1(1)
a(f"s_setprio {HI[0]}")
stamp(4)
a(f"s_mul_i32 s{sT2}, s{sTH}, 10240\ns_add_u32 s{sT2}, s{sT2}, {VF}\nv_add_u32 v{vT[4]}, s{sT2}, v{cL16}")
a(f"v_cmp_eq_u32 vcc, 8, v{vN}\nv_mov_b32 v{vT[5]}, 0x3f803f80")
for ct in range(5):
    for j in range(2):
        b_ = ACC + 16 * ct + 8 * j
        for q in range(4): a(f"v_cvt_pk_bf16_f32 v{b_+q}, v{b_+2*q}, v{b_+2*q+1}")
        if ct == 2:
            for q in range(4): a(f"v_cndmask_b32 v{b_+q}, v{b_+q}, v{vT[5]}, vcc")
        a(f"ds_write_b128 v{vT[4]}, {v(b_,4)} offset:{5120*j + ct*1024}")
hx_addr()
cwait(CK4, 2)
for j, kb in enumerate((KB0, KB1)):
    a(f"ds_read_b128 {v(kb,4)}, v{vT[2]} offset:{HX+2560*j}\nds_read_b128 {v(kb+4,4)}, v{vT[2]} offset:{HX+2560*j+1024}\nds_read_b64 {v(kb+8,2)}, v{vT[3]} offset:{HX+2560*j+2048}")
    a(f"v_mov_b32 v{kb+10}, 0\nv_mov_b32 v{kb+11}, 0")
a("s_waitcnt lgkmcnt(0)")
arrive(C1)
a("L_kpost:")
a("s_waitcnt lgkmcnt(0)")
stamp(17)
for m in stage2_mfmas(P0, A2L, KB0): a(m)
merge(softmax_list(P0, EPk, PH0), stage2_mfmas(P1, A2L, KB1), every=3)
stamp(18)
tr0 = [f"v_mfma_f32_16x16x32_bf16 {v(D0+4*(2*c+h),4)}, {v(PH0+4*c,4)}, {v(cSEL[h],4)}, 0" for c in range(5) for h in range(2)]
merge(softmax_list(P1, EPk, PH1), tr0, every=4)
stamp(19)
for c in range(5):
    for h in range(2):
        a(f"v_mfma_f32_16x16x32_bf16 {v(D1+4*(2*c+h),4)}, {v(PH1+4*c,4)}, {v(cSEL[h],4)}, 0")
for rt in range(10):
    d = D0 + 4 * rt
    a(f"v_cvt_pk_bf16_f32 v{d}, v{d}, v{d+1}\nv_cvt_pk_bf16_f32 v{d+1}, v{d+2}, v{d+3}")
cwait(C1, 8)
for rt in range(10):
    d = D0 + 4 * rt; e = D1 + 4 * rt
    a(f"v_cvt_pk_bf16_f32 v{d+2}, v{e}, v{e+1}\nv_cvt_pk_bf16_f32 v{d+3}, v{e+2}, v{e+3}")
    a(f"ds_write_b128 v{cPFW}, {v(d,4)} offset:{PF + rt*1024}")
a("s_waitcnt lgkmcnt(0)")
stamp(20)
arrive(CPF)
cwait(CPF, 4)
stamp(5)
KV = 160
BF = 32
AFR = 80
for ci in range(3):
    for tg in range(4):
        if ci == 0: a(f"ds_read_b128 {v(AFR+4*tg,4)}, v{cAF} offset:{tg*10240}")
        ad, of = (cB01, ci * 1024) if ci < 2 else (cB2, 0)
        a(f"ds_read_b128 {v(BF+16*ci+4*tg,4)}, v{ad} offset:{of + tg*5120}")
def kv_mf(j, ci):
    acc = KV + 4 * (3 * j + ci)
    return [f"v_mfma_f32_16x16x32_bf16 {v(acc,4)}, {v(AFR+16*j+4*tg,4)}, {v(BF+16*ci+4*tg,4)}, {v(acc,4) if tg else '0'}" for tg in range(4)]
a("s_waitcnt lgkmcnt(8)")
for tg in range(4): a(f"ds_read_b128 {v(AFR+16+4*tg,4)}, v{cAF} offset:{4096 + tg*10240}")
for m in kv_mf(0, 0): a(m)
a("s_waitcnt lgkmcnt(8)")
for tg in range(4): a(f"ds_read_b128 {v(AFR+32+4*tg,4)}, v{cAF} offset:{8192 + tg*10240}")
for m in kv_mf(0, 1): a(m)
a("s_waitcnt lgkmcnt(8)")
for m in kv_mf(0, 2): a(m)
a("s_waitcnt lgkmcnt(4)")
for ci in range(3):
    for m in kv_mf(1, ci): a(m)
a("s_waitcnt lgkmcnt(0)")
arrive(CKD)
a(f"s_cmp_ge_u32 s{sTG}, 2\ns_cbranch_scc1 L_kvskip")
for ci in range(3):
    for m in kv_mf(2, ci): a(m)
a("L_kvskip:")
cwait(CKD, 4)
for ci in range(3): a(f"ds_write_b128 v{cPS[ci]}, {v(KV+4*ci,4)}")
for ci in range(3): a(f"ds_write_b128 v{cPS[ci]}, {v(KV+12+4*ci,4)} offset:64")
a(f"s_cmp_ge_u32 s{sTG}, 2\ns_cbranch_scc1 L_kvskip2")
a("s_mov_b32 exec_lo, 0xffff\ns_mov_b32 exec_hi, 0xffff")
for ci in range(3): a(f"ds_write_b128 v{cPS[ci]}, {v(KV+24+4*ci,4)} offset:128")
a("s_mov_b64 exec, -1\nL_kvskip2:")
a(f"""
  s_lshl_b32 s{sT4}, s{sG}, 13
  s_add_u32 s{sT4}, s{sT4}, {WS_F1}
  s_lshl_b32 s{sT0}, s{sT}, 5
  s_lshl_b32 s{sT3}, s{sTG}, 3
  s_add_u32 s{sT0}, s{sT0}, s{sT3}
  s_add_u32 s{sT0}, s{sT0}, s{sT4}
  s_lshl_b32 s{sT3}, s{sT}, 9
  s_add_u32 s{sT4}, s{sT4}, s{sT3}
  v_lshlrev_b32 v{vT[4]}, 4, v0
  v_add_u32 v{vT[4]}, {PST}, v{vT[4]}
  s_waitcnt lgkmcnt(0)
""")
stamp(21)
arrive(CKV)
cwait(CKV, 4)
stamp(22)
for j in range(3): a(f"ds_read_b128 {v(32+4*j,4)}, v{vT[4]} offset:{4096*j}")
for j in range(3):
    a(f"s_waitcnt lgkmcnt({2-j})\nbuffer_store_dwordx4 {v(32+4*j,4)}, v{cGQ[j]}, {srd(SWS)}, s{sPB} offen sc1")
stamp(23)
set_flag(sT0, 16)
arrive(CPS)
HI[0] = 0
a("s_setprio 0")
stamp(6)
def poll_all(lab, soff, addr, cnt):
    R = [(32, 33), (34, 35), (36, 37)][:PP]
    a(f"s_cmp_lg_u32 s{sWV}, 0\ns_cbranch_scc1 {lab}_w\ns_mov_b32 s{sRETRY}, 0")
    for i, (r0, r1) in enumerate(R):
        a(f"buffer_load_dwordx2 v[{r0}:{r1}], v{addr}, {srd(SWS)}, s{soff} offen sc1")
        if i < PP - 1: a(f"s_sleep {opt('pst', 6)}")
    a(f"{lab}:")
    for i, (r0, r1) in enumerate(R):
        a(f"""
  s_waitcnt vmcnt({PP-1})
  v_cmp_ne_u32 vcc, s{sNON}, v{r0}
  v_cmp_ne_u32 s[{sM2}:{sM2+1}], s{sNON+1}, v{r1}
  s_or_b64 vcc, vcc, s[{sM2}:{sM2+1}]
  s_cbranch_scc0 {lab}_d
  buffer_load_dwordx2 v[{r0}:{r1}], v{addr}, {srd(SWS)}, s{soff} offen sc1""")
    a(f"""
  s_add_u32 s{sRETRY}, s{sRETRY}, 1
  s_cmp_lt_u32 s{sRETRY}, 100000
  s_cbranch_scc1 {lab}
{lab}_d:""")
    arrive(cnt, vT[6], vT[7])
    a(f"{lab}_w:")
    cwait(cnt, 1, vT[6], vT[7])
PB = 32
LDF = '' if opt('plain', 1) else ' sc1'
a(f"""
  s_lshl_b32 s{sT5}, s{sG}, 18
  s_mov_b32 s64, 0x11111111
  s_mov_b32 s65, 0x11111111
  s_mov_b32 s{sRETRY}, 0
  v_mov_b32 v{vT[4]}, {CNT + CG}
  s_cmp_lg_u32 s{sWV}, 0
  s_cbranch_scc1 L_gloop
""")
R_ = [(32, 33), (34, 35), (36, 37)][:PP]
for i, (r0, r1) in enumerate(R_):
    a(f"buffer_load_dwordx2 v[{r0}:{r1}], v{cSA}, {srd(SWS)}, s{sT4} offen sc1")
    if i < PP - 1: a(f"s_sleep {opt('pst', 6)}")
a("L_gp0:")
for i, (r0, r1) in enumerate(R_):
    a(f"""
  s_waitcnt vmcnt({PP-1})
  v_cmp_eq_u32 vcc, s{sNON}, v{r0}
  v_cmp_eq_u32 s[{sM2}:{sM2+1}], s{sNON+1}, v{r1}
  s_and_b64 vcc, vcc, s[{sM2}:{sM2+1}]
  s_lshr_b64 s[{sM2}:{sM2+1}], vcc, 1
  s_and_b64 vcc, vcc, s[{sM2}:{sM2+1}]
  s_lshr_b64 s[{sM2}:{sM2+1}], vcc, 2
  s_and_b64 vcc, vcc, s[{sM2}:{sM2+1}]
  v_mov_b32 v{vT[6]}, vcc_lo
  v_mov_b32 v{vT[7]}, vcc_hi
  ds_write_b64 v{vT[4]}, v[{vT[6]}:{vT[7]}]
  s_andn2_b64 s[{sM2}:{sM2+1}], s[64:65], vcc
  s_cbranch_scc0 L_gp1
  buffer_load_dwordx2 v[{r0}:{r1}], v{cSA}, {srd(SWS)}, s{sT4} offen sc1""")
a(f"""
  s_add_u32 s{sRETRY}, s{sRETRY}, 1
  s_cmp_lt_u32 s{sRETRY}, 100000
  s_cbranch_scc1 L_gp0
L_gp1:
""")
stamp(28)
if STAMPS: a(f"v_writelane_b32 v{vSTAMP}, s{sRETRY}, 29")
a(f"""
L_gloop:
L_gread:
  ds_read_b64 v[{vT[6]}:{vT[7]}], v{vT[4]}
  s_waitcnt lgkmcnt(0)
  v_readfirstlane_b32 s{sM2}, v{vT[6]}
  v_readfirstlane_b32 s{sM2+1}, v{vT[7]}
  s_add_u32 s{sRETRY}, s{sRETRY}, 1
  s_cmp_gt_u32 s{sRETRY}, 400000
  s_cbranch_scc1 L_gdone
  s_and_b64 s[{sM2}:{sM2+1}], s[{sM2}:{sM2+1}], s[64:65]
  s_cbranch_scc1 L_gnew
  s_sleep 2
  s_branch L_gloop
L_gnew:
  s_andn2_b64 s[64:65], s[64:65], s[{sM2}:{sM2+1}]
""")
for p in range(16):
    lab = f"L_gl{p}"
    a(f"s_bitcmp1_b64 s[{sM2}:{sM2+1}], {4*p}\ns_cbranch_scc0 {lab}")
    a(f"s_add_u32 s{sT2}, s{sT5}, {p*16384}")
    for j in range(3):
        a(f"buffer_load_dwordx4 {v(PB+12*p+4*j,4)}, v{cGQ[j]}, {srd(SWS)}, s{sT2} offen{LDF}")
    a(f"{lab}:")
a(f"""
  s_cmp_lg_u64 s[64:65], 0
  s_cbranch_scc1 L_gloop
L_gdone:
""")
stamp(7)
a("s_waitcnt vmcnt(0)")
stamp(8)
for p in range(1, 16):
    for q in range(0, 12, 2):
        a(f"v_pk_add_f32 {v(PB+q,2)}, {v(PB+q,2)}, {v(PB+12*p+q,2)}")
for j in range(3):
    r = PB + 4 * j
    a(f"v_cvt_pk_bf16_f32 v{r}, v{r}, v{r+1}\nv_cvt_pk_bf16_f32 v{r+1}, v{r+2}, v{r+3}")
a(f"ds_write_b64 v{cLQ[0]}, {v(PB,2)}\nds_write_b64 v{cLQ[1]}, {v(PB+4,2)}")
a(f"""
  v_cmp_gt_u32 vcc, {684-512}, v0
  s_and_saveexec_b64 s[94:95], vcc
  ds_write_b64 v{cLQ[2]}, {v(PB+8,2)}
  s_mov_b64 exec, -1
  v_mul_u32_u24 v{vT[0]}, 80, v0
  v_add_u32 v{vT[0]}, {KVT+72}, v{vT[0]}
  v_mov_b32 v{vT[2]}, 0
  v_mov_b32 v{vT[3]}, 0
  v_cmp_gt_u32 vcc, 76, v0
  s_and_saveexec_b64 s[94:95], vcc
  ds_write_b64 v{vT[0]}, v[{vT[2]}:{vT[3]}]
  s_mov_b64 exec, -1
  s_mul_i32 s{sT2}, s{sTG}, 5120
  s_add_u32 s{sT2}, s{sT2}, {PQ}
  v_add_u32 v{vT[0]}, s{sT2}, v{cL16}
  v_bfe_u32 v{vT[3]}, v{vLANE}, 2, 2
  v_lshl_add_u32 v{vT[1]}, v{vG}, 2, v{vT[3]}
  v_and_b32 v{vT[2]}, 3, v{vLANE}
  s_movk_i32 s{sT3}, 144
  v_mul_u32_u24 v{vT[1]}, s{sT3}, v{vT[1]}
  v_lshl_add_u32 v{vRA[0]}, v{vT[2]}, 3, v{vT[1]}
  s_waitcnt lgkmcnt(0)
  s_barrier
""")
stamp(9)
KPHQ = 180; KOUT = 136; KNB = 32; SAVE = 200
for c in range(5): a(f"ds_read_b128 {v(KPHQ+4*c,4)}, v{vT[0]} offset:{c*1024}")
a(f"v_add_u32 v{vRA[1]}, 65536, v{vRA[0]}\nv_add_u32 v{vRA[2]}, 131072, v{vRA[0]}")
for t in range(5):
    for hh in range(2):
        o = wo_addr[(35, hh)] + 32 * t
        a(f"ds_read_b64_tr_b16 {v(SAVE+4*t+2*hh,2)}, v{vRA[o >> 16]} offset:{o & 0xffff}")
a("s_waitcnt lgkmcnt(0)")
num_and_store(KPHQ, KNB, KOUT, cKV, False)
OF = 32
FB = 176; NFB = 6
CACC = 220 - 4
SAVE2 = SAVE
CACC = 220
FB = 176; NFB = 5; SAVE2 = 196; CACC = 216
for i in range(20): a(f"v_mov_b32 v{SAVE2+i}, v{SAVE+i}")
pc_setup()
a(f"""
  v_lshlrev_b32 v{vT[5]}, 2, v{vN}
  v_lshlrev_b32 v{vT[9]}, 3, v{vLANE}
  s_lshl_b32 s{sT3}, s{sTB}, 12
  s_lshl_b32 s{sPEND}, s{sCB}, 9
  s_add_u32 s{sT3}, s{sT3}, s{sPEND}
  s_add_u32 s{sPEND}, s{sT3}, {WS_F2}
""")
a("s_barrier")
stamp(27)
poll_all("L_opoll", sPEND, vT[9], CO)
a(f"""
  buffer_load_dword v{vT[6]}, v{vT[5]}, {srd(SWS)}, s{sPB} offen{LDF}
  buffer_load_dword v{vT[7]}, v{vT[5]}, {srd(SWS)}, s{sPB} offen offset:64{LDF}
""")
stamp(11)
for ks in range(18):
    for tt in range(2):
        a(f"buffer_load_dwordx4 {v(OF+8*ks+4*tt,4)}, v{vT[ks//4]}, {srd(SWS)}, s{sT5 if tt==0 else sT4} offen offset:{(ks%4)*1024}{LDF}")
stamp(26)
a(f"s_cmp_eq_u32 s{sT0}, 1\ns_cbranch_scc1 L_pc_b1")
def phaseC(b):
    seq = [(ks, t) for ks in range(18) for t in range(5)]
    def rd(i):
        ks, t = seq[i]
        if b * 18 + ks == 35: return []
        return [f"ds_read_b64_tr_b16 {v(FB+4*(i%NFB)+2*hh,2)}, v{vRA[(wo_addr[(b*18+ks, hh)] + 32*t) >> 16]} offset:{(wo_addr[(b*18+ks, hh)] + 32*t) & 0xffff}" for hh in range(2)]
    DEPTH = 4
    cnt = []
    for i in range(DEPTH):
        r = rd(i); cnt.append(len(r))
        for x_ in r: a(x_)
    for i, (ks, t) in enumerate(seq):
        saved = (b * 18 + ks == 35)
        w = []
        if t == 0: w.append(f"vmcnt({34 - 2*ks})")
        if not saved: w.append(f"lgkmcnt({sum(cnt[i+1:])})")
        if w: a("s_waitcnt " + " ".join(w))
        nx = rd(i + DEPTH) if i + DEPTH < len(seq) else []
        cnt.append(len(nx))
        fr = (SAVE2 + 4 * t) if saved else (FB + 4 * (i % NFB))
        for tt in range(2):
            acc = CACC + 20 * tt + 4 * t
            a(f"v_mfma_f32_16x16x32_bf16 {v(acc,4)}, {v(fr,4)}, {v(OF+8*ks+4*tt,4)}, {v(acc,4) if ks else '0'}")
            if nx: a(nx[tt])
phaseC(0)
a("s_branch L_pc_done")
a("L_pc_b1:")
phaseC(1)
a("L_pc_done:")
stamp(12)
arrive(CKD, vT[10], vT[11])
E0 = 32
for i in range(20):
    a(f"v_cvt_pk_bf16_f32 v{E0+i}, v{CACC+2*i}, v{CACC+2*i+1}")
a(f"""
  s_cmp_eq_u32 s{sT0}, 1
  s_cselect_b64 vcc, -1, 0
  v_cndmask_b32 v{vT[6]}, v{vT[6]}, v{vT[7]}, vcc
  v_cvt_pk_bf16_f32 v{vT[6]}, v{vT[6]}, v{vT[6]}
  v_lshlrev_b32 v{vT[6]}, 16, v{vT[6]}
  v_mul_f32 v{vT[6]}, s{sL+2}, v{vT[6]}
  v_exp_f32 v{vT[6]}, v{vT[6]}
  v_add_f32 v{vT[6]}, 1.0, v{vT[6]}
  v_rcp_f32 v{vT[6]}, v{vT[6]}
  v_cvt_pk_bf16_f32 v{vT[6]}, v{vT[6]}, v{vT[6]}
  v_lshlrev_b32 v{vT[6]}, 16, v{vT[6]}
  v_sub_f32 v{vT[7]}, 1.0, v{vT[6]}
  v_cvt_pk_bf16_f32 v{vT[7]}, v{vT[7]}, v{vT[7]}
  v_lshlrev_b32 v{vT[7]}, 16, v{vT[7]}
  v_cndmask_b32 v{vT[8]}, v{vT[6]}, v{vT[7]}, vcc
  v_cndmask_b32 v{vT[10]}, v{vT[7]}, v{vT[6]}, vcc
""")
for i in range(10):
    a(f"v_cndmask_b32 v{E0+20+i}, v{E0+10+i}, v{E0+i}, vcc\nv_cndmask_b32 v{E0+32+i}, v{E0+i}, v{E0+10+i}, vcc")
a(f"""
  s_mul_i32 s{sT2}, s{sWV}, 3072
  v_add_u32 v{vT[1]}, s{sT2}, v{vT[0]}
  s_xor_b32 s{sT3}, s{sWV}, 2
  s_mul_i32 s{sT3}, s{sT3}, 3072
  v_add_u32 v{vT[2]}, s{sT3}, v{vT[0]}
""")
cwait(CKD, 8, vT[5], vT[9])
a(f"""
  ds_write_b128 v{vT[1]}, {v(E0+20,4)}
  ds_write_b128 v{vT[1]}, {v(E0+24,4)} offset:1024
  ds_write_b64 v{vT[1]}, {v(E0+28,2)} offset:2048
  v_mov_b32 v{vT[5]}, {CNT+CE}
  v_mov_b32 v{vT[9]}, 1
  s_waitcnt lgkmcnt(0)
  s_mov_b64 exec, 1
  ds_add_u32 v{vT[5]}, v{vT[9]}
  s_mov_b64 exec, -1
  s_lshl_b32 s{sT2}, s{sTB}, 6
  s_lshl_b32 s{sT3}, s{sT1}, 5
  s_add_u32 s{sT2}, s{sT2}, s{sT3}
  s_lshl_b32 s{sT3}, s{sT0}, 4
  s_add_u32 s{sT2}, s{sT2}, s{sT3}
  v_add_u32 v{vT[3]}, s{sT2}, v{vN}
  s_movk_i32 s{sT3}, 1152
  v_mul_lo_u32 v{vT[3]}, v{vT[3]}, s{sT3}
  v_lshl_add_u32 v{vT[3]}, v{vG}, 3, v{vT[3]}
  s_mul_i32 s{sT3}, s{sCB}, 144
  v_add_u32 v{vT[3]}, s{sT3}, v{vT[3]}
  v_cmp_lt_u32 vcc, 1, v{vG}
  v_mov_b32 v{vT[4]}, {BIG}
  v_cndmask_b32 v{vT[4]}, v{vT[3]}, v{vT[4]}, vcc
""")
W0 = 80
for i in range(10):
    r = E0 + 32 + i
    a(f"""
  v_lshlrev_b32 v{W0+2*i}, 16, v{r}
  v_and_b32 v{W0+2*i+1}, 0xffff0000, v{r}
  v_pk_mul_f32 {v(W0+2*i,2)}, {v(W0+2*i,2)}, {v(vT[8],2)} op_sel_hi:[1,0]
  v_cvt_pk_bf16_f32 v{r}, v{W0+2*i}, v{W0+2*i+1}
  v_lshlrev_b32 v{W0+2*i}, 16, v{r}
  v_and_b32 v{W0+2*i+1}, 0xffff0000, v{r}
""")
cwait(CE, 4, vT[5], vT[9])
a(f"""
  ds_read_b128 {v(E0+20,4)}, v{vT[2]}
  ds_read_b128 {v(E0+24,4)}, v{vT[2]} offset:1024
  ds_read_b64 {v(E0+28,2)}, v{vT[2]} offset:2048
  s_waitcnt lgkmcnt(0)
""")
for t in range(5):
    for h in range(2):
        i = 2 * t + h
        r = E0 + 20 + i; w = W0 + 20 + 2 * (i & 1)
        a(f"""
  v_lshlrev_b32 v{w}, 16, v{r}
  v_and_b32 v{w+1}, 0xffff0000, v{r}
  v_pk_mul_f32 {v(w,2)}, {v(w,2)}, {v(vT[10],2)} op_sel_hi:[1,0]
  v_cvt_pk_bf16_f32 v{r}, v{w}, v{w+1}
  v_lshlrev_b32 v{w}, 16, v{r}
  v_and_b32 v{w+1}, 0xffff0000, v{r}
  v_pk_add_f32 {v(w,2)}, {v(w,2)}, {v(W0+2*i,2)}
  v_cvt_pk_bf16_f32 v{E0+i}, v{w}, v{w+1}
""")
    a(f"buffer_store_dwordx2 {v(E0+2*t,2)}, v{vT[3] if t < 4 else vT[4]}, {srd(SOUT)}, 0 offen offset:{32*t}")
stamp(13)
a("s_branch L_fin")

a("L_loader:")
loader()
get_nonce()
stamp(4)
a(f"""
  v_bfe_u32 v{vT[0]}, v{vLANE}, 2, 2
  v_lshl_add_u32 v{vT[1]}, v{vG}, 2, v{vT[0]}
  v_and_b32 v{vT[2]}, 3, v{vLANE}
  s_movk_i32 s{sT3}, 144
  v_mul_u32_u24 v{vT[4]}, s{sT3}, v{vT[1]}
  s_mov_b32 s{sT3}, {sum(u << (8*c) for c, u in enumerate(KOFF8))}
  v_lshlrev_b32 v{vT[5]}, 3, v{vT[2]}
  v_lshrrev_b32 v{vT[5]}, v{vT[5]}, s{sT3}
  v_and_b32 v{vT[5]}, 0xff, v{vT[5]}
  v_lshl_add_u32 v{23}, v{vT[5]}, 3, v{vT[4]}
  v_add_u32 v{24}, 65536, v{23}
  v_lshlrev_b32 v{25}, 4, v{vG}
  v_add_u32 v{25}, {GW}, v{25}
  s_mov_b32 s{sT5}, s{sROT}
""")
GACC = [vT[0], vT[4]]
groups = [(0, 18)] if opt('qwait', 1) else [(0, 6), (6, 14), (14, 18)]
for gi, (g0_, g1_) in enumerate(groups):
    if gi == (0 if opt('qwait', 1) else 1):
        cwait(C1, 8, 12, 13)
        for i_ in range(18):
            if wq_time(i_) == 18: issue_q(i_)
    wo_ready()
    if opt('qwait', 1): cwait(CPF, opt('qwait', 1), 12, 13)
    a(f"s_waitcnt vmcnt({vm.wait_for(('q', g1_ - 1))})")
    arrive(CWA + 4 * gi, 12, 13); cwait(CWA + 4 * gi, 4, 12, 13)
    stamp(30 + 2 * gi)
    steps = [(ks, t) for ks in range(g0_, g1_) for t in range(6)]
    def rd(i):
        ks, t = steps[i]
        fb = QRING + 4 * (i % 8)
        if t == 5:
            return [f"s_lshl_b32 s{sT4}, s{sT5}, 6\nv_add_u32 v{14}, s{sT4}, v{25}\ns_add_u32 s{sT5}, s{sT5}, 1\ns_cmp_eq_u32 s{sT5}, 18\ns_cselect_b32 s{sT5}, 0, s{sT5}\nds_read_b128 {v(fb,4)}, v{14}"]
        return [f"ds_read_b64_tr_b16 {v(fb+2*hh,2)}, v{23 + ((wq_addr[ks] + hh*2304 + 8*t) >> 16)} offset:{(wq_addr[ks] + hh*2304 + 8*t) & 0xffff}" for hh in range(2)]
    D_ = 6
    cnt = []
    for i in range(D_):
        r = rd(i); cnt.append(len(r))
        for x_ in r: a(x_)
    QB0 = opt('qb0', 66)
    pendB = list(grp['B']) if opt('wolate', 0) == 3 else []
    for i, (ks, t) in enumerate(steps):
        a(f"s_waitcnt lgkmcnt({sum(cnt[i+1:])})")
        nx = rd(i + D_) if i + D_ < len(steps) else []
        cnt.append(len(nx))
        for tt in range(2):
            acc = GACC[tt] if t == 5 else QACC + 20 * tt + 4 * t
            a(f"v_mfma_f32_16x16x32_bf16 {v(acc,4)}, {v(QRING+4*(i%8),4)}, {v(QX0+8*ks+4*tt,4)}, {v(acc,4) if ks else '0'}")
            if tt < len(nx): a(nx[tt])
    stamp(31 + 2 * gi)
    arrive(CWD + 4 * gi, 12, 13)
stamp(7)
a(f"""
  v_cmp_eq_u32 vcc, 1, v{vG}
  v_cndmask_b32 v{vT[0]}, v{GACC[0]}, v{GACC[1]}, vcc
  v_lshlrev_b32 v{vT[2]}, 2, v{vLANE}
  v_cmp_gt_u32 vcc, 32, v{vLANE}
  v_mov_b32 v{vT[3]}, {BIG}
  v_cndmask_b32 v{vT[2]}, v{vT[3]}, v{vT[2]}, vcc
  s_lshl_b32 s{sT2}, s{sT}, 9
  s_lshl_b32 s{sT3}, s{sTG}, 7
  s_add_u32 s{sT2}, s{sT2}, s{sT3}
  s_add_u32 s{sT2}, s{sT2}, {WS_GATE}
  s_cmp_eq_u32 s{sG}, 0
  s_cselect_b32 s{sT2}, s{sT2}, {BIG}
  buffer_store_dword v{vT[0]}, v{vT[2]}, {srd(SWS)}, s{sT2} offen sc1
""")
for kb, tt in zip((KB0, KB1), (0, 1)):
    for t in range(5):
        s_ = QACC + 20 * tt + 4 * t
        a(f"v_cvt_pk_bf16_f32 v{kb+2*t}, v{s_}, v{s_+1}\nv_cvt_pk_bf16_f32 v{kb+2*t+1}, v{s_+2}, v{s_+3}")
    a(f"v_mov_b32 v{kb+10}, 0\nv_mov_b32 v{kb+11}, 0")
a2_reads(cA2)
cwait(CWD + 4 * (len(groups) - 1), 4)
a("s_waitcnt lgkmcnt(0)")
for m in stage2_mfmas(P0, A2L, KB0): a(m)
merge(softmax_list(P0, EPk, PH0), stage2_mfmas(P1, A2L, KB1), every=3)
a(f"s_mul_i32 s{sT2}, s{sTG}, 5120\ns_add_u32 s{sT2}, s{sT2}, {PQ}\nv_add_u32 v{vT[8]}, s{sT2}, v{cL16}")
for c in range(5): a(f"ds_write_b128 v{vT[8]}, {v(PH0+4*c,4)} offset:{c*1024}")
for x in softmax_list(P1, EPk, PH1): a(x)
cwait(CPS, 4)
wo_items(grp['B'][:2], cW2)
n_ = wo_items(grp['A'] + grp['B'][2:], cW2)
stamp(8)
a(f"s_waitcnt vmcnt({n_}) lgkmcnt(0)\ns_barrier")
stamp(9)
num_and_store(PH1, 32, 136, cKV, False)
wo_items(grp['Z'], cW2)
a("s_waitcnt vmcnt(0)\ns_barrier")
a("L_fin:")
if STAMPS:
    a(f"""
  s_and_b32 s{sT2}, s{sWV}, 3
  s_cmp_lg_u32 s{sT2}, 0
  s_cbranch_scc1 L_end
  s_waitcnt vmcnt(0)
  s_memrealtime s[94:95]
  s_waitcnt lgkmcnt(0)
  v_writelane_b32 v{vSTAMP}, s94, 14
  s_getreg_b32 s94, hwreg(HW_REG_XCC_ID)
  s_getreg_b32 s95, hwreg(HW_REG_HW_ID)
  v_writelane_b32 v{vSTAMP}, s94, 15
  v_writelane_b32 v{vSTAMP}, s95, 16
  v_lshlrev_b32 v{vT[0]}, 2, v{vLANE}
  DBGCODE
  s_lshl_b32 s{sT2}, s2, 9
  s_lshl_b32 s{sT3}, s{sROLE}, 8
  s_add_u32 s{sT2}, s{sT2}, s{sT3}
  s_add_u32 s{sT2}, s{sT2}, {WS_DBG}
  buffer_store_dword v{vSTAMP}, v{vT[0]}, {srd(SWS)}, s{sT2} offen
""")
a("L_end:\n  s_endpgm")
for i_, l_ in enumerate(a.lines):
    if 'DBGCODE' in l_:
        a.lines[i_] = (f"""  s_cmp_lg_u32 s{sROLE}, 0
  s_cbranch_scc1 L_nodbg
  v_not_b32 v{vT[1]}, v{vSTAMP}
  v_cmp_eq_u32 vcc, 0, v{vLANE}
  s_nop 1
  v_cndmask_b32 v{vT[1]}, v{vSTAMP}, v{vT[1]}, vcc
  v_add_u32 v{vT[2]}, 8, v{vT[0]}
  s_mov_b32 exec_lo, 0x7fff
  s_mov_b32 exec_hi, 0
  buffer_atomic_umax v{vT[1]}, v{vT[2]}, {srd(SDBG)}, 0 offen
  s_mov_b64 exec, -1
L_nodbg:""" if opt('dbg', 0) else "")

hdr = open('cdna_kernels/' + NAME + '.s.ref').read().split('; Override launch')[0]
out = kernel_file(a.text(), "grid=(256,1,1) block=(512,1,1) lds=163840", 256, hdr_comment=hdr)
outp = [x for x in sys.argv[1:] if not x.startswith('--') and not x.startswith('o:')]
open(outp[0] if outp else 'k.s', 'w').write(out)
```

```python
import sys
from asmlib import *

STAMPS = '--stamps' in sys.argv
OPT = dict(x[2:].split('=') for x in sys.argv if x.startswith('o:'))
def opt(k, d): return type(d)(OPT.get(k, d))
NB0 = opt('nb0', 3)
PP = opt('pp', 1)

XSL = 16384; NXS = 3
WSL = 16384; NWS = 6; W0L = NXS * XSL
assert W0L + NWS * WSL <= 156672
KST = 4608
TAB = 34 * KST
T2 = TAB
GW = TAB + 3840
ZR = GW + 1152
CNT = ZR + 1408
PF = 0; HX = 0
VF = 135680
wq_addr = [65536 + 4608 * i for i in range(14)] + [49152 + 4608 * i for i in range(3)] + [41472]
def wq_time(i):
    lo, hi = wq_addr[i], wq_addr[i] + 4608
    if lo < 65536: return 18
    if opt('wqlate', 1): return 17
    return 12 + (hi - 1 - 49152) // 16384
PST = 0
KVT = PST
PQ = 81920
OST = PQ
EPI = 8192
HU = 2304
regions = [(0, 6400, 'Z'), (6400, 40960, 'B'), (40960, 81920, 'A'), (81920, 102400, 'Z'),
           (102400, 135680, 'A'), (135680, 156160, 'B'), (156160, 156672, 'A'), (156672, 161664, 'Z')]
units = []
for u in range(161664 // HU):
    lo, hi = u * HU, (u + 1) * HU
    units.append((max(t for a_, b_, t in regions if a_ < hi and lo < b_), lo))
units.sort()
need_order = [(b * 18 + ks, hh) for ks in range(18) for b in range(2) for hh in range(2) if b * 18 + ks != 35]
uA = [lo for t, lo in units if t == 'A']; uB = [lo for t, lo in units if t == 'B']; uZ = [lo for t, lo in units if t == 'Z']
save_u = [uB.pop(), uB.pop()]
uZ += save_u
wo_addr = {(35, 0): save_u[0], (35, 1): save_u[1]}
grp = {'A': [], 'B': [(35, 0), (35, 1)], 'Z': []}
it_ = iter(need_order)
for t, lst in ((('B', uB), ('A', uA), ('Z', uZ)) if opt('wolate', 0) == 3 else (('A', uA), ('B', uB), ('Z', uZ))):
    for lo in lst:
        x_ = next(it_, None)
        if x_ is None: break
        wo_addr[x_] = lo; grp[t].append(x_)
assert next(it_, None) is None, "wo does not fit"
if opt('wolate', 0) == 3:
    grp['Z'] = grp['A'] + grp['Z']; grp['A'] = []
if opt('wolate', 0) in (1, 2):
    grp['Z'] = grp['B'][2:] + grp['Z']; grp['B'] = grp['B'][:2]
if opt('wolate', 0) == 2:
    grp['Z'] = grp['A'] + grp['Z']; grp['A'] = []
C1, CPF, CKV, CPS, CKD, CK4, CO, CE, CG = 0, 4, 8, 12, 16, 24, 32, 36, 40
CWA, CWD = 64, 128

WS_O = 4 << 20; WS_GATE = 10 << 20; WS_DBG = 16 << 20
WS_F1 = 11 << 20; WS_F2 = 12 << 20; WS_F4 = 13 << 20; WS_WOC = 14 << 20
sNON = 80
vNON = 12
BIG = 0x7FFF0000

SX, SW, SWS, SWOA, SWOB, SOUT, SDBG, SPHI, SGATE = 4, 8, 12, 16, 20, 24, 28, 32, 36
def srd(s): return f"s[{s}:{s+3}]"
sT, sG, sB, sHQ, sWV, sTG, sROLE, sK, sT0, sT1, sT2, sT3 = 40, 41, 42, 43, 44, 45, 46, 47, 48, 49, 50, 51
sMX, sMWA, sMQ2, sMQ = 52, 53, 54, 55
sROT, sTB, sCB, sRETRY = 56, 57, 58, 59
sL = 60
sPA = 64
sWOC = 66; sMASK = 88; sPEND = 90; sT4, sT5 = 91, 92; sTILE = 93
sPB = 96; sH144 = 97; sPW = 98; sTH = 99; sM2 = 100

vLANE, vN, vG = 1, 2, 3
vT = list(range(4, 16))
vXOFF, vWA, vWB, vWQ, vWO = 16, 17, 18, 19, 20
vRA = [21, 22, 23, 24, 25]
vRX = [26, 27]
vOST = [28, 29, 30]
vSTAMP = 31
vXOFF2 = 15
XB, ACC, RING, NRING = 32, 64, 204, 5
QX0, QACC, QRING = 32, 176, 216
KC = 224
cPS = [KC + i for i in range(3)]
cAF, cB01, cB2 = KC + 3, KC + 4, KC + 5
cGQ = [KC + 8, KC + 9, KC + 10]; cLQ = [KC + 11, KC + 12, KC + 13]
cSA, cSB = KC + 14, KC + 15
cSEL = [KC + 16, KC + 20]
cA2, cKV, cL16, cPFW, cW2 = KC + 24, KC + 25, KC + 26, KC + 27, KC + 28

a = Asm()
def stamp(idx):
    if not STAMPS: return
    a(f"s_memrealtime s[94:95]\ns_waitcnt lgkmcnt(0)\nv_writelane_b32 v{vSTAMP}, s94, {idx}")
def v(i, n=1): return f"v{i}" if n == 1 else f"v[{i}:{i+n-1}]"
class VM:
    def __init__(self, ops=()): self.ops = list(ops)
    def add(self, tag, n=1): self.ops += [tag] * n
    def wait_for(self, tag):
        idx = max(i for i, t in enumerate(self.ops) if t == tag)
        return min(63, len(self.ops) - 1 - idx)
vm = VM()
def interleave(main, fill, per=1):
    fill = list(fill)
    for m in main:
        a(m)
        for _ in range(per):
            if fill: a(fill.pop(0))
    for f in fill: a(f)
nl = [0]
def arrive(c, t0=vT[0], t1=vT[1]):
    a(f"""
  v_mov_b32 v{t0}, {CNT + c}
  v_mov_b32 v{t1}, 1
  s_mov_b64 exec, 1
  ds_add_u32 v{t0}, v{t1}
  s_mov_b64 exec, -1""")
HI = [0]
def cwait(c, n, t0=vT[0], t1=vT[1]):
    _cwait(c, n, t0, t1)
    if HI[0]: a(f"s_setprio {HI[0]}")
def _cwait(c, n, t0, t1):
    nl[0] += 1; L = f"L_cw{nl[0]}"
    a(f"""
  v_mov_b32 v{t0}, {CNT + c}
  s_mov_b32 s{sRETRY}, 0
{L}:
  ds_read_b32 v{t1}, v{t0}
  s_waitcnt lgkmcnt(0)
  v_readfirstlane_b32 s{sT2}, v{t1}
  s_add_u32 s{sRETRY}, s{sRETRY}, 1
  s_cmp_gt_u32 s{sRETRY}, 2000000
  s_cbranch_scc1 {L}d
  s_cmp_ge_u32 s{sT2}, {n}
  s_cbranch_scc1 {L}d
  s_setprio 0
  s_sleep 1
  s_branch {L}
{L}d:""")

a(f"""
  s_cmp_ge_u32 s2, 256
  s_cbranch_scc1 L_end
  s_load_dwordx16 s[64:79], s[0:1], 0
  s_load_dwordx8 s[80:87], s[0:1], 64
  s_getpc_b64 s[94:95]
L_pc:
  v_and_b32 v{vLANE}, 63, v0
  v_lshrrev_b32 v{vT[0]}, 6, v0
  s_lshr_b32 s{sT1}, s2, 3
  s_and_b32 s{sT0}, s2, 7
  v_readfirstlane_b32 s{sPW}, v{vT[0]}
  s_cmp_ge_u32 s{sPW}, 2
  s_cbranch_scc1 L_nopf
  s_lshl_b32 s{sT2}, s{sPW}, 5
  s_add_u32 s{sT2}, s{sT2}, s{sT1}
  s_lshl_b32 s{sT2}, s{sT2}, 10
  v_lshlrev_b32 v{vT[1]}, 4, v{vLANE}
  v_add_u32 v{vT[1]}, s{sT2}, v{vT[1]}
  v_min_u32 v{vT[1]}, L_end-L_pc, v{vT[1]}
  global_load_dword v{63}, v{vT[1]}, s[94:95]
L_nopf:
""")
if STAMPS: a(f"v_mov_b32 v{vSTAMP}, 0")
stamp(0)
a(f"""
  s_and_b32 s{sT}, s{sT0}, 1
  s_lshl_b32 s{sT}, s{sT}, 3
  s_and_b32 s{sT2}, s{sT1}, 7
  s_add_u32 s{sT}, s{sT}, s{sT2}
  s_lshr_b32 s{sG}, s{sT0}, 1
  s_lshl_b32 s{sG}, s{sG}, 2
  s_lshr_b32 s{sT3}, s{sT1}, 3
  s_add_u32 s{sG}, s{sG}, s{sT3}
  s_lshr_b32 s{sB}, s{sG}, 3
  s_and_b32 s{sHQ}, s{sG}, 7
  s_mul_i32 s{sT2}, s{sT2}, 9
  s_lshr_b32 s{sT2}, s{sT2}, 3
  s_mul_i32 s{sT3}, s{sT3}, 9
  s_lshr_b32 s{sT3}, s{sT3}, 2
  s_add_u32 s{sROT}, s{sT2}, s{sT3}
  s_sub_u32 s{sT2}, s{sROT}, 9
  s_cmp_ge_u32 s{sROT}, 9
  s_cselect_b32 s{sROT}, s{sT2}, s{sROT}
  s_lshl_b32 s{sROT}, s{sROT}, 1
  s_and_b32 s{sTB}, s{sT1}, 3
  s_lshl_b32 s{sT2}, s{sT0}, 2
  s_add_u32 s{sTB}, s{sTB}, s{sT2}
  s_lshr_b32 s{sCB}, s{sT1}, 2
  s_lshl_b32 s{sT2}, s{sPW}, 2
  s_lshr_b32 s{sWV}, 0x76543120, s{sT2}
  s_and_b32 s{sWV}, s{sWV}, 7
  s_and_b32 s{sTG}, s{sWV}, 3
  s_lshr_b32 s{sROLE}, s{sWV}, 2
  s_and_b32 s{sTH}, s{sPW}, 1
  v_and_b32 v{vN}, 15, v{vLANE}
  v_lshrrev_b32 v{vG}, 4, v{vLANE}
  v_mov_b32 v15, 0
  v_mov_b32 v16, 0
  v_mov_b32 v21, 0
  v_mov_b32 v22, 0
  v_mov_b32 v152, 0x7fff0000
  v_mov_b32 v153, 0x7fff0000
  v_mov_b32 v{cGQ[0]}, 0
  v_mov_b32 v{cGQ[1]}, 0
  v_mov_b32 v{cGQ[2]}, 0
  v_mov_b32 v{cSA}, 0
  s_mul_i32 s{sH144}, s{sHQ}, 144
  s_mov_b32 s{SX+2}, {2048*1152}
  s_mov_b32 s{SX+3}, 0x00020000
  s_mov_b32 s{SW+2}, {576*3456}
  s_mov_b32 s{SW+3}, 0x00020000
  s_mov_b32 s{SPHI+2}, {32*648}
  s_mov_b32 s{SPHI+3}, 0x00020000
  s_mov_b32 s{SWS+2}, 0x10000000
  s_mov_b32 s{SWS+3}, 0x00020000
  s_mov_b32 s{SWOA+2}, {576*1152}
  s_mov_b32 s{SWOA+3}, 0x00020000
  s_mov_b32 s{SWOB+2}, {576*1152}
  s_mov_b32 s{SWOB+3}, 0x00020000
  s_mov_b32 s{SOUT+2}, {2048*1152}
  s_mov_b32 s{SOUT+3}, 0x00020000
  s_mov_b32 s{SDBG+2}, 256
  s_mov_b32 s{SDBG+3}, 0x00020000
  s_mov_b32 s{SGATE+2}, 1152
  s_mov_b32 s{SGATE+3}, 0x00020000
""")
def srd_bases():
    a(f"""
  s_cmp_eq_u32 s{sB}, 1
  s_waitcnt lgkmcnt(0)
  s_mov_b32 s{SX}, s64
  s_mov_b32 s{SX+1}, s65
  s_cselect_b32 s{SW}, s74, s66
  s_cselect_b32 s{SW+1}, s75, s67
  s_cselect_b32 s{SPHI}, s76, s68
  s_cselect_b32 s{SPHI+1}, s77, s69
  s_mov_b32 s{SGATE}, s80
  s_mov_b32 s{SGATE+1}, s81
""")
def srd_rest():
    a(f"""
  s_mov_b32 s{SWS}, s86
  s_mov_b32 s{SWS+1}, s87
  s_mov_b32 s{SWOA}, s70
  s_mov_b32 s{SWOA+1}, s71
  s_mov_b32 s{SWOB}, s78
  s_mov_b32 s{SWOB+1}, s79
  s_mov_b32 s{SOUT}, s82
  s_mov_b32 s{SOUT+1}, s83
  s_mov_b32 s{SDBG}, s84
  s_mov_b32 s{SDBG+1}, s85
""")
def dma_off(ci, nper):
    magic = {30: (0x8889, 20), 9: (0xE38F, 19)}[nper]
    t = vT
    a(f"""
  s_mov_b32 s{sT3}, {magic[0]}
  v_mul_u32_u24 v{t[3]}, s{sT3}, v{ci}
  v_lshrrev_b32 v{t[3]}, {magic[1]}, v{t[3]}
  v_mul_u32_u24 v{t[4]}, {nper}, v{t[3]}
  v_sub_u32 v{t[4]}, v{ci}, v{t[4]}
""")
    if nper == 30:
        a(f"v_and_b32 v{t[5]}, 1, v{t[3]}\nv_xor_b32 v{t[4]}, v{t[4]}, v{t[5]}")
    a(f"""
  v_bfe_u32 v{t[5]}, v{t[3]}, 2, 2
  v_lshlrev_b32 v{t[5]}, 3, v{t[5]}
  v_lshrrev_b32 v{t[6]}, 4, v{t[3]}
  v_lshl_add_u32 v{t[5]}, v{t[6]}, 2, v{t[5]}
  v_and_b32 v{t[6]}, 3, v{t[3]}
  v_add_u32 v{t[5]}, v{t[5]}, v{t[6]}
""")
    return t[5], t[4]
def w_offs():
    a(f"""
  v_lshrrev_b32 v{vT[3]}, 5, v{vLANE}
  s_lshl_b32 s{sT2}, s{sT4}, 1
  v_add_u32 v{vT[3]}, s{sT2}, v{vT[3]}          ; rho&7
  v_and_b32 v{vT[4]}, 1, v{vT[3]}
  v_lshl_add_u32 v{vT[4]}, v{vT[3]}, 1, v{vT[4]}  ; swz16
  v_and_b32 v{vT[5]}, 31, v{vLANE}
  v_xor_b32 v{vT[4]}, v{vT[4]}, v{vT[5]}        ; unit
  v_lshrrev_b32 v{vT[8]}, 4, v{vT[4]}           ; seg
  v_and_b32 v{vT[9]}, 15, v{vT[4]}              ; j16
  v_lshrrev_b32 v{vT[6]}, 2, v{vT[3]}
  v_lshlrev_b32 v{vT[6]}, 3, v{vT[6]}
  v_and_b32 v{vT[7]}, 3, v{vT[3]}
  v_add_u32 v{vT[6]}, v{vT[6]}, v{vT[7]}        ; k for j=0
  s_movk_i32 s{sT3}, 3456
  v_mul_u32_u24 v{vT[5]}, s{sT3}, v{vT[6]}
  v_lshl_add_u32 v{vT[5]}, v{vT[9]}, 4, v{vT[5]}
  v_add_u32 v{vT[5]}, s{sH144}, v{vT[5]}
  s_movk_i32 s{sT3}, 1152
  v_mad_u32_u24 v{vT[6]}, v{vT[8]}, s{sT3}, v{vT[5]}
  v_add_u32 v{vT[6]}, 1152, v{vT[6]}            ; k / v
  s_mov_b32 s{sT3}, {32*3456}
  v_mad_u32_u24 v{vT[5]}, v{vT[8]}, s{sT3}, v{vT[5]}
  v_cmp_lt_u32 vcc, 8, v{vT[9]}
  v_mov_b32 v{vT[8]}, {BIG}
  v_cndmask_b32 v{vWL[0]}, v{vT[6]}, v{vT[8]}, vcc
  v_cndmask_b32 v{vWL[1]}, v{vT[5]}, v{vT[8]}, vcc
""")
sK2 = 3
vWL = [21, 22, 23, 24]
def x_items(pr):
    sl = (pr % NXS) * XSL
    return f"""
  s_lshl_b32 s{sT2}, s{sK}, 6
  s_add_u32 s{sT3}, s{sT2}, {16*1152}
  s_add_u32 m0, s{sMX}, {sl}
  buffer_load_dwordx4 v{vXOFF}, {srd(SX)}, s{sT2} offen lds
  s_add_u32 m0, s{sMX}, {sl + 1024}
  buffer_load_dwordx4 v{vXOFF2}, {srd(SX)}, s{sT2} offen lds
  s_add_u32 m0, s{sMX}, {sl + 2048}
  buffer_load_dwordx4 v{vXOFF}, {srd(SX)}, s{sT3} offen lds
  s_add_u32 m0, s{sMX}, {sl + 3072}
  buffer_load_dwordx4 v{vXOFF2}, {srd(SX)}, s{sT3} offen lds
  s_add_u32 s{sK}, s{sK}, 2
  s_cmp_eq_u32 s{sK}, 18
  s_cselect_b32 s{sK}, 0, s{sK}"""
def w_items(ks):
    sl = ((ks + 1) % NWS) * WSL
    o = f"\n  s_mul_i32 s{sT3}, s{sK2}, {32*3456}"
    for j, dk in enumerate((0, 16, 4, 20)):
        if j: o += f"\n  s_add_u32 s{sT2}, s{sT3}, {dk*3456}"
        o += f"""
  s_add_u32 m0, s{sMWA}, {sl + 4096*j}
  buffer_load_dwordx4 v{vWL[0]}, {srd(SW)}, s{sT2 if j else sT3} offen lds"""
    return o + f"""
  s_add_u32 s{sK2}, s{sK2}, 1
  s_cmp_eq_u32 s{sK2}, 18
  s_cselect_b32 s{sK2}, 0, s{sK2}"""
def issue_q(i):
    a(f"""
  s_mul_i32 s{sT3}, s{sK2}, {32*3456}
  s_add_u32 s{sT2}, s{sT3}, {4*3456}
  s_add_u32 m0, s{sMQ}, {wq_addr[i]}
  s_mov_b32 exec_hi, 0xf
  buffer_load_dwordx4 v{vWQ}, {srd(SW)}, s{sT3} offen lds
  s_add_u32 m0, s{sMQ}, {wq_addr[i] + 2304}
  buffer_load_dwordx4 v{vWQ}, {srd(SW)}, s{sT2} offen lds
  s_mov_b32 exec_hi, -1
  s_add_u32 s{sK2}, s{sK2}, 1
  s_cmp_eq_u32 s{sK2}, 18
  s_cselect_b32 s{sK2}, 0, s{sK2}""")
    vm.add(('q', i), 2)
def issue_x(pr): a(x_items(pr)); vm.add(('x', pr), 4)
def issue_w(ks): a(w_items(ks)); vm.add(('w', ks), 4)
SM = 32
a(f"s_cmp_lt_u32 s{sPW}, 4\ns_cbranch_scc1 L_pc0")
a(f"""
  s_and_b32 s{sT4}, s{sPW}, 3
  v_lshrrev_b32 v{vT[0]}, 3, v{vLANE}
  v_and_b32 v{vT[2]}, 7, v{vLANE}
  v_xor_b32 v{vT[2]}, v{vT[2]}, v{vG}
  s_lshl_b32 s{sT2}, s{sT}, 7
  s_lshl_b32 s{sT3}, s{sT4}, 5
  s_add_u32 s{sT2}, s{sT2}, s{sT3}
  v_add_u32 v{vT[0]}, s{sT2}, v{vT[0]}
  s_movk_i32 s{sT3}, 1152
  v_mul_lo_u32 v{vT[0]}, v{vT[0]}, s{sT3}
  v_lshl_add_u32 v{vXOFF}, v{vT[2]}, 4, v{vT[0]}
  v_xor_b32 v{vT[2]}, 4, v{vT[2]}
  v_lshl_add_u32 v{vXOFF2}, v{vT[2]}, 4, v{vT[0]}
  v_add_u32 v{vXOFF2}, {8*1152}, v{vXOFF2}
  s_lshl_b32 s{sMX}, s{sT4}, 12
  s_lshl_b32 s{sMWA}, s{sT4}, 10
  s_add_u32 s{sMWA}, s{sMWA}, {W0L}
  s_mov_b32 s{sK}, s{sROT}
  s_mov_b32 s{sK2}, s{sROT}
""")
w_offs()
srd_bases()
stamp(1)
issue_x(0); issue_w(0); issue_w(1)
NI0 = opt('ni0', 0)
if NI0: issue_x(1); issue_w(2); issue_w(3)
stamp(2)
a("s_branch L_pc1")
a("L_pc0:")
srd_bases()
srd_rest()
stamp(1)
if opt('l2pf', 0):
    a(f"""
  v_lshrrev_b32 v{vT[0]}, 1, v{vLANE}
  s_movk_i32 s{sT3}, 3456
  v_mul_u32_u24 v{vT[0]}, s{sT3}, v{vT[0]}
  v_and_b32 v{vT[1]}, 1, v{vLANE}
  v_mul_u32_u24 v{vT[1]}, 140, v{vT[1]}
  v_add3_u32 v{vT[0]}, v{vT[0]}, v{vT[1]}, s{sH144}
  s_lshl_b32 s{sT2}, s{sT}, 7
  s_lshl_b32 s{sT3}, s{sTH}, 6
  s_add_u32 s{sT2}, s{sT2}, s{sT3}
  v_add_u32 v{vT[1]}, s{sT2}, v{vLANE}
  s_movk_i32 s{sT3}, 1152
  v_mul_lo_u32 v{vT[1]}, v{vT[1]}, s{sT3}
  s_lshr_b32 s{sT2}, s{sPW}, 1
  s_lshl_b32 s{sT2}, s{sT2}, 1
  s_add_u32 s{sT2}, s{sT2}, s{sROT}
  s_add_u32 s{sT2}, s{sT2}, 2
  s_sub_u32 s{sT3}, s{sT2}, 18
  s_cmp_ge_u32 s{sT2}, 18
  s_cselect_b32 s{sT2}, s{sT3}, s{sT2}
  s_lshl_b32 s{sT2}, s{sT2}, 6
  buffer_load_dword v{50}, v{vT[1]}, {srd(SX)}, s{sT2} offen
""")
    for rep in range(opt('l2pf', 0)):
        a(f"""
  s_add_u32 s{sT2}, s{sROT}, s{sPW}
  s_add_u32 s{sT2}, s{sT2}, {2 + 4*rep}
  s_sub_u32 s{sT3}, s{sT2}, 18
  s_cmp_ge_u32 s{sT2}, 18
  s_cselect_b32 s{sT2}, s{sT3}, s{sT2}
  s_mul_i32 s{sT2}, s{sT2}, {32*3456}
  buffer_load_dword v{51+3*rep}, v{vT[0]}, {srd(SW)}, s{sT2} offen
  buffer_load_dword v{52+3*rep}, v{vT[0]}, {srd(SW)}, s{sT2} offen offset:1152
  buffer_load_dword v{53+3*rep}, v{vT[0]}, {srd(SW)}, s{sT2} offen offset:2304
""")
a(f"s_mul_i32 s{sT2}, s{sHQ}, {4*648}\nv_lshlrev_b32 v{vT[0]}, 1, v0")
for j in range(6): a(f"buffer_load_ushort v{SM+j}, v{vT[0]}, {srd(SPHI)}, s{sT2} offen offset:{512*j}")
a(f"v_lshlrev_b32 v{vT[0]}, 3, v0\nbuffer_load_dwordx2 v[{SM+6}:{SM+7}], v{vT[0]}, {srd(SGATE)}, 0 offen")
CW = 144
a(f"""
  s_lshr_b32 s{sT0}, s2, 7            ; b
  s_bfe_u32 s{sT1}, s2, 0x30004       ; cb
  s_and_b32 s{sT2}, s2, 15            ; r
  s_mul_i32 s{sT2}, s{sT2}, 36
  s_mul_i32 s{sT4}, s{sT1}, 144
  s_mul_i32 s{sT5}, s{sT1}, 165888
  s_mul_i32 s{sT3}, s{sT0}, 4608
  s_add_u32 s{sT5}, s{sT5}, s{sT3}
  s_add_u32 s{sT5}, s{sT5}, {WS_WOC}
""")
for j in range(2):
    a(f"""
  v_add_u32 v{vT[0]}, {256*j}, v0
  v_min_u32 v{vT[0]}, 323, v{vT[0]}
  s_mov_b32 s{sT3}, 0xE38F
  v_mul_u32_u24 v{vT[1]}, s{sT3}, v{vT[0]}
  v_lshrrev_b32 v{vT[1]}, 19, v{vT[1]}          ; row
  v_mul_u32_u24 v{vT[2]}, 9, v{vT[1]}
  v_sub_u32 v{vT[2]}, v{vT[0]}, v{vT[2]}        ; u
  v_add_u32 v{vT[1]}, s{sT2}, v{vT[1]}          ; k
  s_movk_i32 s{sT3}, 1152
  v_mul_u32_u24 v{vT[3]}, s{sT3}, v{vT[1]}
  v_lshl_add_u32 v{vT[3]}, v{vT[2]}, 4, v{vT[3]}
  s_cmp_eq_u32 s{sT0}, 1
  s_cbranch_scc1 L_cwB{j}
  buffer_load_dwordx4 v[{CW+4*j}:{CW+4*j+3}], v{vT[3]}, {srd(SWOA)}, s{sT4} offen
  s_branch L_cwD{j}
L_cwB{j}:
  buffer_load_dwordx4 v[{CW+4*j}:{CW+4*j+3}], v{vT[3]}, {srd(SWOB)}, s{sT4} offen
L_cwD{j}:
  v_lshrrev_b32 v{vT[4]}, 5, v{vT[1]}
  s_movk_i32 s{sT3}, 9216
  v_mul_u32_u24 v{vT[4]}, s{sT3}, v{vT[4]}
  v_bfe_u32 v{vT[5]}, v{vT[1]}, 2, 1
  s_movk_i32 s{sT3}, 2304
  v_mad_u32_u24 v{vT[4]}, v{vT[5]}, s{sT3}, v{vT[4]}
  v_bfe_u32 v{vT[5]}, v{vT[1]}, 3, 2
  v_and_b32 v{vT[6]}, 3, v{vT[1]}
  v_lshl_add_u32 v{vT[5]}, v{vT[5]}, 2, v{vT[6]}
  s_movk_i32 s{sT3}, 144
  v_mad_u32_u24 v{vT[4]}, v{vT[5]}, s{sT3}, v{vT[4]}
  v_lshl_add_u32 v{vT[4]}, v{vT[2]}, 4, v{vT[4]}
  v_add_u32 v{CW+8+j}, s{sT5}, v{vT[4]}
""")
for j in range(6):
    a(f"""
  v_add_u32 v{vT[5]}, {256*j}, v0
  s_mov_b32 s{sT3}, 0xCA46
  v_mul_u32_u24 v{vT[6]}, s{sT3}, v{vT[5]}
  v_lshrrev_b32 v{vT[6]}, 24, v{vT[6]}
  s_movk_i32 s{sT3}, 324
  v_mul_u32_u24 v{vT[7]}, s{sT3}, v{vT[6]}
  v_sub_u32 v{vT[7]}, v{vT[5]}, v{vT[7]}
  s_mov_b32 s{sT3}, 0xE38F
  v_mul_u32_u24 v{vT[8]}, s{sT3}, v{vT[7]}
  v_lshrrev_b32 v{vT[8]}, 20, v{vT[8]}
  v_mul_u32_u24 v{vT[9]}, 18, v{vT[8]}
  v_sub_u32 v{vT[9]}, v{vT[7]}, v{vT[9]}
  v_mul_u32_u24 v{vT[10]}, 20, v{vT[6]}
  v_add_u32 v{vT[10]}, v{vT[10]}, v{vT[9]}
  v_mul_u32_u24 v{vT[10]}, 48, v{vT[10]}
  v_and_b32 v{vT[6]}, 1, v{vT[6]}
  v_lshl_add_u32 v{vT[8]}, v{vT[6]}, 1, v{vT[8]}
  v_lshl_add_u32 v{vT[10]}, v{vT[8]}, 1, v{vT[10]}
  v_add_u32 v{SM+8+j}, {T2}, v{vT[10]}
""")
a(f"""
  v_mov_b32 v{vT[0]}, 0
  v_mov_b32 v{vT[1]}, 0
  v_mov_b32 v{vT[2]}, 0
  v_mov_b32 v{vT[3]}, 0
  v_lshlrev_b32 v{vT[4]}, 4, v0
  v_add_u32 v{vT[4]}, {T2}, v{vT[4]}
  v_cmp_gt_u32 vcc, 240, v0
  s_and_saveexec_b64 s[94:95], vcc
  ds_write_b128 v{vT[4]}, v[{vT[0]}:{vT[3]}]
  v_cmp_gt_u32 vcc, 100, v0
  s_and_b64 exec, exec, vcc
  ds_write_b128 v{vT[4]}, v[{vT[0]}:{vT[3]}] offset:{ZR - T2}
  s_mov_b64 exec, -1
  v_mov_b32 v{SM+14}, v0
""")
stamp(2)
a("L_pc1:")
srd_rest()
a(f"""
  s_waitcnt lgkmcnt(0)
  s_barrier
  s_lshl_b32 s{sT2}, s{sWV}, 6
  v_add_u32 v0, s{sT2}, v{vLANE}
  s_or_b32 s{sT2}, s2, s{sPW}
  s_cmp_lg_u32 s{sT2}, 0
  s_cbranch_scc1 L_nononce
  s_memrealtime s[94:95]
  s_waitcnt lgkmcnt(0)
  s_or_b32 s94, s94, 1
  s_xor_b32 s95, s95, 0x5bd1e995
  v_mov_b32 v{vT[6]}, s94
  v_mov_b32 v{vT[7]}, s95
  v_mov_b32 v{vT[5]}, 0
  s_mov_b64 exec, 1
  buffer_store_dwordx2 v[{vT[6]}:{vT[7]}], v{vT[5]}, {srd(SDBG)}, 0 offen sc1
  s_mov_b64 exec, -1
L_nononce:
  s_lshl_b32 s{sTILE}, s{sT}, 3
  s_lshl_b32 s{sT2}, s{sTG}, 1
  s_add_u32 s{sTILE}, s{sTILE}, s{sT2}
  s_add_u32 s{sTILE}, s{sTILE}, s{sROLE}
  s_lshl_b32 s{sT2}, s{sB}, 7
  s_add_u32 s{sT2}, s{sT2}, s{sTILE}
  s_mul_i32 s{sT2}, s{sT2}, 18432
  s_add_u32 s{sT2}, s{sT2}, {WS_O}
  s_mul_i32 s{sT3}, s{sHQ}, 9
""")
for j in range(3):
    a(f"""
  v_add_u32 v{vT[0]}, {4*j}, v{vG}
  v_add_u32 v{vT[1]}, s{sT3}, v{vT[0]}
  v_lshlrev_b32 v{vT[1]}, 8, v{vT[1]}
  v_lshl_add_u32 v{vT[1]}, v{vN}, 4, v{vT[1]}
  v_add_u32 v{vOST[j]}, s{sT2}, v{vT[1]}
""")
a(f"""
  v_cmp_lt_u32 vcc, 0, v{vG}
  v_mov_b32 v{vT[0]}, {BIG}
  v_cndmask_b32 v{vOST[2]}, v{vOST[2]}, v{vT[0]}, vcc
  s_lshl_b32 s{sPB}, s{sG}, 4
  s_add_u32 s{sPB}, s{sPB}, s{sT}
  s_lshl_b32 s{sPB}, s{sPB}, 14
""")
a(f"s_mul_i32 s{sT2}, s{sTG}, 36\nv_add_u32 v{vT[7]}, s{sT2}, v{vLANE}\nv_min_u32 v{vT[7]}, 143, v{vT[7]}")
k, u = dma_off(vT[7], 9)
a(f"""
  s_movk_i32 s{sT3}, 3456
  v_mul_u32_u24 v{vT[8]}, s{sT3}, v{k}
  v_lshl_add_u32 v{vT[8]}, v{u}, 4, v{vT[8]}
  v_add_u32 v{vWQ}, s{sH144}, v{vT[8]}
  s_movk_i32 s{sT3}, 1152
  v_mul_u32_u24 v{vT[8]}, s{sT3}, v{k}
  v_lshl_add_u32 v{vT[8]}, v{u}, 4, v{vT[8]}
  s_mul_i32 s{sT3}, s{sCB}, 144
  v_add_u32 v{vWO}, s{sT3}, v{vT[8]}
  s_mul_i32 s{sMQ}, s{sTG}, 576
  s_lshl_b32 s{sMQ2}, s{sTG}, 10
  s_mul_i32 s{sWOC}, s{sCB}, 165888
  s_add_u32 s{sWOC}, s{sWOC}, s{sMQ2}
  s_add_u32 s{sWOC}, s{sWOC}, {WS_WOC}
  s_mov_b32 s{sL}, 0x3fb8aa3b
  s_mov_b32 s{sL+1}, 0x3fb8aa3b
  s_mov_b32 s{sL+2}, 0xbfb8aa3b
  s_mov_b32 s{sL+3}, 0xbfb8aa3b
  s_mov_b32 s{sMASK}, 0x00f0000f
  s_mov_b32 s{sMASK+1}, 0xf0000f00
""")
def table_writes():
    for j in range(5): a(f"ds_write_b16 v{SM+8+j}, v{SM+j}")
    a(f"""
  v_cmp_gt_u32 vcc, {1296-1280}, v{SM+14}
  s_and_saveexec_b64 s[94:95], vcc
  ds_write_b16 v{SM+13}, v{SM+5}
  s_mov_b64 exec, -1
  v_lshlrev_b32 v{vT[5]}, 3, v{SM+14}
  v_add_u32 v{vT[5]}, {GW}, v{vT[5]}
  v_cmp_gt_u32 vcc, 144, v{SM+14}
  s_and_saveexec_b64 s[94:95], vcc
  ds_write_b64 v{vT[5]}, v[{SM+6}:{SM+7}]
  s_mov_b64 exec, -1
""")
EX36 = "s_mov_b32 exec_lo, -1\n  s_mov_b32 exec_hi, 0xf"
def wo_src(kk, hh): return ((kk % 18) * 2 + kk // 18) * 4608 + hh * 2304
def wo_items(lst, v2):
    runs = []
    for x_ in lst:
        sa, da = wo_src(*x_), wo_addr[x_]
        if runs and runs[-1][0] + runs[-1][2] == sa and runs[-1][1] + runs[-1][2] == da: runs[-1][2] += HU
        else: runs.append([sa, da, HU])
    n = 0
    for sa, da, L in runs:
        for o in range(0, L, 4096):
            rem = L - o
            if rem < 4096: a(f"v_cmp_gt_u32 vcc, {rem}, v{v2}\ns_mov_b64 exec, vcc")
            a(f"""
  s_add_u32 s{sT3}, s{sWOC}, {sa + o}
  s_add_u32 m0, s{sMQ2}, {da + o}
  buffer_load_dwordx4 v{cL16}, {srd(SWS)}, s{sT3} offen lds""")
            if rem < 4096: a("s_mov_b64 exec, -1")
            n += 1
    return n
def wo_ready():
    a(f"""
  s_lshl_b32 s{sT3}, s{sCB}, 10
  s_add_u32 s{sT3}, s{sT3}, {WS_F4}
  s_mov_b32 s{sRETRY}, 0
L_wordy:
  buffer_load_dwordx4 v[{vT[8]}:{vT[11]}], v{cL16}, {srd(SWS)}, s{sT3} offen sc1
  s_waitcnt vmcnt(0)
  v_cmp_ne_u32 vcc, s{sNON}, v{vT[8]}
  v_cmp_ne_u32 s[{sM2}:{sM2+1}], s{sNON+1}, v{vT[9]}
  s_or_b64 vcc, vcc, s[{sM2}:{sM2+1}]
  v_cmp_ne_u32 s[{sM2}:{sM2+1}], s{sNON}, v{vT[10]}
  s_or_b64 vcc, vcc, s[{sM2}:{sM2+1}]
  v_cmp_ne_u32 s[{sM2}:{sM2+1}], s{sNON+1}, v{vT[11]}
  s_or_b64 vcc, vcc, s[{sM2}:{sM2+1}]
  s_cbranch_scc0 L_wordyd
  s_add_u32 s{sRETRY}, s{sRETRY}, 1
  s_cmp_lt_u32 s{sRETRY}, 100000
  s_cbranch_scc1 L_wordy
L_wordyd:""")
KOFF8 = [0, 4, 9, 13]
TILEV = [[0,1,2,3],[4,5,6,7],[8,9,10,11],[12,13,14,15],[10,11,16,17]]

NONLD = f"""
  v_mov_b32 v{vT[5]}, 0
  buffer_load_dwordx2 v[{vNON}:{vNON+1}], v{vT[5]}, {srd(SDBG)}, 0 offen sc1"""
def get_nonce():
    nl[0] += 1; L = f"L_non{nl[0]}"
    a(f"""
  v_readfirstlane_b32 s{sNON}, v{vNON}
  v_readfirstlane_b32 s{sNON+1}, v{vNON+1}
  s_mov_b32 s{sRETRY}, 0
  s_cmp_lg_u32 s{sNON}, 0
  s_cbranch_scc1 {L}d
{L}:
  v_mov_b32 v{vT[5]}, 0
  buffer_load_dwordx2 v[{vNON}:{vNON+1}], v{vT[5]}, {srd(SDBG)}, 0 offen sc1
  s_waitcnt vmcnt(0)
  v_readfirstlane_b32 s{sNON}, v{vNON}
  v_readfirstlane_b32 s{sNON+1}, v{vNON+1}
  s_add_u32 s{sRETRY}, s{sRETRY}, 1
  s_cmp_gt_u32 s{sRETRY}, 100000
  s_cbranch_scc1 {L}d
  s_cmp_eq_u32 s{sNON}, 0
  s_cbranch_scc1 {L}
{L}d:""")
def set_flag(soff, nrep):
    a(f"""
  v_mov_b32 v{vT[6]}, s{sNON}
  v_mov_b32 v{vT[7]}, s{sNON+1}
  v_lshlrev_b32 v{vT[5]}, 9, v{vLANE}
  s_waitcnt vmcnt(0)
  s_mov_b64 exec, {(1 << nrep) - 1}
  buffer_store_dwordx2 v[{vT[6]}:{vT[7]}], v{vT[5]}, {srd(SWS)}, s{soff} offen sc1
  s_mov_b64 exec, -1""")
def diag_addr(dst, rows, pitch, base):
    a(f"""
  v_mul_u32_u24 v{dst}, {rows}, v{vG}
  v_and_b32 v{vT[1]}, 3, v{vN}
  v_add_u32 v{dst}, v{dst}, v{vT[1]}
  v_mul_u32_u24 v{dst}, {pitch}, v{dst}
  v_add_u32 v{dst}, {base}, v{dst}
  v_mov_b32 v{vT[1]}, {ZR}
  v_cndmask_b32 v{dst}, v{vT[1]}, v{dst}, s[{sMASK}:{sMASK+1}]
""")
SEQ2 = [(t, c) for t in range(5) for c in range(3)]
def stage2_mfmas(P, af, kb):
    return [f"v_mfma_f32_16x16x32_bf16 {v(P+4*t,4)}, {v(af[j],4)}, {v(kb+4*c,4)}, {v(P+4*t,4) if c > 0 else '0'}" for j, (t, c) in enumerate(SEQ2)]
A2L = [144 + 4 * j for j in range(15)]
KB0, KB1 = 32, 44
P0, EPk, P1 = 64, 84, 104
PH0, PH1 = 124, 204
D0, D1 = 144, 64
def softmax_list(P, EP, ph):
    o = []
    mx, mn, mx2, mn2 = vT[0], vT[2], vT[4], vT[5]
    o += [f"v_max3_f32 v{mx}, v{P}, v{P+1}, v{P+2}", f"v_min3_f32 v{mn}, v{P}, v{P+1}, v{P+2}",
          f"v_max3_f32 v{mx2}, v{P+3}, v{P+4}, v{P+5}", f"v_min3_f32 v{mn2}, v{P+3}, v{P+4}, v{P+5}"]
    for i in range(6, 18, 4):
        o += [f"v_max3_f32 v{mx}, v{mx}, v{P+i}, v{P+i+1}", f"v_min3_f32 v{mn}, v{mn}, v{P+i}, v{P+i+1}",
              f"v_max3_f32 v{mx2}, v{mx2}, v{P+i+2}, v{P+i+3}", f"v_min3_f32 v{mn2}, v{mn2}, v{P+i+2}, v{P+i+3}"]
    o += [f"v_max_f32 v{mx}, v{mx}, v{mx2}", f"v_min_f32 v{mn}, v{mn}, v{mn2}",
          f"v_mul_f32 v{mx}, s{sL+2}, v{mx}", f"v_mul_f32 v{mn}, s{sL}, v{mn}"]
    for i in range(9):
        o += [f"v_pk_fma_f32 {v(EP+2*i,2)}, {v(P+2*i,2)}, s[{sL}:{sL+1}], {v(mx,2)} op_sel_hi:[1,1,0]",
              f"v_pk_fma_f32 {v(P+2*i,2)}, {v(P+2*i,2)}, s[{sL+2}:{sL+3}], {v(mn,2)} op_sel_hi:[1,1,0]"]
    for i in range(18): o += [f"v_exp_f32 v{EP+i}, v{EP+i}", f"v_exp_f32 v{P+i}, v{P+i}"]
    sp, sm = vT[4], vT[6]
    o += [f"v_pk_add_f32 {v(sp,2)}, {v(EP,2)}, {v(EP+2,2)}", f"v_pk_add_f32 {v(sm,2)}, {v(P,2)}, {v(P+2,2)}"]
    for i in range(2, 9):
        o += [f"v_pk_add_f32 {v(sp,2)}, {v(sp,2)}, {v(EP+2*i,2)}", f"v_pk_add_f32 {v(sm,2)}, {v(sm,2)}, {v(P+2*i,2)}"]
    o += [f"v_add_f32 v{sp}, v{sp}, v{sp+1}", f"v_add_f32 v{sm}, v{sm}, v{sm+1}", f"v_rcp_f32 v{sp}, v{sp}", f"v_rcp_f32 v{sm}, v{sm}"]
    for i in range(9):
        o += [f"v_pk_mul_f32 {v(EP+2*i,2)}, {v(EP+2*i,2)}, {v(sp,2)} op_sel_hi:[1,0]",
              f"v_pk_mul_f32 {v(P+2*i,2)}, {v(P+2*i,2)}, {v(sm,2)} op_sel_hi:[1,0]"]
    for i in range(9): o.append(f"v_cvt_pk_bf16_f32 v{ph+i}, v{EP+2*i}, v{EP+2*i+1}")
    for i in range(9): o.append(f"v_cvt_pk_bf16_f32 v{ph+9+i}, v{P+2*i}, v{P+2*i+1}")
    o += [f"v_mov_b32 v{ph+18}, 0", f"v_mov_b32 v{ph+19}, 0"]
    return o
def merge(valu, mf, every=4):
    mf = list(mf)
    for i, x in enumerate(valu):
        if mf and i % every == 0: a(mf.pop(0))
        a(x)
    for m in mf: a(m)

def num_and_store(phq, nb, out, kvaddr, reuse):
    seq = [(t, c) for t in range(5) for c in range(5)]
    for b0 in (0, 13):
        batch = seq[b0:b0+13]
        nbb = nb if reuse else nb + 4 * b0
        if b0 and reuse: a("s_nop 7")
        for j, (t, c) in enumerate(batch):
            a(f"ds_read_b128 {v(nbb+4*j,4)}, v{kvaddr} offset:{t*320 + c*16}")
        if b0 == 0:
            a(f"""
  s_mul_i32 s{sT2}, s{sWV}, 2304
  s_add_u32 s{sT2}, s{sT2}, {OST}
  s_movk_i32 s{sT3}, 144
  v_mul_u32_u24 v{vT[3]}, s{sT3}, v{vN}
  v_add_u32 v{vT[3]}, s{sT2}, v{vT[3]}
  v_mul_u32_u24 v{vT[4]}, 36, v{vG}
  v_add_u32 v{vT[4]}, v{vT[3]}, v{vT[4]}
  v_lshl_add_u32 v{vT[2]}, v{vG}, 4, v{vT[3]}
  s_lshr_b32 s{sT2}, s{sTILE}, 2
  s_lshl_b32 s{sT2}, s{sT2}, 12
  s_and_b32 s{sT3}, s{sTILE}, 3
  s_lshl_b32 s{sT3}, s{sT3}, 7
  s_add_u32 s{sT2}, s{sT2}, s{sT3}
  s_lshl_b32 s{sT3}, s{sG}, 3
  s_add_u32 s{sT2}, s{sT2}, s{sT3}
  s_add_u32 s{sT0}, s{sT2}, {WS_F2}
""")
        for j, (t, c) in enumerate(batch):
            a(f"s_waitcnt lgkmcnt({len(batch)-1-j})")
            if b0 == 0 and j == 0: a("s_barrier")
            cc = v(out + 4*t, 4) if c > 0 else '0'
            a(f"v_mfma_f32_16x16x32_bf16 {v(out+4*t,4)}, {v(nbb+4*j,4)}, {v(phq+4*c,4)}, {cc}")
    a(f"v_add_f32 v{vT[0]}, 0x358637bd, v{out+18}\nv_rcp_f32 v{vT[0]}, v{vT[0]}")
    for i in range(9): a(f"v_pk_mul_f32 {v(out+2*i,2)}, {v(out+2*i,2)}, {v(vT[0],2)} op_sel_hi:[1,0]")
    for i in range(9): a(f"v_cvt_pk_bf16_f32 v{out+20+i}, v{out+2*i}, v{out+2*i+1}")
    stamp(24)
    for i in range(0, 8, 2):
        a(f"ds_write2_b32 v{vT[4]}, v{out+20+i}, v{out+21+i} offset0:{i} offset1:{i+1}")
    a(f"ds_write_b32 v{vT[4]}, v{out+28} offset:32")
    a("s_waitcnt lgkmcnt(0)")
    for j in range(3): a(f"ds_read_b128 {v(out+4*j,4)}, v{vT[2]} offset:{64*j}")
    for j in range(3):
        a(f"s_waitcnt lgkmcnt({2-j})\nbuffer_store_dwordx4 {v(out+4*j,4)}, v{vOST[j]}, {srd(SWS)}, 0 offen sc1")
    a("s_barrier")
    stamp(25)
    set_flag(sT0, 8)
    stamp(10)
def tr_base(dst):
    a(f"""
  v_bfe_u32 v{vT[3]}, v{vLANE}, 2, 2
  v_lshl_add_u32 v{vT[1]}, v{vG}, 2, v{vT[3]}
  v_and_b32 v{vT[2]}, 3, v{vLANE}
  s_movk_i32 s{sT3}, 144
  v_mul_u32_u24 v{vT[1]}, s{sT3}, v{vT[1]}
  v_lshl_add_u32 v{dst}, v{vT[2]}, 3, v{vT[1]}
""")
def pc_setup():
    a(f"""
  s_lshr_b32 s{sT0}, s{sTG}, 1
  s_and_b32 s{sT1}, s{sTG}, 1
  s_lshl_b32 s{sT2}, s{sTB}, 2
  s_lshl_b32 s{sT3}, s{sT1}, 1
  s_add_u32 s{sT2}, s{sT2}, s{sT3}
  s_lshl_b32 s{sT3}, s{sT0}, 7
  s_add_u32 s{sT3}, s{sT3}, s{sT2}
  s_mul_i32 s{sT5}, s{sT3}, 18432
  s_add_u32 s{sT5}, s{sT5}, {WS_O}
  s_add_u32 s{sT4}, s{sT5}, 18432
  v_lshlrev_b32 v{vT[0]}, 4, v{vLANE}
  v_add_u32 v{vT[1]}, 4096, v{vT[0]}
  v_add_u32 v{vT[2]}, 8192, v{vT[0]}
  v_add_u32 v{vT[3]}, 12288, v{vT[0]}
  v_add_u32 v{vT[4]}, 16384, v{vT[0]}
  s_lshl_b32 s{sT2}, s{sT2}, 6
  s_add_u32 s{sPB}, s{sT2}, {WS_GATE}
""")

vRA8 = [21, 22, 23, 24, 25]
DEP = 4
def rd_addrs(unitlists, regs, base):
    a(f"""
  v_bfe_u32 v{vT[0]}, v{vLANE}, 2, 2
  v_lshl_add_u32 v{vT[1]}, v{vG}, 2, v{vT[0]}
  v_and_b32 v{vT[2]}, 3, v{vLANE}
  v_and_b32 v{vT[3]}, 1, v{vT[0]}
  v_lshlrev_b32 v{vT[3]}, 1, v{vT[3]}
  v_and_b32 v{vT[4]}, 7, v{vT[1]}
  v_lshl_add_u32 v{vT[3]}, v{vT[4]}, 2, v{vT[3]}
  v_lshlrev_b32 v{vT[4]}, 9, v{vT[1]}
  v_add_u32 v{vT[4]}, {base}, v{vT[4]}
  v_lshlrev_b32 v{vT[2]}, 3, v{vT[2]}
""")
    for units, r in zip(unitlists, regs):
        packed = sum(u << (8 * c) for c, u in enumerate(units))
        a(f"""
  s_mov_b32 s{sT3}, {packed}
  v_lshrrev_b32 v{vT[0]}, v{vT[2]}, s{sT3}
  v_and_b32 v{vT[0]}, 0xff, v{vT[0]}
  v_xor_b32 v{vT[0]}, v{vT[0]}, v{vT[3]}
  v_lshl_add_u32 v{r}, v{vT[0]}, 3, v{vT[4]}
""")
def x_addr(shift_sreg, sh):
    a(f"""
  v_lshrrev_b32 v{vT[0]}, 1, v{vN}
  v_xor_b32 v{vT[0]}, v{vT[0]}, v{vG}
  v_lshlrev_b32 v{vT[0]}, 4, v{vT[0]}
  v_lshl_add_u32 v{vT[0]}, v{vN}, 7, v{vT[0]}
  s_lshl_b32 s{sT2}, s{shift_sreg}, {sh}
  v_add_u32 v{vRX[0]}, s{sT2}, v{vT[0]}
  v_xor_b32 v{vRX[1]}, 64, v{vRX[0]}
""")
def pass1(role):
    x_addr(sTH, 13)
    rd_addrs([[KOFF8[c] + t for c in range(4)] if role == 0 else [32 + u for u in TILEV[t]] for t in range(5)], vRA8, W0L)
    base = [0]
    def setbase(sl):
        want = (sl // 3) * 3 * WSL
        out = []
        if want != base[0]:
            d = want - base[0]
            for r in vRA8: out.append(f"v_add_u32 v{r}, {d}, v{r}" if d > 0 else f"v_subrev_u32 v{r}, {-d}, v{r}")
            base[0] = want
        return out
    def xregs(ks, tt): return XB + 16 * (ks & 1) + 4 * tt
    lds = []
    def wreads(st):
        ks, i = divmod(st, 5)
        pre = setbase((ks + 1) % NWS) if i == 0 else []
        off = ((ks + 1) % NWS) * WSL - base[0]
        fb = RING + 4 * (st % NRING)
        return [(None, x_) for x_ in pre] + [(st, f"ds_read_b64_tr_b16 {v(fb + 2*hh, 2)}, v{vRA8[i]} offset:{off + hh*8192}") for hh in range(2)]
    def xread(ks, tt):
        xo = ((ks // 2) % NXS) * XSL
        return (5 * ks, f"ds_read_b128 {v(xregs(ks, tt), 4)}, v{vRX[ks & 1]} offset:{xo + 2048*tt}")
    def emit(it):
        tag, txt = it
        if opt('noreads', 0) and tag is not None and 5 <= tag < 999: txt = "s_nop 0"
        a(txt)
        if tag is not None: lds.append(tag)
    def mfma(st, tt):
        ks, i = divmod(st, 5)
        fb = RING + 4 * (st % NRING)
        acc = ACC + 16 * i + 4 * tt
        c = v(acc, 4) if ks > 0 else '0'
        A, B = (v(xregs(ks,tt),4), v(fb,4)) if role == 1 else (v(fb,4), v(xregs(ks,tt),4))
        if opt('nomfma', 0): return "s_nop 0"
        return f"v_mfma_f32_16x16x32_bf16 {v(acc,4)}, {A}, {B}, {c}"
    a("s_waitcnt vmcnt(2)")
    table_writes()
    a("s_waitcnt lgkmcnt(0)\ns_barrier")
    stamp(3)
    for tt in range(4): emit(xread(0, tt))
    for st in range(DEP):
        for it in wreads(st): emit(it)
    NST = 90
    fifo = []
    for st in range(NST):
        while any(t_ == st for t_, _ in fifo): emit(fifo.pop(0))
        idx = max(i for i, x_ in enumerate(lds) if x_ == st)
        a(f"s_waitcnt lgkmcnt({min(15, len(lds) - 1 - idx)})")
        if (st + DEP) % 5 == 0:
            while fifo: emit(fifo.pop(0))
            a("s_barrier")
        if st == opt('cst', 8):
            a("s_waitcnt vmcnt(0)")
            for j in range(2): a(f"buffer_store_dwordx4 v[{CW+4*j}:{CW+4*j+3}], v{CW+8+j}, {srd(SWS)}, 0 offen sc1")
            a(NONLD)
        if st == 36:
            a("s_waitcnt vmcnt(0)")
            get_nonce()
            a(f"""
  s_bfe_u32 s{sT3}, s2, 0x30004
  s_lshl_b32 s{sT3}, s{sT3}, 10
  s_lshr_b32 s{sT2}, s2, 7
  s_lshl_b32 s{sT2}, s{sT2}, 9
  s_add_u32 s{sT3}, s{sT3}, s{sT2}
  s_and_b32 s{sT2}, s2, 15
  s_lshl_b32 s{sT2}, s{sT2}, 5
  s_add_u32 s{sT3}, s{sT3}, s{sT2}
  s_lshl_b32 s{sT2}, s{sPW}, 3
  s_add_u32 s{sT3}, s{sT3}, s{sT2}
  s_add_u32 s{sT0}, s{sT3}, {WS_F4}""")
            set_flag(sT0, 1)
        nst = st + DEP
        if nst < NST:
            j = nst % 5
            if j < 2: fifo += [xread(nst // 5, 2 * j), xread(nst // 5, 2 * j + 1)]
            fifo += wreads(nst)
        if 20 <= st < 35:
            t_, c_ = SEQ2[st - 20]
            fifo.append((999, f"ds_read_b128 {v(A2L[st-20],4)}, v{cA2} offset:{t_*192 + c_*16}"))
        for tt in range(4):
            a(mfma(st, tt))
            if fifo: emit(fifo.pop(0))
def loader():
    nW, nX, nQ = 2, 1, 0
    def need(ks): return min(vm.wait_for(('w', ks)), vm.wait_for(('x', ks // 2)))
    x_addr(sTG, 12)
    def xr(ks):
        xo = ((ks // 2) % NXS) * XSL
        for tt in range(2): a(f"ds_read_b128 {v(QX0+8*ks+4*tt, 4)}, v{vRX[ks & 1]} offset:{xo + 2048*tt}")
    a(f"s_waitcnt vmcnt({need(0)})\ns_barrier")
    stamp(3)
    xr(0)
    def refill(ks, maxw):
        nonlocal nW, nX
        c = 0
        while c < maxw:
            if nX < 9 and 2 * nX <= nW + 1 and 2 * (nX - NXS) + 1 <= ks: issue_x(nX); nX += 1
            if nW < 18 and nW - NWS <= ks - 1: issue_w(nW); nW += 1; c += 1
            else: break
        if nX < 9 and 2 * nX <= nW + 1 and 2 * (nX - NXS) + 1 <= ks: issue_x(nX); nX += 1
    if opt('norefill', 0):
        global w_items, x_items
        w_items = lambda ks: "s_nop 0"
        x_items = lambda pr: "s_nop 0"
    refill(-1, opt('rf0', 2))
    for ks in range(18):
        a(f"s_waitcnt vmcnt({need(ks + 1) if ks + 1 < 18 else 63}) lgkmcnt(0)")
        a("s_barrier")
        if ks + 1 < 18: xr(ks + 1)
        refill(ks, opt('rf', 2))
        if ks == 8: a(NONLD); vm.add('non')
        if ks == opt('wqpf', 6):
            a(f"""
  s_and_b32 s{sT2}, s{sT}, 7
  s_mul_i32 s{sT2}, s{sT2}, 72
  s_mul_i32 s{sT3}, s{sTG}, 18
  s_add_u32 s{sT2}, s{sT2}, s{sT3}
  s_mul_i32 s{sT2}, s{sT2}, 3456
  s_add_u32 s{sT2}, s{sT2}, s{sH144}
  v_min_u32 v{vT[0]}, 35, v{vLANE}
  v_lshrrev_b32 v{vT[1]}, 1, v{vT[0]}
  s_movk_i32 s{sT3}, 3456
  v_mul_u32_u24 v{vT[1]}, s{sT3}, v{vT[1]}
  v_and_b32 v{vT[0]}, 1, v{vT[0]}
  v_mul_u32_u24 v{vT[0]}, 140, v{vT[0]}
  v_add_u32 v{vT[0]}, v{vT[0]}, v{vT[1]}
  buffer_load_dword v{17}, v{vT[0]}, {srd(SW)}, s{sT2} offen""")
            vm.add('wqpf')
        if ks == 17: arrive(C1)
        for i_ in range(18):
            if wq_time(i_) == ks: issue_q(i_)
        if ks == opt('wopf', 99):
            a(f"""
  s_lshr_b32 s{sT2}, s2, 3
  s_mul_i32 s{sT2}, s{sT2}, 20736
  s_mul_i32 s{sT3}, s{sTH}, 10368
  s_add_u32 s{sT2}, s{sT2}, s{sT3}
  v_lshlrev_b32 v{vT[0]}, 7, v{vLANE}
  v_add_u32 v{vT[1]}, 8192, v{vT[0]}
  v_min_u32 v{vT[1]}, {80*128}, v{vT[1]}
  s_bitcmp1_b32 s{sPW}, 1
  s_cbranch_scc1 L_wopfB
  buffer_load_dword v{17}, v{vT[0]}, {srd(SWOA)}, s{sT2} offen
  buffer_load_dword v{18}, v{vT[1]}, {srd(SWOA)}, s{sT2} offen
  s_branch L_wopfD
L_wopfB:
  buffer_load_dword v{17}, v{vT[0]}, {srd(SWOB)}, s{sT2} offen
  buffer_load_dword v{18}, v{vT[1]}, {srd(SWOB)}, s{sT2} offen
L_wopfD:""")
            vm.add('wopf', 2)
    assert nW == 18 and nX == 9, (nW, nX)
def a2_reads(addr):
    for j, (t, c) in enumerate(SEQ2): a(f"ds_read_b128 {v(A2L[j],4)}, v{addr} offset:{t*192 + c*16}")


cA2q, cKVq = cA2, cKV
a(f"v_lshlrev_b32 v{cL16}, 4, v{vLANE}")
diag_addr(cA2, 20, 48, T2)
diag_addr(cKV, 19, 80, KVT)
a(f"v_add_u32 v{cW2}, s{sMQ2}, v{cL16}")
a(f"s_cmp_eq_u32 s{sROLE}, 1\ns_cbranch_scc1 L_noKc")
a(f"""
  s_and_b32 s{sT4}, s{sTG}, 1                 ; half
  s_lshr_b32 s{sT5}, s{sTG}, 1                ; c0
  v_bfe_u32 v{vT[0]}, v{vLANE}, 2, 2
  v_lshl_add_u32 v{vT[0]}, v{vG}, 2, v{vT[0]}
  s_movk_i32 s{sT2}, 320
  v_mul_u32_u24 v{vT[0]}, s{sT2}, v{vT[0]}
  v_bfe_u32 v{vT[1]}, v{vLANE}, 1, 1
  v_mul_u32_u24 v{vT[1]}, 80, v{vT[1]}
  v_and_b32 v{vT[2]}, 1, v{vLANE}
  v_lshl_add_u32 v{vT[1]}, v{vT[2]}, 3, v{vT[1]}
  s_mul_i32 s{sT2}, s{sT4}, 160
  s_lshl_b32 s{sT3}, s{sT5}, 4
  s_add_u32 s{sT2}, s{sT2}, s{sT3}
  v_add3_u32 v{cAF}, v{vT[0]}, v{vT[1]}, s{sT2}
  s_mul_i32 s{sT2}, s{sT4}, 3072
  s_add_u32 s{sT2}, s{sT2}, {VF}
  v_add_u32 v{cB01}, s{sT2}, v{cL16}
  v_add_u32 v{cB2}, {VF + 2048}, v{cL16}
  s_lshl_b32 s{sT1}, s{sT4}, 1
  v_lshrrev_b32 v{vT[7]}, 1, v{vG}
  v_add_u32 v{vT[7]}, s{sT1}, v{vT[7]}        ; hr
  v_and_b32 v{vT[9]}, 1, v{vG}
  v_lshlrev_b32 v{vT[9]}, 4, v{vT[9]}
  s_lshl_b32 s{sT1}, s{sT5}, 5
  s_add_u32 s{sT1}, s{sT1}, {PST}
  v_add_u32 v{vT[9]}, s{sT1}, v{vT[9]}        ; PST + c0*32 + (g&1)*16
  v_cmp_lt_u32 s[{sM2}:{sM2+1}], 7, v{vN}
""")
for ci in range(3):
    if ci == 0: pre = f"s_mul_i32 s{sT2}, s{sT4}, 48\n  s_mov_b32 s{sT3}, 0"
    elif ci == 1: pre = f"s_mul_i32 s{sT2}, s{sT4}, 24\n  s_add_u32 s{sT2}, s{sT2}, 16\n  s_lshl_b32 s{sT3}, s{sT4}, 4"
    else: pre = f"s_mov_b32 s{sT2}, 32\n  s_movk_i32 s{sT3}, 200"
    a(f"""
  {pre}
  v_mov_b32 v{vT[4]}, s{sT3}
  v_cndmask_b32 v{vT[4]}, 0, v{vT[4]}, s[{sM2}:{sM2+1}]
  v_add3_u32 v{vT[4]}, v{vT[4]}, v{vN}, s{sT2}
  v_mul_u32_u24 v{vT[5]}, 57, v{vT[4]}
  v_lshrrev_b32 v{vT[5]}, 10, v{vT[5]}
  v_mul_u32_u24 v{vT[6]}, 18, v{vT[5]}
  v_sub_u32 v{vT[6]}, v{vT[4]}, v{vT[6]}
""")
    if ci == 2:
        a(f"""
  v_cmp_eq_u32 vcc, 240, v{vT[4]}
  v_cndmask_b32 v{vT[5]}, v{vT[5]}, v{vT[7]}, vcc
  v_cndmask_b32 v{vT[6]}, v{vT[6]}, 18, vcc
""")
    a(f"""
  v_mul_u32_u24 v{vT[8]}, 19, v{vT[7]}
  v_add_u32 v{vT[8]}, v{vT[8]}, v{vT[6]}
  s_movk_i32 s{sT2}, 144
  v_mad_u32_u24 v{vT[8]}, v{vT[8]}, s{sT2}, v{vT[9]}
  v_cmp_eq_u32 vcc, v{vT[5]}, v{vT[7]}
  v_mov_b32 v{vT[10]}, {PST + 10944}
  v_cndmask_b32 v{cPS[ci]}, v{vT[10]}, v{vT[8]}, vcc
""")
a(f"v_lshlrev_b32 v{cSA}, 3, v{vLANE}")
for j in range(3):
    a(f"""
  v_add_u32 v{vT[0]}, {256*j}, v0
  s_mov_b32 s{sT3}, 0xE38F
  v_mul_u32_u24 v{vT[1]}, s{sT3}, v{vT[0]}
  v_lshrrev_b32 v{vT[1]}, 19, v{vT[1]}
  v_mul_u32_u24 v{vT[2]}, 9, v{vT[1]}
  v_sub_u32 v{vT[2]}, v{vT[0]}, v{vT[2]}
  v_lshlrev_b32 v{cGQ[j]}, 4, v{vT[0]}
  v_mul_u32_u24 v{cLQ[j]}, 80, v{vT[1]}
  v_lshl_add_u32 v{cLQ[j]}, v{vT[2]}, 3, v{cLQ[j]}
  v_add_u32 v{cLQ[j]}, {KVT}, v{cLQ[j]}
""")
a(f"""
  v_cmp_gt_u32 vcc, {684-512}, v0
  v_mov_b32 v{vT[0]}, {BIG}
  v_cndmask_b32 v{cGQ[2]}, v{vT[0]}, v{cGQ[2]}, vcc
""")
a(f"""
  s_mul_i32 s{sT2}, s{sTG}, 10240
  s_movk_i32 s{sT3}, 320
  v_mul_u32_u24 v{vT[0]}, s{sT3}, v{vN}
  v_mul_u32_u24 v{vT[1]}, 80, v{vG}
  v_add3_u32 v{cPFW}, v{vT[0]}, v{vT[1]}, s{sT2}
""")

a("L_noKc:")
a(f"s_cmp_ge_u32 s{sPW}, 4\ns_cbranch_scc1 L_loader")
a(f"""
  s_mul_i32 s{sT2}, s{sTH}, 5120
  v_add_u32 v{26+2}, 0, v{26+2}
""") if False else None
a(f"s_cmp_ge_u32 s{sPW}, 2\ns_cbranch_scc1 L_vcomp")
def hx_addr():
    a(f"""
  s_mul_i32 s{sT2}, s{sTH}, 5120
  v_add_u32 v{vT[2]}, s{sT2}, v{cL16}
  v_lshlrev_b32 v{vT[3]}, 3, v{vLANE}
  v_add_u32 v{vT[3]}, s{sT2}, v{vT[3]}
""")
pass1(0)
HI[0] = opt('kprio', 3)
a(f"s_setprio {HI[0]}")
stamp(4)
hx_addr()
SND = RING
for j, tt in enumerate((2, 3)):
    for t in range(5):
        s_ = ACC + 16 * t + 4 * tt
        a(f"v_cvt_pk_bf16_f32 v{SND+10*j+2*t}, v{s_}, v{s_+1}\nv_cvt_pk_bf16_f32 v{SND+10*j+2*t+1}, v{s_+2}, v{s_+3}")
    a(f"ds_write_b128 v{vT[2]}, {v(SND+10*j,4)} offset:{HX+2560*j}\nds_write_b128 v{vT[2]}, {v(SND+10*j+4,4)} offset:{HX+2560*j+1024}\nds_write_b64 v{vT[3]}, {v(SND+10*j+8,2)} offset:{HX+2560*j+2048}")
for kb, tt in zip((KB0, KB1), (0, 1)):
    for t in range(5):
        s_ = ACC + 16 * t + 4 * tt
        a(f"v_cvt_pk_bf16_f32 v{kb+2*t}, v{s_}, v{s_+1}\nv_cvt_pk_bf16_f32 v{kb+2*t+1}, v{s_+2}, v{s_+3}")
    a(f"v_mov_b32 v{kb+10}, 0\nv_mov_b32 v{kb+11}, 0")
    if tt == 0:
        a("s_waitcnt lgkmcnt(0)")
        arrive(CK4)
        arrive(C1)
a("s_branch L_kpost")
a("L_vcomp:")
pass1(1)
a(f"s_setprio {HI[0]}")
stamp(4)
a(f"s_mul_i32 s{sT2}, s{sTH}, 10240\ns_add_u32 s{sT2}, s{sT2}, {VF}\nv_add_u32 v{vT[4]}, s{sT2}, v{cL16}")
a(f"v_cmp_eq_u32 vcc, 8, v{vN}\nv_mov_b32 v{vT[5]}, 0x3f803f80")
for ct in range(5):
    for j in range(2):
        b_ = ACC + 16 * ct + 8 * j
        for q in range(4): a(f"v_cvt_pk_bf16_f32 v{b_+q}, v{b_+2*q}, v{b_+2*q+1}")
        if ct == 2:
            for q in range(4): a(f"v_cndmask_b32 v{b_+q}, v{b_+q}, v{vT[5]}, vcc")
        a(f"ds_write_b128 v{vT[4]}, {v(b_,4)} offset:{5120*j + ct*1024}")
hx_addr()
cwait(CK4, 2)
for j, kb in enumerate((KB0, KB1)):
    a(f"ds_read_b128 {v(kb,4)}, v{vT[2]} offset:{HX+2560*j}\nds_read_b128 {v(kb+4,4)}, v{vT[2]} offset:{HX+2560*j+1024}\nds_read_b64 {v(kb+8,2)}, v{vT[3]} offset:{HX+2560*j+2048}")
    a(f"v_mov_b32 v{kb+10}, 0\nv_mov_b32 v{kb+11}, 0")
a("s_waitcnt lgkmcnt(0)")
arrive(C1)
a("L_kpost:")
a("s_waitcnt lgkmcnt(0)")
stamp(17)
for m in stage2_mfmas(P0, A2L, KB0): a(m)
merge(softmax_list(P0, EPk, PH0), stage2_mfmas(P1, A2L, KB1), every=3)
stamp(18)
cwait(C1, 8)
for c in range(5): a(f"ds_write_b128 v{cPFW}, {v(PH0+4*c,4)} offset:{PF + 16*c}")
for x in softmax_list(P1, EPk, PH1): a(x)
stamp(19)
for c in range(5): a(f"ds_write_b128 v{cPFW}, {v(PH1+4*c,4)} offset:{PF + 5120 + 16*c}")
a("s_waitcnt lgkmcnt(0)")
stamp(20)
arrive(CPF)
KV = 160
BF = 184 - 152
BF = 96
AFR = 32
for ci in range(3):
    for tg in range(4):
        ad, of = (cB01, ci * 1024) if ci < 2 else (cB2, 0)
        a(f"ds_read_b128 {v(BF+16*ci+4*tg,4)}, v{ad} offset:{of + tg*5120}")
cwait(CPF, 4)
stamp(5)
def a_reads(j):
    for tg in range(4):
        for hh in range(2): a(f"ds_read_b64_tr_b16 {v(AFR+16*j+4*tg+2*hh,2)}, v{cAF} offset:{32*j + tg*10240 + hh*5120}")
a_reads(0); a_reads(1)
def kv_mf(j, ci):
    acc = KV + 4 * (3 * j + ci)
    return [f"v_mfma_f32_16x16x32_bf16 {v(acc,4)}, {v(AFR+16*j+4*tg,4)}, {v(BF+16*ci+4*tg,4)}, {v(acc,4) if tg else '0'}" for tg in range(4)]
a("s_waitcnt lgkmcnt(8)")
a_reads(2)
for ci in range(3):
    for m in kv_mf(0, ci): a(m)
a("s_waitcnt lgkmcnt(8)")
for ci in range(3):
    for m in kv_mf(1, ci): a(m)
a("s_waitcnt lgkmcnt(0)")
arrive(CKD)
a(f"s_cmp_ge_u32 s{sTG}, 2\ns_cbranch_scc1 L_kvskip")
for ci in range(3):
    for m in kv_mf(2, ci): a(m)
a("L_kvskip:")
cwait(CKD, 4)
for ci in range(3): a(f"ds_write_b128 v{cPS[ci]}, {v(KV+4*ci,4)}")
for ci in range(3): a(f"ds_write_b128 v{cPS[ci]}, {v(KV+12+4*ci,4)} offset:64")
a(f"s_cmp_ge_u32 s{sTG}, 2\ns_cbranch_scc1 L_kvskip2")
a("s_mov_b32 exec_lo, 0xffff\ns_mov_b32 exec_hi, 0xffff")
for ci in range(3): a(f"ds_write_b128 v{cPS[ci]}, {v(KV+24+4*ci,4)} offset:128")
a("s_mov_b64 exec, -1\nL_kvskip2:")
a(f"""
  s_lshl_b32 s{sT4}, s{sG}, 13
  s_add_u32 s{sT4}, s{sT4}, {WS_F1}
  s_lshl_b32 s{sT0}, s{sT}, 5
  s_lshl_b32 s{sT3}, s{sTG}, 3
  s_add_u32 s{sT0}, s{sT0}, s{sT3}
  s_add_u32 s{sT0}, s{sT0}, s{sT4}
  s_lshl_b32 s{sT3}, s{sT}, 9
  s_add_u32 s{sT4}, s{sT4}, s{sT3}
  v_lshlrev_b32 v{vT[4]}, 4, v0
  v_add_u32 v{vT[4]}, {PST}, v{vT[4]}
  s_waitcnt lgkmcnt(0)
""")
stamp(21)
arrive(CKV)
cwait(CKV, 4)
stamp(22)
for j in range(3): a(f"ds_read_b128 {v(32+4*j,4)}, v{vT[4]} offset:{4096*j}")
for j in range(3):
    a(f"s_waitcnt lgkmcnt({2-j})\nbuffer_store_dwordx4 {v(32+4*j,4)}, v{cGQ[j]}, {srd(SWS)}, s{sPB} offen sc1")
stamp(23)
set_flag(sT0, 16)
arrive(CPS)
HI[0] = 0
a("s_setprio 0")
stamp(6)
def poll_all(lab, soff, addr, cnt):
    R = [(32, 33), (34, 35), (36, 37)][:PP]
    a(f"s_cmp_lg_u32 s{sWV}, 0\ns_cbranch_scc1 {lab}_w\ns_mov_b32 s{sRETRY}, 0")
    for i, (r0, r1) in enumerate(R):
        a(f"buffer_load_dwordx2 v[{r0}:{r1}], v{addr}, {srd(SWS)}, s{soff} offen sc1")
        if i < PP - 1: a(f"s_sleep {opt('pst', 6)}")
    a(f"{lab}:")
    for i, (r0, r1) in enumerate(R):
        a(f"""
  s_waitcnt vmcnt({PP-1})
  v_cmp_ne_u32 vcc, s{sNON}, v{r0}
  v_cmp_ne_u32 s[{sM2}:{sM2+1}], s{sNON+1}, v{r1}
  s_or_b64 vcc, vcc, s[{sM2}:{sM2+1}]
  s_cbranch_scc0 {lab}_d
  buffer_load_dwordx2 v[{r0}:{r1}], v{addr}, {srd(SWS)}, s{soff} offen sc1""")
    a(f"""
  s_add_u32 s{sRETRY}, s{sRETRY}, 1
  s_cmp_lt_u32 s{sRETRY}, 100000
  s_cbranch_scc1 {lab}
{lab}_d:""")
    arrive(cnt, vT[6], vT[7])
    a(f"{lab}_w:")
    cwait(cnt, 1, vT[6], vT[7])
PB = 32
LDF = '' if opt('plain', 1) else ' sc1'
a(f"""
  s_lshl_b32 s{sT5}, s{sG}, 18
  s_mov_b32 s64, 0x11111111
  s_mov_b32 s65, 0x11111111
  s_mov_b32 s{sRETRY}, 0
  v_mov_b32 v{vT[4]}, {CNT + CG}
  s_cmp_lg_u32 s{sWV}, 0
  s_cbranch_scc1 L_gloop
""")
R_ = [(32, 33), (34, 35), (36, 37)][:PP]
for i, (r0, r1) in enumerate(R_):
    a(f"buffer_load_dwordx2 v[{r0}:{r1}], v{cSA}, {srd(SWS)}, s{sT4} offen sc1")
    if i < PP - 1: a(f"s_sleep {opt('pst', 6)}")
a("L_gp0:")
for i, (r0, r1) in enumerate(R_):
    a(f"""
  s_waitcnt vmcnt({PP-1})
  v_cmp_eq_u32 vcc, s{sNON}, v{r0}
  v_cmp_eq_u32 s[{sM2}:{sM2+1}], s{sNON+1}, v{r1}
  s_and_b64 vcc, vcc, s[{sM2}:{sM2+1}]
  s_lshr_b64 s[{sM2}:{sM2+1}], vcc, 1
  s_and_b64 vcc, vcc, s[{sM2}:{sM2+1}]
  s_lshr_b64 s[{sM2}:{sM2+1}], vcc, 2
  s_and_b64 vcc, vcc, s[{sM2}:{sM2+1}]
  v_mov_b32 v{vT[6]}, vcc_lo
  v_mov_b32 v{vT[7]}, vcc_hi
  {"" if opt('allatonce', 0) else f"ds_write_b64 v{vT[4]}, v[{vT[6]}:{vT[7]}]"}
  s_andn2_b64 s[{sM2}:{sM2+1}], s[64:65], vcc
  s_cbranch_scc0 L_gp1
  buffer_load_dwordx2 v[{r0}:{r1}], v{cSA}, {srd(SWS)}, s{sT4} offen sc1""")
a(f"""
  s_add_u32 s{sRETRY}, s{sRETRY}, 1
  s_cmp_lt_u32 s{sRETRY}, 100000
  s_cbranch_scc1 L_gp0
L_gp1:
  ds_write_b64 v{vT[4]}, v[{vT[6]}:{vT[7]}]
""")
stamp(28)
if STAMPS: a(f"v_writelane_b32 v{vSTAMP}, s{sRETRY}, 29")
a(f"""
L_gloop:
L_gread:
  ds_read_b64 v[{vT[6]}:{vT[7]}], v{vT[4]}
  s_waitcnt lgkmcnt(0)
  v_readfirstlane_b32 s{sM2}, v{vT[6]}
  v_readfirstlane_b32 s{sM2+1}, v{vT[7]}
  s_add_u32 s{sRETRY}, s{sRETRY}, 1
  s_cmp_gt_u32 s{sRETRY}, 400000
  s_cbranch_scc1 L_gdone
  s_and_b64 s[{sM2}:{sM2+1}], s[{sM2}:{sM2+1}], s[64:65]
  s_cbranch_scc1 L_gnew
  s_sleep 2
  s_branch L_gloop
L_gnew:
  s_andn2_b64 s[64:65], s[64:65], s[{sM2}:{sM2+1}]
""")
for p in range(16):
    lab = f"L_gl{p}"
    a(f"s_bitcmp1_b64 s[{sM2}:{sM2+1}], {4*p}\ns_cbranch_scc0 {lab}")
    a(f"s_add_u32 s{sT2}, s{sT5}, {p*16384}")
    for j in range(3):
        a(f"buffer_load_dwordx4 {v(PB+12*p+4*j,4)}, v{cGQ[j]}, {srd(SWS)}, s{sT2} offen{LDF}")
    a(f"{lab}:")
a(f"""
  s_cmp_lg_u64 s[64:65], 0
  s_cbranch_scc1 L_gloop
L_gdone:
""")
stamp(7)
a("s_waitcnt vmcnt(0)")
stamp(8)
for p in range(1, 16):
    for q in range(0, 12, 2):
        a(f"v_pk_add_f32 {v(PB+q,2)}, {v(PB+q,2)}, {v(PB+12*p+q,2)}")
for j in range(3):
    r = PB + 4 * j
    a(f"v_cvt_pk_bf16_f32 v{r}, v{r}, v{r+1}\nv_cvt_pk_bf16_f32 v{r+1}, v{r+2}, v{r+3}")
a(f"ds_write_b64 v{cLQ[0]}, {v(PB,2)}\nds_write_b64 v{cLQ[1]}, {v(PB+4,2)}")
a(f"""
  v_cmp_gt_u32 vcc, {684-512}, v0
  s_and_saveexec_b64 s[94:95], vcc
  ds_write_b64 v{cLQ[2]}, {v(PB+8,2)}
  s_mov_b64 exec, -1
  v_mul_u32_u24 v{vT[0]}, 80, v0
  v_add_u32 v{vT[0]}, {KVT+72}, v{vT[0]}
  v_mov_b32 v{vT[2]}, 0
  v_mov_b32 v{vT[3]}, 0
  v_cmp_gt_u32 vcc, 76, v0
  s_and_saveexec_b64 s[94:95], vcc
  ds_write_b64 v{vT[0]}, v[{vT[2]}:{vT[3]}]
  s_mov_b64 exec, -1
  s_mul_i32 s{sT2}, s{sTG}, 5120
  s_add_u32 s{sT2}, s{sT2}, {PQ}
  v_add_u32 v{vT[0]}, s{sT2}, v{cL16}
  v_bfe_u32 v{vT[3]}, v{vLANE}, 2, 2
  v_lshl_add_u32 v{vT[1]}, v{vG}, 2, v{vT[3]}
  v_and_b32 v{vT[2]}, 3, v{vLANE}
  s_movk_i32 s{sT3}, 144
  v_mul_u32_u24 v{vT[1]}, s{sT3}, v{vT[1]}
  v_lshl_add_u32 v{vRA[0]}, v{vT[2]}, 3, v{vT[1]}
  s_waitcnt lgkmcnt(0)
  s_barrier
""")
stamp(9)
KPHQ = 180; KOUT = 136; KNB = 32; SAVE = 200
for c in range(5): a(f"ds_read_b128 {v(KPHQ+4*c,4)}, v{vT[0]} offset:{c*1024}")
a(f"v_add_u32 v{vRA[1]}, 65536, v{vRA[0]}\nv_add_u32 v{vRA[2]}, 131072, v{vRA[0]}")
for t in range(5):
    for hh in range(2):
        o = wo_addr[(35, hh)] + 32 * t
        a(f"ds_read_b64_tr_b16 {v(SAVE+4*t+2*hh,2)}, v{vRA[o >> 16]} offset:{o & 0xffff}")
a("s_waitcnt lgkmcnt(0)")
num_and_store(KPHQ, KNB, KOUT, cKV, False)
OF = 32
FB = 176; NFB = 6
CACC = 220 - 4
SAVE2 = SAVE
CACC = 220
FB = 176; NFB = 5; SAVE2 = 196; CACC = 216
for i in range(20): a(f"v_mov_b32 v{SAVE2+i}, v{SAVE+i}")
pc_setup()
a(f"""
  v_lshlrev_b32 v{vT[5]}, 2, v{vN}
  v_lshlrev_b32 v{vT[9]}, 3, v{vLANE}
  s_lshl_b32 s{sT3}, s{sTB}, 12
  s_lshl_b32 s{sPEND}, s{sCB}, 9
  s_add_u32 s{sT3}, s{sT3}, s{sPEND}
  s_add_u32 s{sPEND}, s{sT3}, {WS_F2}
""")
a("s_barrier")
stamp(27)
poll_all("L_opoll", sPEND, vT[9], CO)
a(f"""
  buffer_load_dword v{vT[6]}, v{vT[5]}, {srd(SWS)}, s{sPB} offen{LDF}
  buffer_load_dword v{vT[7]}, v{vT[5]}, {srd(SWS)}, s{sPB} offen offset:64{LDF}
""")
stamp(11)
for ks in range(18):
    for tt in range(2):
        a(f"buffer_load_dwordx4 {v(OF+8*ks+4*tt,4)}, v{vT[ks//4]}, {srd(SWS)}, s{sT5 if tt==0 else sT4} offen offset:{(ks%4)*1024}{LDF}")
stamp(26)
a(f"s_cmp_eq_u32 s{sT0}, 1\ns_cbranch_scc1 L_pc_b1")
def phaseC(b):
    seq = [(ks, t) for ks in range(18) for t in range(5)]
    def rd(i):
        ks, t = seq[i]
        if b * 18 + ks == 35: return []
        return [f"ds_read_b64_tr_b16 {v(FB+4*(i%NFB)+2*hh,2)}, v{vRA[(wo_addr[(b*18+ks, hh)] + 32*t) >> 16]} offset:{(wo_addr[(b*18+ks, hh)] + 32*t) & 0xffff}" for hh in range(2)]
    DEPTH = 4
    cnt = []
    for i in range(DEPTH):
        r = rd(i); cnt.append(len(r))
        for x_ in r: a(x_)
    for i, (ks, t) in enumerate(seq):
        saved = (b * 18 + ks == 35)
        w = []
        if t == 0: w.append(f"vmcnt({34 - 2*ks})")
        if not saved: w.append(f"lgkmcnt({sum(cnt[i+1:])})")
        if w: a("s_waitcnt " + " ".join(w))
        nx = rd(i + DEPTH) if i + DEPTH < len(seq) else []
        cnt.append(len(nx))
        fr = (SAVE2 + 4 * t) if saved else (FB + 4 * (i % NFB))
        for tt in range(2):
            acc = CACC + 20 * tt + 4 * t
            a(f"v_mfma_f32_16x16x32_bf16 {v(acc,4)}, {v(fr,4)}, {v(OF+8*ks+4*tt,4)}, {v(acc,4) if ks else '0'}")
            if nx: a(nx[tt])
phaseC(0)
a("s_branch L_pc_done")
a("L_pc_b1:")
phaseC(1)
a("L_pc_done:")
stamp(12)
arrive(CKD, vT[10], vT[11])
E0 = 32
for i in range(20):
    a(f"v_cvt_pk_bf16_f32 v{E0+i}, v{CACC+2*i}, v{CACC+2*i+1}")
a(f"""
  s_cmp_eq_u32 s{sT0}, 1
  s_cselect_b64 vcc, -1, 0
  v_cndmask_b32 v{vT[6]}, v{vT[6]}, v{vT[7]}, vcc
  v_cvt_pk_bf16_f32 v{vT[6]}, v{vT[6]}, v{vT[6]}
  v_lshlrev_b32 v{vT[6]}, 16, v{vT[6]}
  v_mul_f32 v{vT[6]}, s{sL+2}, v{vT[6]}
  v_exp_f32 v{vT[6]}, v{vT[6]}
  v_add_f32 v{vT[6]}, 1.0, v{vT[6]}
  v_rcp_f32 v{vT[6]}, v{vT[6]}
  v_cvt_pk_bf16_f32 v{vT[6]}, v{vT[6]}, v{vT[6]}
  v_lshlrev_b32 v{vT[6]}, 16, v{vT[6]}
  v_sub_f32 v{vT[7]}, 1.0, v{vT[6]}
  v_cvt_pk_bf16_f32 v{vT[7]}, v{vT[7]}, v{vT[7]}
  v_lshlrev_b32 v{vT[7]}, 16, v{vT[7]}
  v_cndmask_b32 v{vT[8]}, v{vT[6]}, v{vT[7]}, vcc
  v_cndmask_b32 v{vT[10]}, v{vT[7]}, v{vT[6]}, vcc
""")
for i in range(10):
    a(f"v_cndmask_b32 v{E0+20+i}, v{E0+10+i}, v{E0+i}, vcc\nv_cndmask_b32 v{E0+32+i}, v{E0+i}, v{E0+10+i}, vcc")
a(f"""
  s_mul_i32 s{sT2}, s{sWV}, 3072
  v_add_u32 v{vT[1]}, s{sT2}, v{vT[0]}
  s_xor_b32 s{sT3}, s{sWV}, 2
  s_mul_i32 s{sT3}, s{sT3}, 3072
  v_add_u32 v{vT[2]}, s{sT3}, v{vT[0]}
""")
cwait(CKD, 8, vT[5], vT[9])
a(f"""
  ds_write_b128 v{vT[1]}, {v(E0+20,4)}
  ds_write_b128 v{vT[1]}, {v(E0+24,4)} offset:1024
  ds_write_b64 v{vT[1]}, {v(E0+28,2)} offset:2048
  v_mov_b32 v{vT[5]}, {CNT+CE}
  v_mov_b32 v{vT[9]}, 1
  s_waitcnt lgkmcnt(0)
  s_mov_b64 exec, 1
  ds_add_u32 v{vT[5]}, v{vT[9]}
  s_mov_b64 exec, -1
  s_lshl_b32 s{sT2}, s{sTB}, 6
  s_lshl_b32 s{sT3}, s{sT1}, 5
  s_add_u32 s{sT2}, s{sT2}, s{sT3}
  s_lshl_b32 s{sT3}, s{sT0}, 4
  s_add_u32 s{sT2}, s{sT2}, s{sT3}
  v_add_u32 v{vT[3]}, s{sT2}, v{vN}
  s_movk_i32 s{sT3}, 1152
  v_mul_lo_u32 v{vT[3]}, v{vT[3]}, s{sT3}
  v_lshl_add_u32 v{vT[3]}, v{vG}, 3, v{vT[3]}
  s_mul_i32 s{sT3}, s{sCB}, 144
  v_add_u32 v{vT[3]}, s{sT3}, v{vT[3]}
  v_cmp_lt_u32 vcc, 1, v{vG}
  v_mov_b32 v{vT[4]}, {BIG}
  v_cndmask_b32 v{vT[4]}, v{vT[3]}, v{vT[4]}, vcc
""")
W0 = 80
for i in range(10):
    r = E0 + 32 + i
    a(f"""
  v_lshlrev_b32 v{W0+2*i}, 16, v{r}
  v_and_b32 v{W0+2*i+1}, 0xffff0000, v{r}
  v_pk_mul_f32 {v(W0+2*i,2)}, {v(W0+2*i,2)}, {v(vT[8],2)} op_sel_hi:[1,0]
  v_cvt_pk_bf16_f32 v{r}, v{W0+2*i}, v{W0+2*i+1}
  v_lshlrev_b32 v{W0+2*i}, 16, v{r}
  v_and_b32 v{W0+2*i+1}, 0xffff0000, v{r}
""")
cwait(CE, 4, vT[5], vT[9])
a(f"""
  ds_read_b128 {v(E0+20,4)}, v{vT[2]}
  ds_read_b128 {v(E0+24,4)}, v{vT[2]} offset:1024
  ds_read_b64 {v(E0+28,2)}, v{vT[2]} offset:2048
  s_waitcnt lgkmcnt(0)
""")
for t in range(5):
    for h in range(2):
        i = 2 * t + h
        r = E0 + 20 + i; w = W0 + 20 + 2 * (i & 1)
        a(f"""
  v_lshlrev_b32 v{w}, 16, v{r}
  v_and_b32 v{w+1}, 0xffff0000, v{r}
  v_pk_mul_f32 {v(w,2)}, {v(w,2)}, {v(vT[10],2)} op_sel_hi:[1,0]
  v_cvt_pk_bf16_f32 v{r}, v{w}, v{w+1}
  v_lshlrev_b32 v{w}, 16, v{r}
  v_and_b32 v{w+1}, 0xffff0000, v{r}
  v_pk_add_f32 {v(w,2)}, {v(w,2)}, {v(W0+2*i,2)}
  v_cvt_pk_bf16_f32 v{E0+i}, v{w}, v{w+1}
""")
    a(f"buffer_store_dwordx2 {v(E0+2*t,2)}, v{vT[3] if t < 4 else vT[4]}, {srd(SOUT)}, 0 offen offset:{32*t}")
stamp(13)
a("s_branch L_fin")

a("L_loader:")
loader()
get_nonce()
stamp(4)
a(f"""
  v_bfe_u32 v{vT[0]}, v{vLANE}, 2, 2
  v_lshl_add_u32 v{vT[1]}, v{vG}, 2, v{vT[0]}
  v_and_b32 v{vT[2]}, 3, v{vLANE}
  s_movk_i32 s{sT3}, 144
  v_mul_u32_u24 v{vT[4]}, s{sT3}, v{vT[1]}
  s_mov_b32 s{sT3}, {sum(u << (8*c) for c, u in enumerate(KOFF8))}
  v_lshlrev_b32 v{vT[5]}, 3, v{vT[2]}
  v_lshrrev_b32 v{vT[5]}, v{vT[5]}, s{sT3}
  v_and_b32 v{vT[5]}, 0xff, v{vT[5]}
  v_lshl_add_u32 v{23}, v{vT[5]}, 3, v{vT[4]}
  v_add_u32 v{24}, 65536, v{23}
  v_lshlrev_b32 v{25}, 4, v{vG}
  v_add_u32 v{25}, {GW}, v{25}
  s_mov_b32 s{sT5}, s{sROT}
""")
GACC = [vT[0], vT[4]]
groups = [(0, 18)] if opt('qwait', 1) else [(0, 6), (6, 14), (14, 18)]
for gi, (g0_, g1_) in enumerate(groups):
    if gi == (0 if opt('qwait', 1) else 1):
        cwait(C1, 8, 12, 13)
        for i_ in range(18):
            if wq_time(i_) == 18: issue_q(i_)
    wo_ready()
    if opt('qwait', 1): cwait(CPF, opt('qwait', 1), 12, 13)
    a(f"s_waitcnt vmcnt({vm.wait_for(('q', g1_ - 1))})")
    arrive(CWA + 4 * gi, 12, 13); cwait(CWA + 4 * gi, 4, 12, 13)
    stamp(30 + 2 * gi)
    steps = [(ks, t) for ks in range(g0_, g1_) for t in range(6)]
    def rd(i):
        ks, t = steps[i]
        fb = QRING + 4 * (i % 8)
        if t == 5:
            return [f"s_lshl_b32 s{sT4}, s{sT5}, 6\nv_add_u32 v{14}, s{sT4}, v{25}\ns_add_u32 s{sT5}, s{sT5}, 1\ns_cmp_eq_u32 s{sT5}, 18\ns_cselect_b32 s{sT5}, 0, s{sT5}\nds_read_b128 {v(fb,4)}, v{14}"]
        return [f"ds_read_b64_tr_b16 {v(fb+2*hh,2)}, v{23 + ((wq_addr[ks] + hh*2304 + 8*t) >> 16)} offset:{(wq_addr[ks] + hh*2304 + 8*t) & 0xffff}" for hh in range(2)]
    D_ = 6
    cnt = []
    for i in range(D_):
        r = rd(i); cnt.append(len(r))
        for x_ in r: a(x_)
    QB0 = opt('qb0', 66)
    pendB = list(grp['B']) if opt('wolate', 0) == 3 else []
    for i, (ks, t) in enumerate(steps):
        a(f"s_waitcnt lgkmcnt({sum(cnt[i+1:])})")
        nx = rd(i + D_) if i + D_ < len(steps) else []
        cnt.append(len(nx))
        for tt in range(2):
            acc = GACC[tt] if t == 5 else QACC + 20 * tt + 4 * t
            a(f"v_mfma_f32_16x16x32_bf16 {v(acc,4)}, {v(QRING+4*(i%8),4)}, {v(QX0+8*ks+4*tt,4)}, {v(acc,4) if ks else '0'}")
            if tt < len(nx): a(nx[tt])
    stamp(31 + 2 * gi)
    arrive(CWD + 4 * gi, 12, 13)
stamp(7)
a(f"""
  v_cmp_eq_u32 vcc, 1, v{vG}
  v_cndmask_b32 v{vT[0]}, v{GACC[0]}, v{GACC[1]}, vcc
  v_lshlrev_b32 v{vT[2]}, 2, v{vLANE}
  v_cmp_gt_u32 vcc, 32, v{vLANE}
  v_mov_b32 v{vT[3]}, {BIG}
  v_cndmask_b32 v{vT[2]}, v{vT[3]}, v{vT[2]}, vcc
  s_lshl_b32 s{sT2}, s{sT}, 9
  s_lshl_b32 s{sT3}, s{sTG}, 7
  s_add_u32 s{sT2}, s{sT2}, s{sT3}
  s_add_u32 s{sT2}, s{sT2}, {WS_GATE}
  s_cmp_eq_u32 s{sG}, 0
  s_cselect_b32 s{sT2}, s{sT2}, {BIG}
  buffer_store_dword v{vT[0]}, v{vT[2]}, {srd(SWS)}, s{sT2} offen sc1
""")
for kb, tt in zip((KB0, KB1), (0, 1)):
    for t in range(5):
        s_ = QACC + 20 * tt + 4 * t
        a(f"v_cvt_pk_bf16_f32 v{kb+2*t}, v{s_}, v{s_+1}\nv_cvt_pk_bf16_f32 v{kb+2*t+1}, v{s_+2}, v{s_+3}")
    a(f"v_mov_b32 v{kb+10}, 0\nv_mov_b32 v{kb+11}, 0")
a2_reads(cA2)
cwait(CWD + 4 * (len(groups) - 1), 4)
a("s_waitcnt lgkmcnt(0)")
for m in stage2_mfmas(P0, A2L, KB0): a(m)
merge(softmax_list(P0, EPk, PH0), stage2_mfmas(P1, A2L, KB1), every=3)
a(f"s_mul_i32 s{sT2}, s{sTG}, 5120\ns_add_u32 s{sT2}, s{sT2}, {PQ}\nv_add_u32 v{vT[8]}, s{sT2}, v{cL16}")
for c in range(5): a(f"ds_write_b128 v{vT[8]}, {v(PH0+4*c,4)} offset:{c*1024}")
for x in softmax_list(P1, EPk, PH1): a(x)
cwait(CPS, 4)
wo_items(grp['B'][:2], cW2)
early = grp['A'] + grp['B'][2:]
ne = len(early) - opt('wodefer', 0)
grp['Z'] = early[ne:] + grp['Z']
n_ = wo_items(early[:ne], cW2)
stamp(8)
a(f"s_waitcnt vmcnt({n_}) lgkmcnt(0)\ns_barrier")
stamp(9)
num_and_store(PH1, 32, 136, cKV, False)
wo_items(grp['Z'], cW2)
a("s_waitcnt vmcnt(0)\ns_barrier")
a("L_fin:")
if STAMPS:
    a(f"""
  s_and_b32 s{sT2}, s{sWV}, 3
  s_cmp_lg_u32 s{sT2}, 0
  s_cbranch_scc1 L_end
  s_waitcnt vmcnt(0)
  s_memrealtime s[94:95]
  s_waitcnt lgkmcnt(0)
  v_writelane_b32 v{vSTAMP}, s94, 14
  s_getreg_b32 s94, hwreg(HW_REG_XCC_ID)
  s_getreg_b32 s95, hwreg(HW_REG_HW_ID)
  v_writelane_b32 v{vSTAMP}, s94, 15
  v_writelane_b32 v{vSTAMP}, s95, 16
  v_lshlrev_b32 v{vT[0]}, 2, v{vLANE}
  DBGCODE
  s_lshl_b32 s{sT2}, s2, 9
  s_lshl_b32 s{sT3}, s{sROLE}, 8
  s_add_u32 s{sT2}, s{sT2}, s{sT3}
  s_add_u32 s{sT2}, s{sT2}, {WS_DBG}
  buffer_store_dword v{vSTAMP}, v{vT[0]}, {srd(SWS)}, s{sT2} offen
""")
a("L_end:\n  s_endpgm")
for i_, l_ in enumerate(a.lines):
    if 'DBGCODE' in l_:
        a.lines[i_] = (f"""  s_cmp_lg_u32 s{sROLE}, 0
  s_cbranch_scc1 L_nodbg
  v_not_b32 v{vT[1]}, v{vSTAMP}
  v_cmp_eq_u32 vcc, 0, v{vLANE}
  s_nop 1
  v_cndmask_b32 v{vT[1]}, v{vSTAMP}, v{vT[1]}, vcc
  v_add_u32 v{vT[2]}, 8, v{vT[0]}
  s_mov_b32 exec_lo, 0x7fff
  s_mov_b32 exec_hi, 0
  buffer_atomic_umax v{vT[1]}, v{vT[2]}, {srd(SDBG)}, 0 offen
  s_mov_b64 exec, -1
L_nodbg:""" if opt('dbg', 0) else "")

hdr = open('cdna_kernels/' + NAME + '.s.ref').read().split('; Override launch')[0]
out = kernel_file(a.text(), "grid=(256,1,1) block=(512,1,1) lds=163840", 256, hdr_comment=hdr)
outp = [x for x in sys.argv[1:] if not x.startswith('--') and not x.startswith('o:')]
open(outp[0] if outp else 'k.s', 'w').write(out)
```

```python
import sys
from asmlib import *

STAMPS = '--stamps' in sys.argv
OPT = dict(x[2:].split('=') for x in sys.argv if x.startswith('o:'))
def opt(k, d): return type(d)(OPT.get(k, d))
NB0 = opt('nb0', 3)
PP = opt('pp', 1)

XSL = 16384; NXS = 3
WSL = 16384; NWS = 6; W0L = NXS * XSL
assert W0L + NWS * WSL <= 156672
KST = 4608
TAB = 34 * KST
T2 = TAB
GW = TAB + 3840
ZR = GW + 1152
CNT = ZR + 1408
PF = 0; HX = 0
VF = 135680
wq_addr = [65536 + 4608 * i for i in range(14)] + [49152 + 4608 * i for i in range(3)] + [41472]
def wq_time(i):
    lo, hi = wq_addr[i], wq_addr[i] + 4608
    if lo < 65536: return 18
    if opt('wqlate', 1): return 17
    return 12 + (hi - 1 - 49152) // 16384
PST = 0
KVT = PST
PQ = 81920
OST = PQ
EPI = 8192
HU = 2304
regions = [(0, 6400, 'Z'), (6400, 40960, 'B'), (40960, 81920, 'A'), (81920, 102400, 'Z'),
           (102400, 135680, 'A'), (135680, 156160, 'B'), (156160, 156672, 'A'), (156672, 161664, 'Z')]
units = []
for u in range(161664 // HU):
    lo, hi = u * HU, (u + 1) * HU
    units.append((max(t for a_, b_, t in regions if a_ < hi and lo < b_), lo))
units.sort()
need_order = [(b * 18 + ks, hh) for ks in range(18) for b in range(2) for hh in range(2) if b * 18 + ks != 35]
uA = [lo for t, lo in units if t == 'A']; uB = [lo for t, lo in units if t == 'B']; uZ = [lo for t, lo in units if t == 'Z']
save_u = [uB.pop(), uB.pop()]
uZ += save_u
wo_addr = {(35, 0): save_u[0], (35, 1): save_u[1]}
grp = {'A': [], 'B': [(35, 0), (35, 1)], 'Z': []}
it_ = iter(need_order)
for t, lst in ((('B', uB), ('A', uA), ('Z', uZ)) if opt('kwo', 1) else (('A', uA), ('B', uB), ('Z', uZ))):
    for lo in lst:
        x_ = next(it_, None)
        if x_ is None: break
        wo_addr[x_] = lo; grp[t].append(x_)
assert next(it_, None) is None, "wo does not fit"
if opt('wolate', 0) == 3:
    grp['Z'] = grp['A'] + grp['Z']; grp['A'] = []
if opt('wolate', 0) in (1, 2):
    grp['Z'] = grp['B'][2:] + grp['Z']; grp['B'] = grp['B'][:2]
if opt('wolate', 0) == 2:
    grp['Z'] = grp['A'] + grp['Z']; grp['A'] = []
C1, CPF, CKV, CPS, CKD, CWR, CK4, CO, CE, CG = 0, 4, 8, 12, 16, 20, 24, 32, 36, 40
CWA, CWD = 64, 128

WS_O = 4 << 20; WS_GATE = 10 << 20; WS_DBG = 16 << 20
WS_F1 = 11 << 20; WS_F2 = 12 << 20; WS_F4 = 13 << 20; WS_WOC = 14 << 20
sNON = 80
vNON = 12
BIG = 0x7FFF0000

SX, SW, SWS, SWOA, SWOB, SOUT, SDBG, SPHI, SGATE = 4, 8, 12, 16, 20, 24, 28, 32, 36
def srd(s): return f"s[{s}:{s+3}]"
sT, sG, sB, sHQ, sWV, sTG, sROLE, sK, sT0, sT1, sT2, sT3 = 40, 41, 42, 43, 44, 45, 46, 47, 48, 49, 50, 51
sMX, sMWA, sMQ2, sMQ = 52, 53, 54, 55
sROT, sTB, sCB, sRETRY = 56, 57, 58, 59
sL = 60
sPA = 64
sWOC = 66; sMASK = 88; sPEND = 90; sT4, sT5 = 91, 92; sTILE = 93
sPB = 96; sH144 = 97; sPW = 98; sTH = 99; sM2 = 100

vLANE, vN, vG = 1, 2, 3
vT = list(range(4, 16))
vXOFF, vWA, vWB, vWQ, vWO = 16, 17, 18, 19, 20
vRA = [21, 22, 23, 24, 25]
vRX = [26, 27]
vOST = [28, 29, 30]
vSTAMP = 31
vXOFF2 = 15
XB, ACC, RING, NRING = 32, 64, 204, 5
QX0, QACC, QRING = 32, 176, 216
KC = 224
cPS = [KC + i for i in range(3)]
cAF, cB01, cB2 = KC + 3, KC + 4, KC + 5
cGQ = [KC + 8, KC + 9, KC + 10]; cLQ = [KC + 16, KC + 17, KC + 18, KC + 19]
cSA, cSB = KC + 14, KC + 15
cSEL = [KC + 16, KC + 20]
cA2, cKV, cL16, cPFW, cW2 = KC + 24, KC + 25, KC + 26, KC + 27, KC + 28

a = Asm()
def stamp(idx):
    if not STAMPS: return
    a(f"s_memrealtime s[94:95]\ns_waitcnt lgkmcnt(0)\nv_writelane_b32 v{vSTAMP}, s94, {idx}")
def v(i, n=1): return f"v{i}" if n == 1 else f"v[{i}:{i+n-1}]"
class VM:
    def __init__(self, ops=()): self.ops = list(ops)
    def add(self, tag, n=1): self.ops += [tag] * n
    def wait_for(self, tag):
        idx = max(i for i, t in enumerate(self.ops) if t == tag)
        return min(63, len(self.ops) - 1 - idx)
vm = VM()
def interleave(main, fill, per=1):
    fill = list(fill)
    for m in main:
        a(m)
        for _ in range(per):
            if fill: a(fill.pop(0))
    for f in fill: a(f)
nl = [0]
def arrive(c, t0=vT[0], t1=vT[1]):
    a(f"""
  v_mov_b32 v{t0}, {CNT + c}
  v_mov_b32 v{t1}, 1
  s_mov_b64 exec, 1
  ds_add_u32 v{t0}, v{t1}
  s_mov_b64 exec, -1""")
HI = [0]
def cwait(c, n, t0=vT[0], t1=vT[1]):
    _cwait(c, n, t0, t1)
    if HI[0]: a(f"s_setprio {HI[0]}")
def _cwait(c, n, t0, t1):
    nl[0] += 1; L = f"L_cw{nl[0]}"
    a(f"""
  v_mov_b32 v{t0}, {CNT + c}
  s_mov_b32 s{sRETRY}, 0
{L}:
  ds_read_b32 v{t1}, v{t0}
  s_waitcnt lgkmcnt(0)
  v_readfirstlane_b32 s{sT2}, v{t1}
  s_add_u32 s{sRETRY}, s{sRETRY}, 1
  s_cmp_gt_u32 s{sRETRY}, 2000000
  s_cbranch_scc1 {L}d
  s_cmp_ge_u32 s{sT2}, {n}
  s_cbranch_scc1 {L}d
  s_setprio 0
  s_sleep 1
  s_branch {L}
{L}d:""")

a(f"""
  s_cmp_ge_u32 s2, 256
  s_cbranch_scc1 L_end
  s_load_dwordx16 s[64:79], s[0:1], 0
  s_load_dwordx8 s[80:87], s[0:1], 64
  s_getpc_b64 s[94:95]
L_pc:
  v_and_b32 v{vLANE}, 63, v0
  v_lshrrev_b32 v{vT[0]}, 6, v0
  s_lshr_b32 s{sT1}, s2, 3
  s_and_b32 s{sT0}, s2, 7
  v_readfirstlane_b32 s{sPW}, v{vT[0]}
  s_cmp_ge_u32 s{sPW}, 2
  s_cbranch_scc1 L_nopf
  s_lshl_b32 s{sT2}, s{sPW}, 5
  s_add_u32 s{sT2}, s{sT2}, s{sT1}
  s_lshl_b32 s{sT2}, s{sT2}, 10
  v_lshlrev_b32 v{vT[1]}, 4, v{vLANE}
  v_add_u32 v{vT[1]}, s{sT2}, v{vT[1]}
  v_min_u32 v{vT[1]}, L_end-L_pc, v{vT[1]}
  global_load_dword v{63}, v{vT[1]}, s[94:95]
L_nopf:
""")
if STAMPS: a(f"v_mov_b32 v{vSTAMP}, 0")
stamp(0)
a(f"""
  s_and_b32 s{sT}, s{sT0}, 1
  s_lshl_b32 s{sT}, s{sT}, 3
  s_and_b32 s{sT2}, s{sT1}, 7
  s_add_u32 s{sT}, s{sT}, s{sT2}
  s_lshr_b32 s{sG}, s{sT0}, 1
  s_lshl_b32 s{sG}, s{sG}, 2
  s_lshr_b32 s{sT3}, s{sT1}, 3
  s_add_u32 s{sG}, s{sG}, s{sT3}
  s_lshr_b32 s{sB}, s{sG}, 3
  s_and_b32 s{sHQ}, s{sG}, 7
  s_mul_i32 s{sT2}, s{sT2}, 9
  s_lshr_b32 s{sT2}, s{sT2}, 3
  s_mul_i32 s{sT3}, s{sT3}, 9
  s_lshr_b32 s{sT3}, s{sT3}, 2
  s_add_u32 s{sROT}, s{sT2}, s{sT3}
  s_sub_u32 s{sT2}, s{sROT}, 9
  s_cmp_ge_u32 s{sROT}, 9
  s_cselect_b32 s{sROT}, s{sT2}, s{sROT}
  s_lshl_b32 s{sROT}, s{sROT}, 1
  s_and_b32 s{sTB}, s{sT1}, 3
  s_lshl_b32 s{sT2}, s{sT0}, 2
  s_add_u32 s{sTB}, s{sTB}, s{sT2}
  s_lshr_b32 s{sCB}, s{sT1}, 2
  s_lshl_b32 s{sT2}, s{sPW}, 2
  s_lshr_b32 s{sWV}, 0x76543120, s{sT2}
  s_and_b32 s{sWV}, s{sWV}, 7
  s_and_b32 s{sTG}, s{sWV}, 3
  s_lshr_b32 s{sROLE}, s{sWV}, 2
  s_and_b32 s{sTH}, s{sPW}, 1
  v_and_b32 v{vN}, 15, v{vLANE}
  v_lshrrev_b32 v{vG}, 4, v{vLANE}
  v_mov_b32 v15, 0
  v_mov_b32 v16, 0
  v_mov_b32 v21, 0
  v_mov_b32 v22, 0
  v_mov_b32 v152, 0x7fff0000
  v_mov_b32 v153, 0x7fff0000
  v_mov_b32 v{cGQ[0]}, 0
  v_mov_b32 v{cGQ[1]}, 0
  v_mov_b32 v{cGQ[2]}, 0
  v_mov_b32 v{cSA}, 0
  s_mul_i32 s{sH144}, s{sHQ}, 144
  s_mov_b32 s{SX+2}, {2048*1152}
  s_mov_b32 s{SX+3}, 0x00020000
  s_mov_b32 s{SW+2}, {576*3456}
  s_mov_b32 s{SW+3}, 0x00020000
  s_mov_b32 s{SPHI+2}, {32*648}
  s_mov_b32 s{SPHI+3}, 0x00020000
  s_mov_b32 s{SWS+2}, 0x10000000
  s_mov_b32 s{SWS+3}, 0x00020000
  s_mov_b32 s{SWOA+2}, {576*1152}
  s_mov_b32 s{SWOA+3}, 0x00020000
  s_mov_b32 s{SWOB+2}, {576*1152}
  s_mov_b32 s{SWOB+3}, 0x00020000
  s_mov_b32 s{SOUT+2}, {2048*1152}
  s_mov_b32 s{SOUT+3}, 0x00020000
  s_mov_b32 s{SDBG+2}, 256
  s_mov_b32 s{SDBG+3}, 0x00020000
  s_mov_b32 s{SGATE+2}, 1152
  s_mov_b32 s{SGATE+3}, 0x00020000
""")
def srd_bases():
    a(f"""
  s_cmp_eq_u32 s{sB}, 1
  s_waitcnt lgkmcnt(0)
  s_mov_b32 s{SX}, s64
  s_mov_b32 s{SX+1}, s65
  s_cselect_b32 s{SW}, s74, s66
  s_cselect_b32 s{SW+1}, s75, s67
  s_cselect_b32 s{SPHI}, s76, s68
  s_cselect_b32 s{SPHI+1}, s77, s69
  s_mov_b32 s{SGATE}, s80
  s_mov_b32 s{SGATE+1}, s81
""")
def srd_rest():
    a(f"""
  s_mov_b32 s{SWS}, s86
  s_mov_b32 s{SWS+1}, s87
  s_mov_b32 s{SWOA}, s70
  s_mov_b32 s{SWOA+1}, s71
  s_mov_b32 s{SWOB}, s78
  s_mov_b32 s{SWOB+1}, s79
  s_mov_b32 s{SOUT}, s82
  s_mov_b32 s{SOUT+1}, s83
  s_mov_b32 s{SDBG}, s84
  s_mov_b32 s{SDBG+1}, s85
""")
def dma_off(ci, nper):
    magic = {30: (0x8889, 20), 9: (0xE38F, 19)}[nper]
    t = vT
    a(f"""
  s_mov_b32 s{sT3}, {magic[0]}
  v_mul_u32_u24 v{t[3]}, s{sT3}, v{ci}
  v_lshrrev_b32 v{t[3]}, {magic[1]}, v{t[3]}
  v_mul_u32_u24 v{t[4]}, {nper}, v{t[3]}
  v_sub_u32 v{t[4]}, v{ci}, v{t[4]}
""")
    if nper == 30:
        a(f"v_and_b32 v{t[5]}, 1, v{t[3]}\nv_xor_b32 v{t[4]}, v{t[4]}, v{t[5]}")
    a(f"""
  v_bfe_u32 v{t[5]}, v{t[3]}, 2, 2
  v_lshlrev_b32 v{t[5]}, 3, v{t[5]}
  v_lshrrev_b32 v{t[6]}, 4, v{t[3]}
  v_lshl_add_u32 v{t[5]}, v{t[6]}, 2, v{t[5]}
  v_and_b32 v{t[6]}, 3, v{t[3]}
  v_add_u32 v{t[5]}, v{t[5]}, v{t[6]}
""")
    return t[5], t[4]
def w_offs():
    a(f"""
  v_lshrrev_b32 v{vT[3]}, 5, v{vLANE}
  s_lshl_b32 s{sT2}, s{sT4}, 1
  v_add_u32 v{vT[3]}, s{sT2}, v{vT[3]}          ; rho&7
  v_and_b32 v{vT[4]}, 1, v{vT[3]}
  v_lshl_add_u32 v{vT[4]}, v{vT[3]}, 1, v{vT[4]}  ; swz16
  v_and_b32 v{vT[5]}, 31, v{vLANE}
  v_xor_b32 v{vT[4]}, v{vT[4]}, v{vT[5]}        ; unit
  v_lshrrev_b32 v{vT[8]}, 4, v{vT[4]}           ; seg
  v_and_b32 v{vT[9]}, 15, v{vT[4]}              ; j16
  v_lshrrev_b32 v{vT[6]}, 2, v{vT[3]}
  v_lshlrev_b32 v{vT[6]}, 3, v{vT[6]}
  v_and_b32 v{vT[7]}, 3, v{vT[3]}
  v_add_u32 v{vT[6]}, v{vT[6]}, v{vT[7]}        ; k for j=0
  s_movk_i32 s{sT3}, 3456
  v_mul_u32_u24 v{vT[5]}, s{sT3}, v{vT[6]}
  v_lshl_add_u32 v{vT[5]}, v{vT[9]}, 4, v{vT[5]}
  v_add_u32 v{vT[5]}, s{sH144}, v{vT[5]}
  s_movk_i32 s{sT3}, 1152
  v_mad_u32_u24 v{vT[6]}, v{vT[8]}, s{sT3}, v{vT[5]}
  v_add_u32 v{vT[6]}, 1152, v{vT[6]}            ; k / v
  s_mov_b32 s{sT3}, {32*3456}
  v_mad_u32_u24 v{vT[5]}, v{vT[8]}, s{sT3}, v{vT[5]}
  v_cmp_lt_u32 vcc, 8, v{vT[9]}
  v_mov_b32 v{vT[8]}, {BIG}
  v_cndmask_b32 v{vWL[0]}, v{vT[6]}, v{vT[8]}, vcc
  v_cndmask_b32 v{vWL[1]}, v{vT[5]}, v{vT[8]}, vcc
""")
sK2 = 3
vWL = [21, 22, 23, 24]
def x_items(pr):
    sl = (pr % NXS) * XSL
    return f"""
  s_lshl_b32 s{sT2}, s{sK}, 6
  s_add_u32 s{sT3}, s{sT2}, {16*1152}
  s_add_u32 m0, s{sMX}, {sl}
  buffer_load_dwordx4 v{vXOFF}, {srd(SX)}, s{sT2} offen lds
  s_add_u32 m0, s{sMX}, {sl + 1024}
  buffer_load_dwordx4 v{vXOFF2}, {srd(SX)}, s{sT2} offen lds
  s_add_u32 m0, s{sMX}, {sl + 2048}
  buffer_load_dwordx4 v{vXOFF}, {srd(SX)}, s{sT3} offen lds
  s_add_u32 m0, s{sMX}, {sl + 3072}
  buffer_load_dwordx4 v{vXOFF2}, {srd(SX)}, s{sT3} offen lds
  s_add_u32 s{sK}, s{sK}, 2
  s_cmp_eq_u32 s{sK}, 18
  s_cselect_b32 s{sK}, 0, s{sK}"""
def w_items(ks):
    sl = ((ks + 1) % NWS) * WSL
    o = f"\n  s_mul_i32 s{sT3}, s{sK2}, {32*3456}"
    for j, dk in enumerate((0, 16, 4, 20)):
        if j: o += f"\n  s_add_u32 s{sT2}, s{sT3}, {dk*3456}"
        o += f"""
  s_add_u32 m0, s{sMWA}, {sl + 4096*j}
  buffer_load_dwordx4 v{vWL[0]}, {srd(SW)}, s{sT2 if j else sT3} offen lds"""
    return o + f"""
  s_add_u32 s{sK2}, s{sK2}, 1
  s_cmp_eq_u32 s{sK2}, 18
  s_cselect_b32 s{sK2}, 0, s{sK2}"""
def issue_q(i):
    a(f"""
  s_mul_i32 s{sT3}, s{sK2}, {32*3456}
  s_add_u32 s{sT2}, s{sT3}, {4*3456}
  s_add_u32 m0, s{sMQ}, {wq_addr[i]}
  s_mov_b32 exec_hi, 0xf
  buffer_load_dwordx4 v{vWQ}, {srd(SW)}, s{sT3} offen lds
  s_add_u32 m0, s{sMQ}, {wq_addr[i] + 2304}
  buffer_load_dwordx4 v{vWQ}, {srd(SW)}, s{sT2} offen lds
  s_mov_b32 exec_hi, -1
  s_add_u32 s{sK2}, s{sK2}, 1
  s_cmp_eq_u32 s{sK2}, 18
  s_cselect_b32 s{sK2}, 0, s{sK2}""")
    vm.add(('q', i), 2)
def issue_x(pr): a(x_items(pr)); vm.add(('x', pr), 4)
def issue_w(ks): a(w_items(ks)); vm.add(('w', ks), 4)
SM = 32
a(f"s_cmp_lt_u32 s{sPW}, 4\ns_cbranch_scc1 L_pc0")
a(f"""
  s_and_b32 s{sT4}, s{sPW}, 3
  v_lshrrev_b32 v{vT[0]}, 3, v{vLANE}
  v_and_b32 v{vT[2]}, 7, v{vLANE}
  v_xor_b32 v{vT[2]}, v{vT[2]}, v{vG}
  s_lshl_b32 s{sT2}, s{sT}, 7
  s_lshl_b32 s{sT3}, s{sT4}, 5
  s_add_u32 s{sT2}, s{sT2}, s{sT3}
  v_add_u32 v{vT[0]}, s{sT2}, v{vT[0]}
  s_movk_i32 s{sT3}, 1152
  v_mul_lo_u32 v{vT[0]}, v{vT[0]}, s{sT3}
  v_lshl_add_u32 v{vXOFF}, v{vT[2]}, 4, v{vT[0]}
  v_xor_b32 v{vT[2]}, 4, v{vT[2]}
  v_lshl_add_u32 v{vXOFF2}, v{vT[2]}, 4, v{vT[0]}
  v_add_u32 v{vXOFF2}, {8*1152}, v{vXOFF2}
  s_lshl_b32 s{sMX}, s{sT4}, 12
  s_lshl_b32 s{sMWA}, s{sT4}, 10
  s_add_u32 s{sMWA}, s{sMWA}, {W0L}
  s_mov_b32 s{sK}, s{sROT}
  s_mov_b32 s{sK2}, s{sROT}
""")
w_offs()
srd_bases()
stamp(1)
issue_x(0); issue_w(0); issue_w(1)
NI0 = opt('ni0', 0)
if NI0: issue_x(1); issue_w(2); issue_w(3)
stamp(2)
a("s_branch L_pc1")
a("L_pc0:")
srd_bases()
srd_rest()
stamp(1)
if opt('l2pf', 0):
    a(f"""
  v_lshrrev_b32 v{vT[0]}, 1, v{vLANE}
  s_movk_i32 s{sT3}, 3456
  v_mul_u32_u24 v{vT[0]}, s{sT3}, v{vT[0]}
  v_and_b32 v{vT[1]}, 1, v{vLANE}
  v_mul_u32_u24 v{vT[1]}, 140, v{vT[1]}
  v_add3_u32 v{vT[0]}, v{vT[0]}, v{vT[1]}, s{sH144}
  s_lshl_b32 s{sT2}, s{sT}, 7
  s_lshl_b32 s{sT3}, s{sTH}, 6
  s_add_u32 s{sT2}, s{sT2}, s{sT3}
  v_add_u32 v{vT[1]}, s{sT2}, v{vLANE}
  s_movk_i32 s{sT3}, 1152
  v_mul_lo_u32 v{vT[1]}, v{vT[1]}, s{sT3}
  s_lshr_b32 s{sT2}, s{sPW}, 1
  s_lshl_b32 s{sT2}, s{sT2}, 1
  s_add_u32 s{sT2}, s{sT2}, s{sROT}
  s_add_u32 s{sT2}, s{sT2}, 2
  s_sub_u32 s{sT3}, s{sT2}, 18
  s_cmp_ge_u32 s{sT2}, 18
  s_cselect_b32 s{sT2}, s{sT3}, s{sT2}
  s_lshl_b32 s{sT2}, s{sT2}, 6
  buffer_load_dword v{50}, v{vT[1]}, {srd(SX)}, s{sT2} offen
""")
    for rep in range(opt('l2pf', 0)):
        a(f"""
  s_add_u32 s{sT2}, s{sROT}, s{sPW}
  s_add_u32 s{sT2}, s{sT2}, {2 + 4*rep}
  s_sub_u32 s{sT3}, s{sT2}, 18
  s_cmp_ge_u32 s{sT2}, 18
  s_cselect_b32 s{sT2}, s{sT3}, s{sT2}
  s_mul_i32 s{sT2}, s{sT2}, {32*3456}
  buffer_load_dword v{51+3*rep}, v{vT[0]}, {srd(SW)}, s{sT2} offen
  buffer_load_dword v{52+3*rep}, v{vT[0]}, {srd(SW)}, s{sT2} offen offset:1152
  buffer_load_dword v{53+3*rep}, v{vT[0]}, {srd(SW)}, s{sT2} offen offset:2304
""")
a(f"s_mul_i32 s{sT2}, s{sHQ}, {4*648}\nv_lshlrev_b32 v{vT[0]}, 1, v0")
for j in range(6): a(f"buffer_load_ushort v{SM+j}, v{vT[0]}, {srd(SPHI)}, s{sT2} offen offset:{512*j}")
a(f"v_lshlrev_b32 v{vT[0]}, 3, v0\nbuffer_load_dwordx2 v[{SM+6}:{SM+7}], v{vT[0]}, {srd(SGATE)}, 0 offen")
CW = 144
a(f"""
  s_lshr_b32 s{sT0}, s2, 7            ; b
  s_bfe_u32 s{sT1}, s2, 0x30004       ; cb
  s_and_b32 s{sT2}, s2, 15            ; r
  s_mul_i32 s{sT2}, s{sT2}, 36
  s_mul_i32 s{sT4}, s{sT1}, 144
  s_mul_i32 s{sT5}, s{sT1}, 165888
  s_mul_i32 s{sT3}, s{sT0}, 4608
  s_add_u32 s{sT5}, s{sT5}, s{sT3}
  s_add_u32 s{sT5}, s{sT5}, {WS_WOC}
""")
for j in range(2):
    a(f"""
  v_add_u32 v{vT[0]}, {256*j}, v0
  v_min_u32 v{vT[0]}, 323, v{vT[0]}
  s_mov_b32 s{sT3}, 0xE38F
  v_mul_u32_u24 v{vT[1]}, s{sT3}, v{vT[0]}
  v_lshrrev_b32 v{vT[1]}, 19, v{vT[1]}          ; row
  v_mul_u32_u24 v{vT[2]}, 9, v{vT[1]}
  v_sub_u32 v{vT[2]}, v{vT[0]}, v{vT[2]}        ; u
  v_add_u32 v{vT[1]}, s{sT2}, v{vT[1]}          ; k
  s_movk_i32 s{sT3}, 1152
  v_mul_u32_u24 v{vT[3]}, s{sT3}, v{vT[1]}
  v_lshl_add_u32 v{vT[3]}, v{vT[2]}, 4, v{vT[3]}
  s_cmp_eq_u32 s{sT0}, 1
  s_cbranch_scc1 L_cwB{j}
  buffer_load_dwordx4 v[{CW+4*j}:{CW+4*j+3}], v{vT[3]}, {srd(SWOA)}, s{sT4} offen
  s_branch L_cwD{j}
L_cwB{j}:
  buffer_load_dwordx4 v[{CW+4*j}:{CW+4*j+3}], v{vT[3]}, {srd(SWOB)}, s{sT4} offen
L_cwD{j}:
  v_lshrrev_b32 v{vT[4]}, 5, v{vT[1]}
  s_movk_i32 s{sT3}, 9216
  v_mul_u32_u24 v{vT[4]}, s{sT3}, v{vT[4]}
  v_bfe_u32 v{vT[5]}, v{vT[1]}, 2, 1
  s_movk_i32 s{sT3}, 2304
  v_mad_u32_u24 v{vT[4]}, v{vT[5]}, s{sT3}, v{vT[4]}
  v_bfe_u32 v{vT[5]}, v{vT[1]}, 3, 2
  v_and_b32 v{vT[6]}, 3, v{vT[1]}
  v_lshl_add_u32 v{vT[5]}, v{vT[5]}, 2, v{vT[6]}
  s_movk_i32 s{sT3}, 144
  v_mad_u32_u24 v{vT[4]}, v{vT[5]}, s{sT3}, v{vT[4]}
  v_lshl_add_u32 v{vT[4]}, v{vT[2]}, 4, v{vT[4]}
  v_add_u32 v{CW+8+j}, s{sT5}, v{vT[4]}
""")
for j in range(6):
    a(f"""
  v_add_u32 v{vT[5]}, {256*j}, v0
  s_mov_b32 s{sT3}, 0xCA46
  v_mul_u32_u24 v{vT[6]}, s{sT3}, v{vT[5]}
  v_lshrrev_b32 v{vT[6]}, 24, v{vT[6]}
  s_movk_i32 s{sT3}, 324
  v_mul_u32_u24 v{vT[7]}, s{sT3}, v{vT[6]}
  v_sub_u32 v{vT[7]}, v{vT[5]}, v{vT[7]}
  s_mov_b32 s{sT3}, 0xE38F
  v_mul_u32_u24 v{vT[8]}, s{sT3}, v{vT[7]}
  v_lshrrev_b32 v{vT[8]}, 20, v{vT[8]}
  v_mul_u32_u24 v{vT[9]}, 18, v{vT[8]}
  v_sub_u32 v{vT[9]}, v{vT[7]}, v{vT[9]}
  v_mul_u32_u24 v{vT[10]}, 20, v{vT[6]}
  v_add_u32 v{vT[10]}, v{vT[10]}, v{vT[9]}
  v_mul_u32_u24 v{vT[10]}, 48, v{vT[10]}
  v_and_b32 v{vT[6]}, 1, v{vT[6]}
  v_lshl_add_u32 v{vT[8]}, v{vT[6]}, 1, v{vT[8]}
  v_lshl_add_u32 v{vT[10]}, v{vT[8]}, 1, v{vT[10]}
  v_add_u32 v{SM+8+j}, {T2}, v{vT[10]}
""")
a(f"""
  v_mov_b32 v{vT[0]}, 0
  v_mov_b32 v{vT[1]}, 0
  v_mov_b32 v{vT[2]}, 0
  v_mov_b32 v{vT[3]}, 0
  v_lshlrev_b32 v{vT[4]}, 4, v0
  v_add_u32 v{vT[4]}, {T2}, v{vT[4]}
  v_cmp_gt_u32 vcc, 240, v0
  s_and_saveexec_b64 s[94:95], vcc
  ds_write_b128 v{vT[4]}, v[{vT[0]}:{vT[3]}]
  v_cmp_gt_u32 vcc, 100, v0
  s_and_b64 exec, exec, vcc
  ds_write_b128 v{vT[4]}, v[{vT[0]}:{vT[3]}] offset:{ZR - T2}
  s_mov_b64 exec, -1
  v_mov_b32 v{SM+14}, v0
""")
stamp(2)
a("L_pc1:")
srd_rest()
a(f"""
  s_waitcnt lgkmcnt(0)
  s_barrier
  s_lshl_b32 s{sT2}, s{sWV}, 6
  v_add_u32 v0, s{sT2}, v{vLANE}
  s_or_b32 s{sT2}, s2, s{sPW}
  s_cmp_lg_u32 s{sT2}, 0
  s_cbranch_scc1 L_nononce
  s_memrealtime s[94:95]
  s_waitcnt lgkmcnt(0)
  s_or_b32 s94, s94, 1
  s_xor_b32 s95, s95, 0x5bd1e995
  v_mov_b32 v{vT[6]}, s94
  v_mov_b32 v{vT[7]}, s95
  v_mov_b32 v{vT[5]}, 0
  s_mov_b64 exec, 1
  buffer_store_dwordx2 v[{vT[6]}:{vT[7]}], v{vT[5]}, {srd(SDBG)}, 0 offen sc1
  s_mov_b64 exec, -1
L_nononce:
  s_lshl_b32 s{sTILE}, s{sT}, 3
  s_lshl_b32 s{sT2}, s{sTG}, 1
  s_add_u32 s{sTILE}, s{sTILE}, s{sT2}
  s_add_u32 s{sTILE}, s{sTILE}, s{sROLE}
  s_lshl_b32 s{sT2}, s{sB}, 7
  s_add_u32 s{sT2}, s{sT2}, s{sTILE}
  s_mul_i32 s{sT2}, s{sT2}, 18432
  s_add_u32 s{sT2}, s{sT2}, {WS_O}
  s_mul_i32 s{sT3}, s{sHQ}, 9
""")
for j in range(3):
    a(f"""
  v_add_u32 v{vT[0]}, {4*j}, v{vG}
  v_add_u32 v{vT[1]}, s{sT3}, v{vT[0]}
  v_lshlrev_b32 v{vT[1]}, 8, v{vT[1]}
  v_lshl_add_u32 v{vT[1]}, v{vN}, 4, v{vT[1]}
  v_add_u32 v{vOST[j]}, s{sT2}, v{vT[1]}
""")
a(f"""
  v_cmp_lt_u32 vcc, 0, v{vG}
  v_mov_b32 v{vT[0]}, {BIG}
  v_cndmask_b32 v{vOST[2]}, v{vOST[2]}, v{vT[0]}, vcc
  s_lshl_b32 s{sPB}, s{sG}, 4
  s_add_u32 s{sPB}, s{sPB}, s{sT}
  s_lshl_b32 s{sPB}, s{sPB}, 14
""")
a(f"s_mul_i32 s{sT2}, s{sTG}, 36\nv_add_u32 v{vT[7]}, s{sT2}, v{vLANE}\nv_min_u32 v{vT[7]}, 143, v{vT[7]}")
k, u = dma_off(vT[7], 9)
a(f"""
  s_movk_i32 s{sT3}, 3456
  v_mul_u32_u24 v{vT[8]}, s{sT3}, v{k}
  v_lshl_add_u32 v{vT[8]}, v{u}, 4, v{vT[8]}
  v_add_u32 v{vWQ}, s{sH144}, v{vT[8]}
  s_movk_i32 s{sT3}, 1152
  v_mul_u32_u24 v{vT[8]}, s{sT3}, v{k}
  v_lshl_add_u32 v{vT[8]}, v{u}, 4, v{vT[8]}
  s_mul_i32 s{sT3}, s{sCB}, 144
  v_add_u32 v{vWO}, s{sT3}, v{vT[8]}
  s_mul_i32 s{sMQ}, s{sTG}, 576
  s_lshl_b32 s{sMQ2}, s{sTG}, 10
  s_mul_i32 s{sWOC}, s{sCB}, 165888
  s_add_u32 s{sWOC}, s{sWOC}, s{sMQ2}
  s_add_u32 s{sWOC}, s{sWOC}, {WS_WOC}
  s_mov_b32 s{sL}, 0x3fb8aa3b
  s_mov_b32 s{sL+1}, 0x3fb8aa3b
  s_mov_b32 s{sL+2}, 0xbfb8aa3b
  s_mov_b32 s{sL+3}, 0xbfb8aa3b
  s_mov_b32 s{sMASK}, 0x00f0000f
  s_mov_b32 s{sMASK+1}, 0xf0000f00
""")
def table_writes():
    for j in range(5): a(f"ds_write_b16 v{SM+8+j}, v{SM+j}")
    a(f"""
  v_cmp_gt_u32 vcc, {1296-1280}, v{SM+14}
  s_and_saveexec_b64 s[94:95], vcc
  ds_write_b16 v{SM+13}, v{SM+5}
  s_mov_b64 exec, -1
  v_lshlrev_b32 v{vT[5]}, 3, v{SM+14}
  v_add_u32 v{vT[5]}, {GW}, v{vT[5]}
  v_cmp_gt_u32 vcc, 144, v{SM+14}
  s_and_saveexec_b64 s[94:95], vcc
  ds_write_b64 v{vT[5]}, v[{SM+6}:{SM+7}]
  s_mov_b64 exec, -1
""")
EX36 = "s_mov_b32 exec_lo, -1\n  s_mov_b32 exec_hi, 0xf"
def wo_src(kk, hh): return ((kk % 18) * 2 + kk // 18) * 4608 + hh * 2304
def wo_items(lst, v2):
    runs = []
    for x_ in lst:
        sa, da = wo_src(*x_), wo_addr[x_]
        if runs and runs[-1][0] + runs[-1][2] == sa and runs[-1][1] + runs[-1][2] == da: runs[-1][2] += HU
        else: runs.append([sa, da, HU])
    n = 0
    for sa, da, L in runs:
        for o in range(0, L, 4096):
            rem = L - o
            if rem < 4096: a(f"v_cmp_gt_u32 vcc, {rem}, v{v2}\ns_mov_b64 exec, vcc")
            a(f"""
  s_add_u32 s{sT3}, s{sWOC}, {sa + o}
  s_add_u32 m0, s{sMQ2}, {da + o}
  buffer_load_dwordx4 v{cL16}, {srd(SWS)}, s{sT3} offen lds""")
            if rem < 4096: a("s_mov_b64 exec, -1")
            n += 1
    return n
def wo_ready():
    a(f"""
  s_lshl_b32 s{sT3}, s{sCB}, 10
  s_add_u32 s{sT3}, s{sT3}, {WS_F4}
  s_mov_b32 s{sRETRY}, 0
L_wordy:
  buffer_load_dwordx4 v[{vT[8]}:{vT[11]}], v{cL16}, {srd(SWS)}, s{sT3} offen sc1
  s_waitcnt vmcnt(0)
  v_cmp_ne_u32 vcc, s{sNON}, v{vT[8]}
  v_cmp_ne_u32 s[{sM2}:{sM2+1}], s{sNON+1}, v{vT[9]}
  s_or_b64 vcc, vcc, s[{sM2}:{sM2+1}]
  v_cmp_ne_u32 s[{sM2}:{sM2+1}], s{sNON}, v{vT[10]}
  s_or_b64 vcc, vcc, s[{sM2}:{sM2+1}]
  v_cmp_ne_u32 s[{sM2}:{sM2+1}], s{sNON+1}, v{vT[11]}
  s_or_b64 vcc, vcc, s[{sM2}:{sM2+1}]
  s_cbranch_scc0 L_wordyd
  s_add_u32 s{sRETRY}, s{sRETRY}, 1
  s_cmp_lt_u32 s{sRETRY}, 100000
  s_cbranch_scc1 L_wordy
L_wordyd:""")
KOFF8 = [0, 4, 9, 13]
TILEV = [[0,1,2,3],[4,5,6,7],[8,9,10,11],[12,13,14,15],[10,11,16,17]]

NONLD = f"""
  v_mov_b32 v{vT[5]}, 0
  buffer_load_dwordx2 v[{vNON}:{vNON+1}], v{vT[5]}, {srd(SDBG)}, 0 offen sc1"""
def get_nonce():
    nl[0] += 1; L = f"L_non{nl[0]}"
    a(f"""
  v_readfirstlane_b32 s{sNON}, v{vNON}
  v_readfirstlane_b32 s{sNON+1}, v{vNON+1}
  s_mov_b32 s{sRETRY}, 0
  s_cmp_lg_u32 s{sNON}, 0
  s_cbranch_scc1 {L}d
{L}:
  v_mov_b32 v{vT[5]}, 0
  buffer_load_dwordx2 v[{vNON}:{vNON+1}], v{vT[5]}, {srd(SDBG)}, 0 offen sc1
  s_waitcnt vmcnt(0)
  v_readfirstlane_b32 s{sNON}, v{vNON}
  v_readfirstlane_b32 s{sNON+1}, v{vNON+1}
  s_add_u32 s{sRETRY}, s{sRETRY}, 1
  s_cmp_gt_u32 s{sRETRY}, 100000
  s_cbranch_scc1 {L}d
  s_cmp_eq_u32 s{sNON}, 0
  s_cbranch_scc1 {L}
{L}d:""")
def set_flag(soff, nrep):
    a(f"""
  v_mov_b32 v{vT[6]}, s{sNON}
  v_mov_b32 v{vT[7]}, s{sNON+1}
  v_lshlrev_b32 v{vT[5]}, 9, v{vLANE}
  s_waitcnt vmcnt(0)
  s_mov_b64 exec, {(1 << nrep) - 1}
  buffer_store_dwordx2 v[{vT[6]}:{vT[7]}], v{vT[5]}, {srd(SWS)}, s{soff} offen sc1
  s_mov_b64 exec, -1""")
def diag_addr(dst, rows, pitch, base):
    a(f"""
  v_mul_u32_u24 v{dst}, {rows}, v{vG}
  v_and_b32 v{vT[1]}, 3, v{vN}
  v_add_u32 v{dst}, v{dst}, v{vT[1]}
  v_mul_u32_u24 v{dst}, {pitch}, v{dst}
  v_add_u32 v{dst}, {base}, v{dst}
  v_mov_b32 v{vT[1]}, {ZR}
  v_cndmask_b32 v{dst}, v{vT[1]}, v{dst}, s[{sMASK}:{sMASK+1}]
""")
SEQ2 = [(t, c) for t in range(5) for c in range(3)]
def stage2_mfmas(P, af, kb):
    return [f"v_mfma_f32_16x16x32_bf16 {v(P+4*t,4)}, {v(af[j],4)}, {v(kb+4*c,4)}, {v(P+4*t,4) if c > 0 else '0'}" for j, (t, c) in enumerate(SEQ2)]
A2L = [144 + 4 * j for j in range(15)]
KB0, KB1 = 32, 44
P0, EPk, P1 = 64, 84, 104
PH0, PH1 = 124, 204
D0, D1 = 144, 64
def softmax_list(P, EP, ph):
    o = []
    mx, mn, mx2, mn2 = vT[0], vT[2], vT[4], vT[5]
    o += [f"v_max3_f32 v{mx}, v{P}, v{P+1}, v{P+2}", f"v_min3_f32 v{mn}, v{P}, v{P+1}, v{P+2}",
          f"v_max3_f32 v{mx2}, v{P+3}, v{P+4}, v{P+5}", f"v_min3_f32 v{mn2}, v{P+3}, v{P+4}, v{P+5}"]
    for i in range(6, 18, 4):
        o += [f"v_max3_f32 v{mx}, v{mx}, v{P+i}, v{P+i+1}", f"v_min3_f32 v{mn}, v{mn}, v{P+i}, v{P+i+1}",
              f"v_max3_f32 v{mx2}, v{mx2}, v{P+i+2}, v{P+i+3}", f"v_min3_f32 v{mn2}, v{mn2}, v{P+i+2}, v{P+i+3}"]
    o += [f"v_max_f32 v{mx}, v{mx}, v{mx2}", f"v_min_f32 v{mn}, v{mn}, v{mn2}",
          f"v_mul_f32 v{mx}, s{sL+2}, v{mx}", f"v_mul_f32 v{mn}, s{sL}, v{mn}"]
    for i in range(9):
        o += [f"v_pk_fma_f32 {v(EP+2*i,2)}, {v(P+2*i,2)}, s[{sL}:{sL+1}], {v(mx,2)} op_sel_hi:[1,1,0]",
              f"v_pk_fma_f32 {v(P+2*i,2)}, {v(P+2*i,2)}, s[{sL+2}:{sL+3}], {v(mn,2)} op_sel_hi:[1,1,0]"]
    for i in range(18): o += [f"v_exp_f32 v{EP+i}, v{EP+i}", f"v_exp_f32 v{P+i}, v{P+i}"]
    sp, sm = vT[4], vT[6]
    o += [f"v_pk_add_f32 {v(sp,2)}, {v(EP,2)}, {v(EP+2,2)}", f"v_pk_add_f32 {v(sm,2)}, {v(P,2)}, {v(P+2,2)}"]
    for i in range(2, 9):
        o += [f"v_pk_add_f32 {v(sp,2)}, {v(sp,2)}, {v(EP+2*i,2)}", f"v_pk_add_f32 {v(sm,2)}, {v(sm,2)}, {v(P+2*i,2)}"]
    o += [f"v_add_f32 v{sp}, v{sp}, v{sp+1}", f"v_add_f32 v{sm}, v{sm}, v{sm+1}", f"v_rcp_f32 v{sp}, v{sp}", f"v_rcp_f32 v{sm}, v{sm}"]
    for i in range(9):
        o += [f"v_pk_mul_f32 {v(EP+2*i,2)}, {v(EP+2*i,2)}, {v(sp,2)} op_sel_hi:[1,0]",
              f"v_pk_mul_f32 {v(P+2*i,2)}, {v(P+2*i,2)}, {v(sm,2)} op_sel_hi:[1,0]"]
    for i in range(9): o.append(f"v_cvt_pk_bf16_f32 v{ph+i}, v{EP+2*i}, v{EP+2*i+1}")
    for i in range(9): o.append(f"v_cvt_pk_bf16_f32 v{ph+9+i}, v{P+2*i}, v{P+2*i+1}")
    o += [f"v_mov_b32 v{ph+18}, 0", f"v_mov_b32 v{ph+19}, 0"]
    return o
def merge(valu, mf, every=4):
    mf = list(mf)
    for i, x in enumerate(valu):
        if mf and i % every == 0: a(mf.pop(0))
        a(x)
    for m in mf: a(m)

def num_and_store(phq, nb, out, kvaddr, reuse):
    seq = [(t, c) for t in range(5) for c in range(5)]
    for b0 in (0, 13):
        batch = seq[b0:b0+13]
        nbb = nb if reuse else nb + 4 * b0
        if b0 and reuse: a("s_nop 7")
        for j, (t, c) in enumerate(batch):
            a(f"ds_read_b128 {v(nbb+4*j,4)}, v{kvaddr} offset:{t*320 + c*16}")
        if b0 == 0:
            a(f"""
  s_mul_i32 s{sT2}, s{sWV}, 2304
  s_add_u32 s{sT2}, s{sT2}, {OST}
  s_movk_i32 s{sT3}, 144
  v_mul_u32_u24 v{vT[3]}, s{sT3}, v{vN}
  v_add_u32 v{vT[3]}, s{sT2}, v{vT[3]}
  v_mul_u32_u24 v{vT[4]}, 36, v{vG}
  v_add_u32 v{vT[4]}, v{vT[3]}, v{vT[4]}
  v_lshl_add_u32 v{vT[2]}, v{vG}, 4, v{vT[3]}
  s_lshr_b32 s{sT2}, s{sTILE}, 2
  s_lshl_b32 s{sT2}, s{sT2}, 12
  s_and_b32 s{sT3}, s{sTILE}, 3
  s_lshl_b32 s{sT3}, s{sT3}, 7
  s_add_u32 s{sT2}, s{sT2}, s{sT3}
  s_lshl_b32 s{sT3}, s{sG}, 3
  s_add_u32 s{sT2}, s{sT2}, s{sT3}
  s_add_u32 s{sT0}, s{sT2}, {WS_F2}
""")
        for j, (t, c) in enumerate(batch):
            a(f"s_waitcnt lgkmcnt({len(batch)-1-j})")
            if b0 == 0 and j == 0: a("s_barrier")
            cc = v(out + 4*t, 4) if c > 0 else '0'
            a(f"v_mfma_f32_16x16x32_bf16 {v(out+4*t,4)}, {v(nbb+4*j,4)}, {v(phq+4*c,4)}, {cc}")
    a(f"v_add_f32 v{vT[0]}, 0x358637bd, v{out+18}\nv_rcp_f32 v{vT[0]}, v{vT[0]}")
    for i in range(9): a(f"v_pk_mul_f32 {v(out+2*i,2)}, {v(out+2*i,2)}, {v(vT[0],2)} op_sel_hi:[1,0]")
    for i in range(9): a(f"v_cvt_pk_bf16_f32 v{out+20+i}, v{out+2*i}, v{out+2*i+1}")
    stamp(24)
    for i in range(0, 8, 2):
        a(f"ds_write2_b32 v{vT[4]}, v{out+20+i}, v{out+21+i} offset0:{i} offset1:{i+1}")
    a(f"ds_write_b32 v{vT[4]}, v{out+28} offset:32")
    a("s_waitcnt lgkmcnt(0)")
    for j in range(3): a(f"ds_read_b128 {v(out+4*j,4)}, v{vT[2]} offset:{64*j}")
    for j in range(3):
        a(f"s_waitcnt lgkmcnt({2-j})\nbuffer_store_dwordx4 {v(out+4*j,4)}, v{vOST[j]}, {srd(SWS)}, 0 offen sc1")
    a("s_barrier")
    stamp(25)
    set_flag(sT0, 8)
    stamp(10)
def tr_base(dst):
    a(f"""
  v_bfe_u32 v{vT[3]}, v{vLANE}, 2, 2
  v_lshl_add_u32 v{vT[1]}, v{vG}, 2, v{vT[3]}
  v_and_b32 v{vT[2]}, 3, v{vLANE}
  s_movk_i32 s{sT3}, 144
  v_mul_u32_u24 v{vT[1]}, s{sT3}, v{vT[1]}
  v_lshl_add_u32 v{dst}, v{vT[2]}, 3, v{vT[1]}
""")
def pc_setup():
    a(f"""
  s_lshr_b32 s{sT0}, s{sTG}, 1
  s_and_b32 s{sT1}, s{sTG}, 1
  s_lshl_b32 s{sT2}, s{sTB}, 2
  s_lshl_b32 s{sT3}, s{sT1}, 1
  s_add_u32 s{sT2}, s{sT2}, s{sT3}
  s_lshl_b32 s{sT3}, s{sT0}, 7
  s_add_u32 s{sT3}, s{sT3}, s{sT2}
  s_mul_i32 s{sT5}, s{sT3}, 18432
  s_add_u32 s{sT5}, s{sT5}, {WS_O}
  s_add_u32 s{sT4}, s{sT5}, 18432
  v_lshlrev_b32 v{vT[0]}, 4, v{vLANE}
  v_add_u32 v{vT[1]}, 4096, v{vT[0]}
  v_add_u32 v{vT[2]}, 8192, v{vT[0]}
  v_add_u32 v{vT[3]}, 12288, v{vT[0]}
  v_add_u32 v{vT[4]}, 16384, v{vT[0]}
  s_lshl_b32 s{sT2}, s{sT2}, 6
  s_add_u32 s{sPB}, s{sT2}, {WS_GATE}
""")

vRA8 = [21, 22, 23, 24, 25]
DEP = 4
def rd_addrs(unitlists, regs, base):
    a(f"""
  v_bfe_u32 v{vT[0]}, v{vLANE}, 2, 2
  v_lshl_add_u32 v{vT[1]}, v{vG}, 2, v{vT[0]}
  v_and_b32 v{vT[2]}, 3, v{vLANE}
  v_and_b32 v{vT[3]}, 1, v{vT[0]}
  v_lshlrev_b32 v{vT[3]}, 1, v{vT[3]}
  v_and_b32 v{vT[4]}, 7, v{vT[1]}
  v_lshl_add_u32 v{vT[3]}, v{vT[4]}, 2, v{vT[3]}
  v_lshlrev_b32 v{vT[4]}, 9, v{vT[1]}
  v_add_u32 v{vT[4]}, {base}, v{vT[4]}
  v_lshlrev_b32 v{vT[2]}, 3, v{vT[2]}
""")
    for units, r in zip(unitlists, regs):
        packed = sum(u << (8 * c) for c, u in enumerate(units))
        a(f"""
  s_mov_b32 s{sT3}, {packed}
  v_lshrrev_b32 v{vT[0]}, v{vT[2]}, s{sT3}
  v_and_b32 v{vT[0]}, 0xff, v{vT[0]}
  v_xor_b32 v{vT[0]}, v{vT[0]}, v{vT[3]}
  v_lshl_add_u32 v{r}, v{vT[0]}, 3, v{vT[4]}
""")
def x_addr(shift_sreg, sh):
    a(f"""
  v_lshrrev_b32 v{vT[0]}, 1, v{vN}
  v_xor_b32 v{vT[0]}, v{vT[0]}, v{vG}
  v_lshlrev_b32 v{vT[0]}, 4, v{vT[0]}
  v_lshl_add_u32 v{vT[0]}, v{vN}, 7, v{vT[0]}
  s_lshl_b32 s{sT2}, s{shift_sreg}, {sh}
  v_add_u32 v{vRX[0]}, s{sT2}, v{vT[0]}
  v_xor_b32 v{vRX[1]}, 64, v{vRX[0]}
""")
def pass1(role):
    x_addr(sTH, 13)
    rd_addrs([[KOFF8[c] + t for c in range(4)] if role == 0 else [32 + u for u in TILEV[t]] for t in range(5)], vRA8, W0L)
    base = [0]
    def setbase(sl):
        want = (sl // 3) * 3 * WSL
        out = []
        if want != base[0]:
            d = want - base[0]
            for r in vRA8: out.append(f"v_add_u32 v{r}, {d}, v{r}" if d > 0 else f"v_subrev_u32 v{r}, {-d}, v{r}")
            base[0] = want
        return out
    def xregs(ks, tt): return XB + 16 * (ks & 1) + 4 * tt
    lds = []
    def wreads(st):
        ks, i = divmod(st, 5)
        pre = setbase((ks + 1) % NWS) if i == 0 else []
        off = ((ks + 1) % NWS) * WSL - base[0]
        fb = RING + 4 * (st % NRING)
        return [(None, x_) for x_ in pre] + [(st, f"ds_read_b64_tr_b16 {v(fb + 2*hh, 2)}, v{vRA8[i]} offset:{off + hh*8192}") for hh in range(2)]
    def xread(ks, tt):
        xo = ((ks // 2) % NXS) * XSL
        return (5 * ks, f"ds_read_b128 {v(xregs(ks, tt), 4)}, v{vRX[ks & 1]} offset:{xo + 2048*tt}")
    def emit(it):
        tag, txt = it
        if opt('noreads', 0) and tag is not None and 5 <= tag < 999: txt = "s_nop 0"
        a(txt)
        if tag is not None: lds.append(tag)
    def mfma(st, tt):
        ks, i = divmod(st, 5)
        fb = RING + 4 * (st % NRING)
        acc = ACC + 16 * i + 4 * tt
        c = v(acc, 4) if ks > 0 else '0'
        A, B = (v(xregs(ks,tt),4), v(fb,4)) if role == 1 else (v(fb,4), v(xregs(ks,tt),4))
        if opt('nomfma', 0): return "s_nop 0"
        return f"v_mfma_f32_16x16x32_bf16 {v(acc,4)}, {A}, {B}, {c}"
    a("s_waitcnt vmcnt(2)")
    table_writes()
    a("s_waitcnt lgkmcnt(0)\ns_barrier")
    stamp(3)
    for tt in range(4): emit(xread(0, tt))
    for st in range(DEP):
        for it in wreads(st): emit(it)
    NST = 90
    fifo = []
    for st in range(NST):
        while any(t_ == st for t_, _ in fifo): emit(fifo.pop(0))
        idx = max(i for i, x_ in enumerate(lds) if x_ == st)
        a(f"s_waitcnt lgkmcnt({min(15, len(lds) - 1 - idx)})")
        if (st + DEP) % 5 == 0:
            while fifo: emit(fifo.pop(0))
            a("s_barrier")
        if st == opt('cst', 8):
            a("s_waitcnt vmcnt(0)")
            for j in range(2): a(f"buffer_store_dwordx4 v[{CW+4*j}:{CW+4*j+3}], v{CW+8+j}, {srd(SWS)}, 0 offen sc1")
            a(NONLD)
        if st == 36:
            a("s_waitcnt vmcnt(0)")
            get_nonce()
            a(f"""
  s_bfe_u32 s{sT3}, s2, 0x30004
  s_lshl_b32 s{sT3}, s{sT3}, 10
  s_lshr_b32 s{sT2}, s2, 7
  s_lshl_b32 s{sT2}, s{sT2}, 9
  s_add_u32 s{sT3}, s{sT3}, s{sT2}
  s_and_b32 s{sT2}, s2, 15
  s_lshl_b32 s{sT2}, s{sT2}, 5
  s_add_u32 s{sT3}, s{sT3}, s{sT2}
  s_lshl_b32 s{sT2}, s{sPW}, 3
  s_add_u32 s{sT3}, s{sT3}, s{sT2}
  s_add_u32 s{sT0}, s{sT3}, {WS_F4}""")
            set_flag(sT0, 1)
        nst = st + DEP
        if nst < NST:
            j = nst % 5
            if j < 2: fifo += [xread(nst // 5, 2 * j), xread(nst // 5, 2 * j + 1)]
            fifo += wreads(nst)
        if 20 <= st < 35:
            t_, c_ = SEQ2[st - 20]
            fifo.append((999, f"ds_read_b128 {v(A2L[st-20],4)}, v{cA2} offset:{t_*192 + c_*16}"))
        for tt in range(4):
            a(mfma(st, tt))
            if fifo: emit(fifo.pop(0))
def loader():
    nW, nX, nQ = 2, 1, 0
    def need(ks): return min(vm.wait_for(('w', ks)), vm.wait_for(('x', ks // 2)))
    x_addr(sTG, 12)
    def xr(ks):
        xo = ((ks // 2) % NXS) * XSL
        for tt in range(2): a(f"ds_read_b128 {v(QX0+8*ks+4*tt, 4)}, v{vRX[ks & 1]} offset:{xo + 2048*tt}")
    a(f"s_waitcnt vmcnt({need(0)})\ns_barrier")
    stamp(3)
    xr(0)
    def refill(ks, maxw):
        nonlocal nW, nX
        c = 0
        while c < maxw:
            if nX < 9 and 2 * nX <= nW + 1 and 2 * (nX - NXS) + 1 <= ks: issue_x(nX); nX += 1
            if nW < 18 and nW - NWS <= ks - 1: issue_w(nW); nW += 1; c += 1
            else: break
        if nX < 9 and 2 * nX <= nW + 1 and 2 * (nX - NXS) + 1 <= ks: issue_x(nX); nX += 1
    if opt('norefill', 0):
        global w_items, x_items
        w_items = lambda ks: "s_nop 0"
        x_items = lambda pr: "s_nop 0"
    refill(-1, opt('rf0', 2))
    for ks in range(18):
        a(f"s_waitcnt vmcnt({need(ks + 1) if ks + 1 < 18 else 63}) lgkmcnt(0)")
        a("s_barrier")
        if ks + 1 < 18: xr(ks + 1)
        refill(ks, opt('rf', 2))
        if ks == 8: a(NONLD); vm.add('non')
        if ks == opt('wqpf', 6):
            a(f"""
  s_and_b32 s{sT2}, s{sT}, 7
  s_mul_i32 s{sT2}, s{sT2}, 72
  s_mul_i32 s{sT3}, s{sTG}, 18
  s_add_u32 s{sT2}, s{sT2}, s{sT3}
  s_mul_i32 s{sT2}, s{sT2}, 3456
  s_add_u32 s{sT2}, s{sT2}, s{sH144}
  v_min_u32 v{vT[0]}, 35, v{vLANE}
  v_lshrrev_b32 v{vT[1]}, 1, v{vT[0]}
  s_movk_i32 s{sT3}, 3456
  v_mul_u32_u24 v{vT[1]}, s{sT3}, v{vT[1]}
  v_and_b32 v{vT[0]}, 1, v{vT[0]}
  v_mul_u32_u24 v{vT[0]}, 140, v{vT[0]}
  v_add_u32 v{vT[0]}, v{vT[0]}, v{vT[1]}
  buffer_load_dword v{17}, v{vT[0]}, {srd(SW)}, s{sT2} offen""")
            vm.add('wqpf')
        if ks == 17: arrive(C1)
        for i_ in range(18):
            if wq_time(i_) == ks: issue_q(i_)
        if ks == opt('wopf', 99):
            a(f"""
  s_lshr_b32 s{sT2}, s2, 3
  s_mul_i32 s{sT2}, s{sT2}, 20736
  s_mul_i32 s{sT3}, s{sTH}, 10368
  s_add_u32 s{sT2}, s{sT2}, s{sT3}
  v_lshlrev_b32 v{vT[0]}, 7, v{vLANE}
  v_add_u32 v{vT[1]}, 8192, v{vT[0]}
  v_min_u32 v{vT[1]}, {80*128}, v{vT[1]}
  s_bitcmp1_b32 s{sPW}, 1
  s_cbranch_scc1 L_wopfB
  buffer_load_dword v{17}, v{vT[0]}, {srd(SWOA)}, s{sT2} offen
  buffer_load_dword v{18}, v{vT[1]}, {srd(SWOA)}, s{sT2} offen
  s_branch L_wopfD
L_wopfB:
  buffer_load_dword v{17}, v{vT[0]}, {srd(SWOB)}, s{sT2} offen
  buffer_load_dword v{18}, v{vT[1]}, {srd(SWOB)}, s{sT2} offen
L_wopfD:""")
            vm.add('wopf', 2)
    assert nW == 18 and nX == 9, (nW, nX)
def a2_reads(addr):
    for j, (t, c) in enumerate(SEQ2): a(f"ds_read_b128 {v(A2L[j],4)}, v{addr} offset:{t*192 + c*16}")


cA2q, cKVq = cA2, cKV
a(f"v_lshlrev_b32 v{cL16}, 4, v{vLANE}")
diag_addr(cA2, 20, 48, T2)
diag_addr(cKV, 19, 80, KVT)
a(f"v_add_u32 v{cW2}, s{sMQ2}, v{cL16}")
a(f"s_cmp_eq_u32 s{sROLE}, 1\ns_cbranch_scc1 L_noKc")
a(f"""
  s_and_b32 s{sT4}, s{sTG}, 1                 ; half
  s_lshr_b32 s{sT5}, s{sTG}, 1                ; c0
  v_bfe_u32 v{vT[0]}, v{vLANE}, 2, 2
  v_lshl_add_u32 v{vT[0]}, v{vG}, 2, v{vT[0]}
  s_movk_i32 s{sT2}, 320
  v_mul_u32_u24 v{vT[0]}, s{sT2}, v{vT[0]}
  v_bfe_u32 v{vT[1]}, v{vLANE}, 1, 1
  v_mul_u32_u24 v{vT[1]}, 80, v{vT[1]}
  v_and_b32 v{vT[2]}, 1, v{vLANE}
  v_lshl_add_u32 v{vT[1]}, v{vT[2]}, 3, v{vT[1]}
  s_mul_i32 s{sT2}, s{sT4}, 160
  s_lshl_b32 s{sT3}, s{sT5}, 4
  s_add_u32 s{sT2}, s{sT2}, s{sT3}
  v_add3_u32 v{cAF}, v{vT[0]}, v{vT[1]}, s{sT2}
  s_mul_i32 s{sT2}, s{sT4}, 3072
  s_add_u32 s{sT2}, s{sT2}, {VF}
  v_add_u32 v{cB01}, s{sT2}, v{cL16}
  v_add_u32 v{cB2}, {VF + 2048}, v{cL16}
  s_lshl_b32 s{sT1}, s{sT4}, 1
  v_lshrrev_b32 v{vT[7]}, 1, v{vG}
  v_add_u32 v{vT[7]}, s{sT1}, v{vT[7]}        ; hr
  v_and_b32 v{vT[9]}, 1, v{vG}
  v_lshlrev_b32 v{vT[9]}, 3, v{vT[9]}
  s_lshl_b32 s{sT1}, s{sT5}, 4
  s_add_u32 s{sT1}, s{sT1}, {PST}
  v_add_u32 v{vT[9]}, s{sT1}, v{vT[9]}        ; PST + c0*32 + (g&1)*16
  v_cmp_lt_u32 s[{sM2}:{sM2+1}], 7, v{vN}
""")
for ci in range(3):
    if ci == 0: pre = f"s_mul_i32 s{sT2}, s{sT4}, 48\n  s_mov_b32 s{sT3}, 0"
    elif ci == 1: pre = f"s_mul_i32 s{sT2}, s{sT4}, 24\n  s_add_u32 s{sT2}, s{sT2}, 16\n  s_lshl_b32 s{sT3}, s{sT4}, 4"
    else: pre = f"s_mov_b32 s{sT2}, 32\n  s_movk_i32 s{sT3}, 200"
    a(f"""
  {pre}
  v_mov_b32 v{vT[4]}, s{sT3}
  v_cndmask_b32 v{vT[4]}, 0, v{vT[4]}, s[{sM2}:{sM2+1}]
  v_add3_u32 v{vT[4]}, v{vT[4]}, v{vN}, s{sT2}
  v_mul_u32_u24 v{vT[5]}, 57, v{vT[4]}
  v_lshrrev_b32 v{vT[5]}, 10, v{vT[5]}
  v_mul_u32_u24 v{vT[6]}, 18, v{vT[5]}
  v_sub_u32 v{vT[6]}, v{vT[4]}, v{vT[6]}
""")
    if ci == 2:
        a(f"""
  v_cmp_eq_u32 vcc, 240, v{vT[4]}
  v_cndmask_b32 v{vT[5]}, v{vT[5]}, v{vT[7]}, vcc
  v_cndmask_b32 v{vT[6]}, v{vT[6]}, 18, vcc
""")
    a(f"""
  v_mul_u32_u24 v{vT[8]}, 19, v{vT[7]}
  v_add_u32 v{vT[8]}, v{vT[8]}, v{vT[6]}
  s_movk_i32 s{sT2}, 72
  v_mad_u32_u24 v{vT[8]}, v{vT[8]}, s{sT2}, v{vT[9]}
  v_cmp_eq_u32 vcc, v{vT[5]}, v{vT[7]}
  v_mov_b32 v{vT[10]}, {PST + 5504}
  v_cndmask_b32 v{cPS[ci]}, v{vT[10]}, v{vT[8]}, vcc
""")
a(f"v_lshlrev_b32 v{cSA}, 3, v{vLANE}")
for j in range(2):
    a(f"v_add_u32 v{vT[3]}, {256*j}, v0\nv_lshlrev_b32 v{cGQ[j]}, 4, v{vT[3]}")
    for h in range(2):
        a(f"""
  v_lshl_add_u32 v{vT[0]}, v{vT[3]}, 1, {h}
  s_mov_b32 s{sT3}, 0xE38F
  v_mul_u32_u24 v{vT[1]}, s{sT3}, v{vT[0]}
  v_lshrrev_b32 v{vT[1]}, 19, v{vT[1]}
  v_mul_u32_u24 v{vT[2]}, 9, v{vT[1]}
  v_sub_u32 v{vT[2]}, v{vT[0]}, v{vT[2]}
  v_mul_u32_u24 v{cLQ[2*j+h]}, 80, v{vT[1]}
  v_lshl_add_u32 v{cLQ[2*j+h]}, v{vT[2]}, 3, v{cLQ[2*j+h]}
  v_add_u32 v{cLQ[2*j+h]}, {KVT}, v{cLQ[2*j+h]}
""")
a(f"""
  v_cmp_gt_u32 vcc, {342-256}, v0
  v_mov_b32 v{vT[0]}, {BIG}
  v_cndmask_b32 v{cGQ[1]}, v{vT[0]}, v{cGQ[1]}, vcc
""")
a(f"""
  s_mul_i32 s{sT2}, s{sTG}, 10240
  s_movk_i32 s{sT3}, 320
  v_mul_u32_u24 v{vT[0]}, s{sT3}, v{vN}
  v_mul_u32_u24 v{vT[1]}, 80, v{vG}
  v_add3_u32 v{cPFW}, v{vT[0]}, v{vT[1]}, s{sT2}
""")

a("L_noKc:")
a(f"s_cmp_ge_u32 s{sPW}, 4\ns_cbranch_scc1 L_loader")
a(f"""
  s_mul_i32 s{sT2}, s{sTH}, 5120
  v_add_u32 v{26+2}, 0, v{26+2}
""") if False else None
a(f"s_cmp_ge_u32 s{sPW}, 2\ns_cbranch_scc1 L_vcomp")
def hx_addr():
    a(f"""
  s_mul_i32 s{sT2}, s{sTH}, 5120
  v_add_u32 v{vT[2]}, s{sT2}, v{cL16}
  v_lshlrev_b32 v{vT[3]}, 3, v{vLANE}
  v_add_u32 v{vT[3]}, s{sT2}, v{vT[3]}
""")
pass1(0)
HI[0] = opt('kprio', 3)
a(f"s_setprio {HI[0]}")
stamp(4)
hx_addr()
SND = RING
for j, tt in enumerate((2, 3)):
    for t in range(5):
        s_ = ACC + 16 * t + 4 * tt
        a(f"v_cvt_pk_bf16_f32 v{SND+10*j+2*t}, v{s_}, v{s_+1}\nv_cvt_pk_bf16_f32 v{SND+10*j+2*t+1}, v{s_+2}, v{s_+3}")
    a(f"ds_write_b128 v{vT[2]}, {v(SND+10*j,4)} offset:{HX+2560*j}\nds_write_b128 v{vT[2]}, {v(SND+10*j+4,4)} offset:{HX+2560*j+1024}\nds_write_b64 v{vT[3]}, {v(SND+10*j+8,2)} offset:{HX+2560*j+2048}")
for kb, tt in zip((KB0, KB1), (0, 1)):
    for t in range(5):
        s_ = ACC + 16 * t + 4 * tt
        a(f"v_cvt_pk_bf16_f32 v{kb+2*t}, v{s_}, v{s_+1}\nv_cvt_pk_bf16_f32 v{kb+2*t+1}, v{s_+2}, v{s_+3}")
    a(f"v_mov_b32 v{kb+10}, 0\nv_mov_b32 v{kb+11}, 0")
    if tt == 0:
        a("s_waitcnt lgkmcnt(0)")
        arrive(CK4)
        arrive(C1)
a("s_branch L_kpost")
a("L_vcomp:")
pass1(1)
a(f"s_setprio {HI[0]}")
stamp(4)
a(f"s_mul_i32 s{sT2}, s{sTH}, 10240\ns_add_u32 s{sT2}, s{sT2}, {VF}\nv_add_u32 v{vT[4]}, s{sT2}, v{cL16}")
a(f"v_cmp_eq_u32 vcc, 8, v{vN}\nv_mov_b32 v{vT[5]}, 0x3f803f80")
for ct in range(5):
    for j in range(2):
        b_ = ACC + 16 * ct + 8 * j
        for q in range(4): a(f"v_cvt_pk_bf16_f32 v{b_+q}, v{b_+2*q}, v{b_+2*q+1}")
        if ct == 2:
            for q in range(4): a(f"v_cndmask_b32 v{b_+q}, v{b_+q}, v{vT[5]}, vcc")
        a(f"ds_write_b128 v{vT[4]}, {v(b_,4)} offset:{5120*j + ct*1024}")
hx_addr()
cwait(CK4, 2)
for j, kb in enumerate((KB0, KB1)):
    a(f"ds_read_b128 {v(kb,4)}, v{vT[2]} offset:{HX+2560*j}\nds_read_b128 {v(kb+4,4)}, v{vT[2]} offset:{HX+2560*j+1024}\nds_read_b64 {v(kb+8,2)}, v{vT[3]} offset:{HX+2560*j+2048}")
    a(f"v_mov_b32 v{kb+10}, 0\nv_mov_b32 v{kb+11}, 0")
a("s_waitcnt lgkmcnt(0)")
arrive(C1)
a("L_kpost:")
a("s_waitcnt lgkmcnt(0)")
stamp(17)
for m in stage2_mfmas(P0, A2L, KB0): a(m)
merge(softmax_list(P0, EPk, PH0), stage2_mfmas(P1, A2L, KB1), every=3)
stamp(18)
cwait(C1, 8)
for c in range(5): a(f"ds_write_b128 v{cPFW}, {v(PH0+4*c,4)} offset:{PF + 16*c}")
for x in softmax_list(P1, EPk, PH1): a(x)
stamp(19)
for c in range(5): a(f"ds_write_b128 v{cPFW}, {v(PH1+4*c,4)} offset:{PF + 5120 + 16*c}")
a("s_waitcnt lgkmcnt(0)")
stamp(20)
arrive(CPF)
KV = 160
BF = 184 - 152
BF = 96
AFR = 32
for ci in range(3):
    for tg in range(4):
        ad, of = (cB01, ci * 1024) if ci < 2 else (cB2, 0)
        a(f"ds_read_b128 {v(BF+16*ci+4*tg,4)}, v{ad} offset:{of + tg*5120}")
cwait(CPF, 4)
stamp(5)
def a_reads(j):
    for tg in range(4):
        for hh in range(2): a(f"ds_read_b64_tr_b16 {v(AFR+16*j+4*tg+2*hh,2)}, v{cAF} offset:{32*j + tg*10240 + hh*5120}")
a_reads(0); a_reads(1)
def kv_mf(j, ci):
    acc = KV + 4 * (3 * j + ci)
    return [f"v_mfma_f32_16x16x32_bf16 {v(acc,4)}, {v(AFR+16*j+4*tg,4)}, {v(BF+16*ci+4*tg,4)}, {v(acc,4) if tg else '0'}" for tg in range(4)]
a("s_waitcnt lgkmcnt(8)")
a_reads(2)
for ci in range(3):
    for m in kv_mf(0, ci): a(m)
a("s_waitcnt lgkmcnt(8)")
for ci in range(3):
    for m in kv_mf(1, ci): a(m)
a("s_waitcnt lgkmcnt(0)")
arrive(CKD)
a(f"s_cmp_ge_u32 s{sTG}, 2\ns_cbranch_scc1 L_kvskip")
for ci in range(3):
    for m in kv_mf(2, ci): a(m)
a("L_kvskip:")
for i in range(9): a(f"v_cvt_pk_bf16_f32 v{KV+4*i}, v{KV+4*i}, v{KV+4*i+1}\nv_cvt_pk_bf16_f32 v{KV+4*i+1}, v{KV+4*i+2}, v{KV+4*i+3}")
cwait(CKD, 4)
for ci in range(3): a(f"ds_write_b64 v{cPS[ci]}, {v(KV+4*ci,2)}")
for ci in range(3): a(f"ds_write_b64 v{cPS[ci]}, {v(KV+12+4*ci,2)} offset:32")
a(f"s_cmp_ge_u32 s{sTG}, 2\ns_cbranch_scc1 L_kvskip2")
a("s_mov_b32 exec_lo, 0xffff\ns_mov_b32 exec_hi, 0xffff")
for ci in range(3): a(f"ds_write_b64 v{cPS[ci]}, {v(KV+24+4*ci,2)} offset:64")
a("s_mov_b64 exec, -1\nL_kvskip2:")
a(f"""
  s_lshl_b32 s{sT4}, s{sG}, 13
  s_add_u32 s{sT4}, s{sT4}, {WS_F1}
  s_lshl_b32 s{sT0}, s{sT}, 5
  s_lshl_b32 s{sT3}, s{sTG}, 3
  s_add_u32 s{sT0}, s{sT0}, s{sT3}
  s_add_u32 s{sT0}, s{sT0}, s{sT4}
  s_lshl_b32 s{sT3}, s{sT}, 9
  s_add_u32 s{sT4}, s{sT4}, s{sT3}
  v_lshlrev_b32 v{vT[4]}, 4, v0
  v_add_u32 v{vT[4]}, {PST}, v{vT[4]}
  s_waitcnt lgkmcnt(0)
""")
stamp(21)
arrive(CKV)
cwait(CKV, 4)
stamp(22)
for j in range(2): a(f"ds_read_b128 {v(32+4*j,4)}, v{vT[4]} offset:{4096*j}")
for j in range(2):
    a(f"s_waitcnt lgkmcnt({1-j})\nbuffer_store_dwordx4 {v(32+4*j,4)}, v{cGQ[j]}, {srd(SWS)}, s{sPB} offen sc1")
stamp(23)
set_flag(sT0, 16)
arrive(CPS)
HI[0] = 0
a("s_setprio 0")
stamp(6)
if opt('kwo', 1):
    cwait(CPS, 4); cwait(CWR, 1)
    wo_items(grp['B'], cW2)
def poll_all(lab, soff, addr, cnt):
    R = [(32, 33), (34, 35), (36, 37)][:PP]
    a(f"s_cmp_lg_u32 s{sWV}, 0\ns_cbranch_scc1 {lab}_w\ns_mov_b32 s{sRETRY}, 0")
    for i, (r0, r1) in enumerate(R):
        a(f"buffer_load_dwordx2 v[{r0}:{r1}], v{addr}, {srd(SWS)}, s{soff} offen sc1")
        if i < PP - 1: a(f"s_sleep {opt('pst', 6)}")
    a(f"{lab}:")
    for i, (r0, r1) in enumerate(R):
        a(f"""
  s_waitcnt vmcnt({PP-1})
  v_cmp_ne_u32 vcc, s{sNON}, v{r0}
  v_cmp_ne_u32 s[{sM2}:{sM2+1}], s{sNON+1}, v{r1}
  s_or_b64 vcc, vcc, s[{sM2}:{sM2+1}]
  s_cbranch_scc0 {lab}_d
  buffer_load_dwordx2 v[{r0}:{r1}], v{addr}, {srd(SWS)}, s{soff} offen sc1""")
    a(f"""
  s_add_u32 s{sRETRY}, s{sRETRY}, 1
  s_cmp_lt_u32 s{sRETRY}, 100000
  s_cbranch_scc1 {lab}
{lab}_d:""")
    arrive(cnt, vT[6], vT[7])
    a(f"{lab}_w:")
    cwait(cnt, 1, vT[6], vT[7])
PB = 32
LDF = '' if opt('plain', 1) else ' sc1'
a(f"""
  s_lshl_b32 s{sT5}, s{sG}, 18
  s_mov_b32 s64, 0x11111111
  s_mov_b32 s65, 0x11111111
  s_mov_b32 s{sRETRY}, 0
  v_mov_b32 v{vT[4]}, {CNT + CG}
  s_cmp_lg_u32 s{sWV}, 0
  s_cbranch_scc1 L_gloop
""")
R_ = [(32, 33), (34, 35), (36, 37)][:PP]
for i, (r0, r1) in enumerate(R_):
    a(f"buffer_load_dwordx2 v[{r0}:{r1}], v{cSA}, {srd(SWS)}, s{sT4} offen sc1")
    if i < PP - 1: a(f"s_sleep {opt('pst', 6)}")
a("L_gp0:")
for i, (r0, r1) in enumerate(R_):
    a(f"""
  s_waitcnt vmcnt({PP-1})
  v_cmp_eq_u32 vcc, s{sNON}, v{r0}
  v_cmp_eq_u32 s[{sM2}:{sM2+1}], s{sNON+1}, v{r1}
  s_and_b64 vcc, vcc, s[{sM2}:{sM2+1}]
  s_lshr_b64 s[{sM2}:{sM2+1}], vcc, 1
  s_and_b64 vcc, vcc, s[{sM2}:{sM2+1}]
  s_lshr_b64 s[{sM2}:{sM2+1}], vcc, 2
  s_and_b64 vcc, vcc, s[{sM2}:{sM2+1}]
  v_mov_b32 v{vT[6]}, vcc_lo
  v_mov_b32 v{vT[7]}, vcc_hi
  {"" if opt('allatonce', 0) else f"ds_write_b64 v{vT[4]}, v[{vT[6]}:{vT[7]}]"}
  s_andn2_b64 s[{sM2}:{sM2+1}], s[64:65], vcc
  s_cbranch_scc0 L_gp1
  buffer_load_dwordx2 v[{r0}:{r1}], v{cSA}, {srd(SWS)}, s{sT4} offen sc1""")
a(f"""
  s_add_u32 s{sRETRY}, s{sRETRY}, 1
  s_cmp_lt_u32 s{sRETRY}, 100000
  s_cbranch_scc1 L_gp0
L_gp1:
  ds_write_b64 v{vT[4]}, v[{vT[6]}:{vT[7]}]
""")
stamp(28)
if STAMPS: a(f"v_writelane_b32 v{vSTAMP}, s{sRETRY}, 29")
a(f"""
L_gloop:
L_gread:
  ds_read_b64 v[{vT[6]}:{vT[7]}], v{vT[4]}
  s_waitcnt lgkmcnt(0)
  v_readfirstlane_b32 s{sM2}, v{vT[6]}
  v_readfirstlane_b32 s{sM2+1}, v{vT[7]}
  s_add_u32 s{sRETRY}, s{sRETRY}, 1
  s_cmp_gt_u32 s{sRETRY}, 400000
  s_cbranch_scc1 L_gdone
  s_and_b64 s[{sM2}:{sM2+1}], s[{sM2}:{sM2+1}], s[64:65]
  s_cbranch_scc1 L_gnew
  s_sleep 2
  s_branch L_gloop
L_gnew:
  s_andn2_b64 s[64:65], s[64:65], s[{sM2}:{sM2+1}]
""")
for p in range(16):
    lab = f"L_gl{p}"
    a(f"s_bitcmp1_b64 s[{sM2}:{sM2+1}], {4*p}\ns_cbranch_scc0 {lab}")
    a(f"s_add_u32 s{sT2}, s{sT5}, {p*16384}")
    for j in range(2):
        a(f"buffer_load_dwordx4 {v(PB+8*p+4*j,4)}, v{cGQ[j]}, {srd(SWS)}, s{sT2} offen{LDF}")
    a(f"{lab}:")
a(f"""
  s_cmp_lg_u64 s[64:65], 0
  s_cbranch_scc1 L_gloop
L_gdone:
""")
stamp(7)
a("s_waitcnt vmcnt(0)")
stamp(8)
SA_ = 160
a(f"s_mov_b32 s{sT2}, 0x3f80\ns_mov_b32 s{sT3}, 0x3f800000")
for p in range(16):
    for q in range(8):
        r = PB + 8 * p + q
        if p == 0: a(f"v_lshlrev_b32 v{SA_+2*q}, 16, v{r}\nv_and_b32 v{SA_+2*q+1}, 0xffff0000, v{r}")
        else: a(f"v_dot2_f32_bf16 v{SA_+2*q}, v{r}, s{sT2}, v{SA_+2*q}\nv_dot2_f32_bf16 v{SA_+2*q+1}, v{r}, s{sT3}, v{SA_+2*q+1}")
a("s_nop 3")
for q in range(8): a(f"v_cvt_pk_bf16_f32 v{PB+q}, v{SA_+2*q}, v{SA_+2*q+1}")
a(f"ds_write_b64 v{cLQ[0]}, {v(PB,2)}\nds_write_b64 v{cLQ[1]}, {v(PB+2,2)}")
a(f"""
  v_cmp_gt_u32 vcc, {342-256}, v0
  s_and_saveexec_b64 s[94:95], vcc
  ds_write_b64 v{cLQ[2]}, {v(PB+4,2)}
  ds_write_b64 v{cLQ[3]}, {v(PB+6,2)}
  s_mov_b64 exec, -1
  v_mul_u32_u24 v{vT[0]}, 80, v0
  v_add_u32 v{vT[0]}, {KVT+72}, v{vT[0]}
  v_mov_b32 v{vT[2]}, 0
  v_mov_b32 v{vT[3]}, 0
  v_cmp_gt_u32 vcc, 76, v0
  s_and_saveexec_b64 s[94:95], vcc
  ds_write_b64 v{vT[0]}, v[{vT[2]}:{vT[3]}]
  s_mov_b64 exec, -1
  s_mul_i32 s{sT2}, s{sTG}, 5120
  s_add_u32 s{sT2}, s{sT2}, {PQ}
  v_add_u32 v{vT[0]}, s{sT2}, v{cL16}
  v_bfe_u32 v{vT[3]}, v{vLANE}, 2, 2
  v_lshl_add_u32 v{vT[1]}, v{vG}, 2, v{vT[3]}
  v_and_b32 v{vT[2]}, 3, v{vLANE}
  s_movk_i32 s{sT3}, 144
  v_mul_u32_u24 v{vT[1]}, s{sT3}, v{vT[1]}
  v_lshl_add_u32 v{vRA[0]}, v{vT[2]}, 3, v{vT[1]}
  s_waitcnt lgkmcnt(0)
  s_barrier
""")
stamp(9)
KPHQ = 180; KOUT = 136; KNB = 32; SAVE = 200
for c in range(5): a(f"ds_read_b128 {v(KPHQ+4*c,4)}, v{vT[0]} offset:{c*1024}")
a(f"v_add_u32 v{vRA[1]}, 65536, v{vRA[0]}\nv_add_u32 v{vRA[2]}, 131072, v{vRA[0]}")
for t in range(5):
    for hh in range(2):
        o = wo_addr[(35, hh)] + 32 * t
        a(f"ds_read_b64_tr_b16 {v(SAVE+4*t+2*hh,2)}, v{vRA[o >> 16]} offset:{o & 0xffff}")
a("s_waitcnt lgkmcnt(0)")
num_and_store(KPHQ, KNB, KOUT, cKV, False)
OF = 32
FB = 176; NFB = 6
CACC = 220 - 4
SAVE2 = SAVE
CACC = 220
FB = 176; NFB = 5; SAVE2 = 196; CACC = 216
for i in range(20): a(f"v_mov_b32 v{SAVE2+i}, v{SAVE+i}")
pc_setup()
a(f"""
  v_lshlrev_b32 v{vT[5]}, 2, v{vN}
  v_lshlrev_b32 v{vT[9]}, 3, v{vLANE}
  s_lshl_b32 s{sT3}, s{sTB}, 12
  s_lshl_b32 s{sPEND}, s{sCB}, 9
  s_add_u32 s{sT3}, s{sT3}, s{sPEND}
  s_add_u32 s{sPEND}, s{sT3}, {WS_F2}
""")
a("s_barrier")
stamp(27)
poll_all("L_opoll", sPEND, vT[9], CO)
a(f"""
  buffer_load_dword v{vT[6]}, v{vT[5]}, {srd(SWS)}, s{sPB} offen{LDF}
  buffer_load_dword v{vT[7]}, v{vT[5]}, {srd(SWS)}, s{sPB} offen offset:64{LDF}
""")
stamp(11)
for ks in range(18):
    for tt in range(2):
        a(f"buffer_load_dwordx4 {v(OF+8*ks+4*tt,4)}, v{vT[ks//4]}, {srd(SWS)}, s{sT5 if tt==0 else sT4} offen offset:{(ks%4)*1024}{LDF}")
stamp(26)
a(f"s_cmp_eq_u32 s{sT0}, 1\ns_cbranch_scc1 L_pc_b1")
def phaseC(b):
    seq = [(ks, t) for ks in range(18) for t in range(5)]
    def rd(i):
        ks, t = seq[i]
        if b * 18 + ks == 35: return []
        return [f"ds_read_b64_tr_b16 {v(FB+4*(i%NFB)+2*hh,2)}, v{vRA[(wo_addr[(b*18+ks, hh)] + 32*t) >> 16]} offset:{(wo_addr[(b*18+ks, hh)] + 32*t) & 0xffff}" for hh in range(2)]
    DEPTH = 4
    cnt = []
    for i in range(DEPTH):
        r = rd(i); cnt.append(len(r))
        for x_ in r: a(x_)
    for i, (ks, t) in enumerate(seq):
        saved = (b * 18 + ks == 35)
        w = []
        if t == 0: w.append(f"vmcnt({34 - 2*ks})")
        if not saved: w.append(f"lgkmcnt({sum(cnt[i+1:])})")
        if w: a("s_waitcnt " + " ".join(w))
        nx = rd(i + DEPTH) if i + DEPTH < len(seq) else []
        cnt.append(len(nx))
        fr = (SAVE2 + 4 * t) if saved else (FB + 4 * (i % NFB))
        for tt in range(2):
            acc = CACC + 20 * tt + 4 * t
            a(f"v_mfma_f32_16x16x32_bf16 {v(acc,4)}, {v(fr,4)}, {v(OF+8*ks+4*tt,4)}, {v(acc,4) if ks else '0'}")
            if nx: a(nx[tt])
phaseC(0)
a("s_branch L_pc_done")
a("L_pc_b1:")
phaseC(1)
a("L_pc_done:")
stamp(12)
arrive(CKD, vT[10], vT[11])
E0 = 32
for i in range(20):
    a(f"v_cvt_pk_bf16_f32 v{E0+i}, v{CACC+2*i}, v{CACC+2*i+1}")
a(f"""
  s_cmp_eq_u32 s{sT0}, 1
  s_cselect_b64 vcc, -1, 0
  v_cndmask_b32 v{vT[6]}, v{vT[6]}, v{vT[7]}, vcc
  v_cvt_pk_bf16_f32 v{vT[6]}, v{vT[6]}, v{vT[6]}
  v_lshlrev_b32 v{vT[6]}, 16, v{vT[6]}
  v_mul_f32 v{vT[6]}, s{sL+2}, v{vT[6]}
  v_exp_f32 v{vT[6]}, v{vT[6]}
  v_add_f32 v{vT[6]}, 1.0, v{vT[6]}
  v_rcp_f32 v{vT[6]}, v{vT[6]}
  v_cvt_pk_bf16_f32 v{vT[6]}, v{vT[6]}, v{vT[6]}
  v_lshlrev_b32 v{vT[6]}, 16, v{vT[6]}
  v_sub_f32 v{vT[7]}, 1.0, v{vT[6]}
  v_cvt_pk_bf16_f32 v{vT[7]}, v{vT[7]}, v{vT[7]}
  v_lshlrev_b32 v{vT[7]}, 16, v{vT[7]}
  v_cndmask_b32 v{vT[8]}, v{vT[6]}, v{vT[7]}, vcc
  v_cndmask_b32 v{vT[10]}, v{vT[7]}, v{vT[6]}, vcc
""")
for i in range(10):
    a(f"v_cndmask_b32 v{E0+20+i}, v{E0+10+i}, v{E0+i}, vcc\nv_cndmask_b32 v{E0+32+i}, v{E0+i}, v{E0+10+i}, vcc")
a(f"""
  s_mul_i32 s{sT2}, s{sWV}, 3072
  v_add_u32 v{vT[1]}, s{sT2}, v{vT[0]}
  s_xor_b32 s{sT3}, s{sWV}, 2
  s_mul_i32 s{sT3}, s{sT3}, 3072
  v_add_u32 v{vT[2]}, s{sT3}, v{vT[0]}
""")
cwait(CKD, 8, vT[5], vT[9])
a(f"""
  ds_write_b128 v{vT[1]}, {v(E0+20,4)}
  ds_write_b128 v{vT[1]}, {v(E0+24,4)} offset:1024
  ds_write_b64 v{vT[1]}, {v(E0+28,2)} offset:2048
  v_mov_b32 v{vT[5]}, {CNT+CE}
  v_mov_b32 v{vT[9]}, 1
  s_waitcnt lgkmcnt(0)
  s_mov_b64 exec, 1
  ds_add_u32 v{vT[5]}, v{vT[9]}
  s_mov_b64 exec, -1
  s_lshl_b32 s{sT2}, s{sTB}, 6
  s_lshl_b32 s{sT3}, s{sT1}, 5
  s_add_u32 s{sT2}, s{sT2}, s{sT3}
  s_lshl_b32 s{sT3}, s{sT0}, 4
  s_add_u32 s{sT2}, s{sT2}, s{sT3}
  v_add_u32 v{vT[3]}, s{sT2}, v{vN}
  s_movk_i32 s{sT3}, 1152
  v_mul_lo_u32 v{vT[3]}, v{vT[3]}, s{sT3}
  v_lshl_add_u32 v{vT[3]}, v{vG}, 3, v{vT[3]}
  s_mul_i32 s{sT3}, s{sCB}, 144
  v_add_u32 v{vT[3]}, s{sT3}, v{vT[3]}
  v_cmp_lt_u32 vcc, 1, v{vG}
  v_mov_b32 v{vT[4]}, {BIG}
  v_cndmask_b32 v{vT[4]}, v{vT[3]}, v{vT[4]}, vcc
""")
W0 = 80
for i in range(10):
    r = E0 + 32 + i
    a(f"""
  v_lshlrev_b32 v{W0+2*i}, 16, v{r}
  v_and_b32 v{W0+2*i+1}, 0xffff0000, v{r}
  v_pk_mul_f32 {v(W0+2*i,2)}, {v(W0+2*i,2)}, {v(vT[8],2)} op_sel_hi:[1,0]
  v_cvt_pk_bf16_f32 v{r}, v{W0+2*i}, v{W0+2*i+1}
  v_lshlrev_b32 v{W0+2*i}, 16, v{r}
  v_and_b32 v{W0+2*i+1}, 0xffff0000, v{r}
""")
cwait(CE, 4, vT[5], vT[9])
a(f"""
  ds_read_b128 {v(E0+20,4)}, v{vT[2]}
  ds_read_b128 {v(E0+24,4)}, v{vT[2]} offset:1024
  ds_read_b64 {v(E0+28,2)}, v{vT[2]} offset:2048
  s_waitcnt lgkmcnt(0)
""")
for t in range(5):
    for h in range(2):
        i = 2 * t + h
        r = E0 + 20 + i; w = W0 + 20 + 2 * (i & 1)
        a(f"""
  v_lshlrev_b32 v{w}, 16, v{r}
  v_and_b32 v{w+1}, 0xffff0000, v{r}
  v_pk_mul_f32 {v(w,2)}, {v(w,2)}, {v(vT[10],2)} op_sel_hi:[1,0]
  v_cvt_pk_bf16_f32 v{r}, v{w}, v{w+1}
  v_lshlrev_b32 v{w}, 16, v{r}
  v_and_b32 v{w+1}, 0xffff0000, v{r}
  v_pk_add_f32 {v(w,2)}, {v(w,2)}, {v(W0+2*i,2)}
  v_cvt_pk_bf16_f32 v{E0+i}, v{w}, v{w+1}
""")
    a(f"buffer_store_dwordx2 {v(E0+2*t,2)}, v{vT[3] if t < 4 else vT[4]}, {srd(SOUT)}, 0 offen offset:{32*t}")
stamp(13)
a("s_branch L_fin")

a("L_loader:")
loader()
get_nonce()
stamp(4)
a(f"""
  v_bfe_u32 v{vT[0]}, v{vLANE}, 2, 2
  v_lshl_add_u32 v{vT[1]}, v{vG}, 2, v{vT[0]}
  v_and_b32 v{vT[2]}, 3, v{vLANE}
  s_movk_i32 s{sT3}, 144
  v_mul_u32_u24 v{vT[4]}, s{sT3}, v{vT[1]}
  s_mov_b32 s{sT3}, {sum(u << (8*c) for c, u in enumerate(KOFF8))}
  v_lshlrev_b32 v{vT[5]}, 3, v{vT[2]}
  v_lshrrev_b32 v{vT[5]}, v{vT[5]}, s{sT3}
  v_and_b32 v{vT[5]}, 0xff, v{vT[5]}
  v_lshl_add_u32 v{23}, v{vT[5]}, 3, v{vT[4]}
  v_add_u32 v{24}, 65536, v{23}
  v_lshlrev_b32 v{25}, 4, v{vG}
  v_add_u32 v{25}, {GW}, v{25}
  s_mov_b32 s{sT5}, s{sROT}
""")
GACC = [vT[0], vT[4]]
groups = [(0, 18)] if opt('qwait', 1) else [(0, 6), (6, 14), (14, 18)]
for gi, (g0_, g1_) in enumerate(groups):
    if gi == (0 if opt('qwait', 1) else 1):
        cwait(C1, 8, 12, 13)
        for i_ in range(18):
            if wq_time(i_) == 18: issue_q(i_)
    wo_ready()
    arrive(CWR, 12, 13)
    if opt('qwait', 1): cwait(CPF, opt('qwait', 1), 12, 13)
    a(f"s_waitcnt vmcnt({vm.wait_for(('q', g1_ - 1))})")
    arrive(CWA + 4 * gi, 12, 13); cwait(CWA + 4 * gi, 4, 12, 13)
    stamp(30 + 2 * gi)
    steps = [(ks, t) for ks in range(g0_, g1_) for t in range(6)]
    def rd(i):
        ks, t = steps[i]
        fb = QRING + 4 * (i % 8)
        if t == 5:
            return [f"s_lshl_b32 s{sT4}, s{sT5}, 6\nv_add_u32 v{14}, s{sT4}, v{25}\ns_add_u32 s{sT5}, s{sT5}, 1\ns_cmp_eq_u32 s{sT5}, 18\ns_cselect_b32 s{sT5}, 0, s{sT5}\nds_read_b128 {v(fb,4)}, v{14}"]
        return [f"ds_read_b64_tr_b16 {v(fb+2*hh,2)}, v{23 + ((wq_addr[ks] + hh*2304 + 8*t) >> 16)} offset:{(wq_addr[ks] + hh*2304 + 8*t) & 0xffff}" for hh in range(2)]
    D_ = 6
    cnt = []
    for i in range(D_):
        r = rd(i); cnt.append(len(r))
        for x_ in r: a(x_)
    QB0 = opt('qb0', 66)
    pendB = list(grp['B']) if opt('wolate', 0) == 3 else []
    for i, (ks, t) in enumerate(steps):
        a(f"s_waitcnt lgkmcnt({sum(cnt[i+1:])})")
        nx = rd(i + D_) if i + D_ < len(steps) else []
        cnt.append(len(nx))
        for tt in range(2):
            acc = GACC[tt] if t == 5 else QACC + 20 * tt + 4 * t
            a(f"v_mfma_f32_16x16x32_bf16 {v(acc,4)}, {v(QRING+4*(i%8),4)}, {v(QX0+8*ks+4*tt,4)}, {v(acc,4) if ks else '0'}")
            if tt < len(nx): a(nx[tt])
    stamp(31 + 2 * gi)
    arrive(CWD + 4 * gi, 12, 13)
stamp(7)
a(f"""
  v_cmp_eq_u32 vcc, 1, v{vG}
  v_cndmask_b32 v{vT[0]}, v{GACC[0]}, v{GACC[1]}, vcc
  v_lshlrev_b32 v{vT[2]}, 2, v{vLANE}
  v_cmp_gt_u32 vcc, 32, v{vLANE}
  v_mov_b32 v{vT[3]}, {BIG}
  v_cndmask_b32 v{vT[2]}, v{vT[3]}, v{vT[2]}, vcc
  s_lshl_b32 s{sT2}, s{sT}, 9
  s_lshl_b32 s{sT3}, s{sTG}, 7
  s_add_u32 s{sT2}, s{sT2}, s{sT3}
  s_add_u32 s{sT2}, s{sT2}, {WS_GATE}
  s_cmp_eq_u32 s{sG}, 0
  s_cselect_b32 s{sT2}, s{sT2}, {BIG}
  buffer_store_dword v{vT[0]}, v{vT[2]}, {srd(SWS)}, s{sT2} offen sc1
""")
for kb, tt in zip((KB0, KB1), (0, 1)):
    for t in range(5):
        s_ = QACC + 20 * tt + 4 * t
        a(f"v_cvt_pk_bf16_f32 v{kb+2*t}, v{s_}, v{s_+1}\nv_cvt_pk_bf16_f32 v{kb+2*t+1}, v{s_+2}, v{s_+3}")
    a(f"v_mov_b32 v{kb+10}, 0\nv_mov_b32 v{kb+11}, 0")
a2_reads(cA2)
cwait(CWD + 4 * (len(groups) - 1), 4)
a("s_waitcnt lgkmcnt(0)")
for m in stage2_mfmas(P0, A2L, KB0): a(m)
merge(softmax_list(P0, EPk, PH0), stage2_mfmas(P1, A2L, KB1), every=3)
a(f"s_mul_i32 s{sT2}, s{sTG}, 5120\ns_add_u32 s{sT2}, s{sT2}, {PQ}\nv_add_u32 v{vT[8]}, s{sT2}, v{cL16}")
for c in range(5): a(f"ds_write_b128 v{vT[8]}, {v(PH0+4*c,4)} offset:{c*1024}")
for x in softmax_list(P1, EPk, PH1): a(x)
if not opt('kwo', 1):
    cwait(CPS, 4)
    wo_items(grp['B'][:2], cW2)
early = grp['A'] + (grp['B'][2:] if not opt('kwo', 1) else [])
ne = len(early) - opt('wodefer', 0)
grp['Z'] = early[ne:] + grp['Z']
n_ = wo_items(early[:ne], cW2)
stamp(8)
a(f"s_waitcnt vmcnt({n_}) lgkmcnt(0)\ns_barrier")
stamp(9)
num_and_store(PH1, 32, 136, cKV, False)
wo_items(grp['Z'], cW2)
a("s_waitcnt vmcnt(0)\ns_barrier")
a("L_fin:")
if STAMPS:
    a(f"""
  s_and_b32 s{sT2}, s{sWV}, 3
  s_cmp_lg_u32 s{sT2}, 0
  s_cbranch_scc1 L_end
  s_waitcnt vmcnt(0)
  s_memrealtime s[94:95]
  s_waitcnt lgkmcnt(0)
  v_writelane_b32 v{vSTAMP}, s94, 14
  s_getreg_b32 s94, hwreg(HW_REG_XCC_ID)
  s_getreg_b32 s95, hwreg(HW_REG_HW_ID)
  v_writelane_b32 v{vSTAMP}, s94, 15
  v_writelane_b32 v{vSTAMP}, s95, 16
  v_lshlrev_b32 v{vT[0]}, 2, v{vLANE}
  DBGCODE
  s_lshl_b32 s{sT2}, s2, 9
  s_lshl_b32 s{sT3}, s{sROLE}, 8
  s_add_u32 s{sT2}, s{sT2}, s{sT3}
  s_add_u32 s{sT2}, s{sT2}, {WS_DBG}
  buffer_store_dword v{vSTAMP}, v{vT[0]}, {srd(SWS)}, s{sT2} offen
""")
a("L_end:\n  s_endpgm")
for i_, l_ in enumerate(a.lines):
    if 'DBGCODE' in l_:
        a.lines[i_] = (f"""  s_cmp_lg_u32 s{sROLE}, 0
  s_cbranch_scc1 L_nodbg
  v_not_b32 v{vT[1]}, v{vSTAMP}
  v_cmp_eq_u32 vcc, 0, v{vLANE}
  s_nop 1
  v_cndmask_b32 v{vT[1]}, v{vSTAMP}, v{vT[1]}, vcc
  v_add_u32 v{vT[2]}, 8, v{vT[0]}
  s_mov_b32 exec_lo, 0x7fff
  s_mov_b32 exec_hi, 0
  buffer_atomic_umax v{vT[1]}, v{vT[2]}, {srd(SDBG)}, 0 offen
  s_mov_b64 exec, -1
L_nodbg:""" if opt('dbg', 0) else "")

hdr = open('cdna_kernels/' + NAME + '.s.ref').read().split('; Override launch')[0]
out = kernel_file(a.text(), "grid=(256,1,1) block=(512,1,1) lds=163840", 256, hdr_comment=hdr)
outp = [x for x in sys.argv[1:] if not x.startswith('--') and not x.startswith('o:')]
open(outp[0] if outp else 'k.s', 'w').write(out)
```

```python
import sys
from asmlib import *

STAMPS = '--stamps' in sys.argv
OPT = dict(x[2:].split('=') for x in sys.argv if x.startswith('o:'))
def opt(k, d): return type(d)(OPT.get(k, d))
NB0 = opt('nb0', 3)
PP = opt('pp', 1)

XSL = 16384; NXS = 3
WSL = 16384; NWS = 6; W0L = NXS * XSL
assert W0L + NWS * WSL <= 156672
KST = 4608
TAB = 34 * KST
T2 = TAB
GW = TAB + 3840
ZR = GW + 1152
CNT = ZR + 1408
PF = 0; HX = 0
VF = 135680
wq_addr = [65536 + 4608 * i for i in range(14)] + [49152 + 4608 * i for i in range(3)] + [41472]
def wq_time(i):
    lo, hi = wq_addr[i], wq_addr[i] + 4608
    if lo < 65536: return 18
    if opt('wqlate', 1): return 17
    return 12 + (hi - 1 - 49152) // 16384
PST = 0
KVT = PST
PQ = 81920
OST = PQ
EPI = 8192
HU = 2304
regions = [(0, 6400, 'Z'), (6400, 40960, 'B'), (40960, 81920, 'A'), (81920, 102400, 'Z'),
           (102400, 135680, 'A'), (135680, 156160, 'B'), (156160, 156672, 'A'), (156672, 161664, 'Z')]
units = []
for u in range(161664 // HU):
    lo, hi = u * HU, (u + 1) * HU
    units.append((max(t for a_, b_, t in regions if a_ < hi and lo < b_), lo))
units.sort()
need_order = [(b * 18 + ks, hh) for ks in range(18) for b in range(2) for hh in range(2) if b * 18 + ks != 35]
uA = [lo for t, lo in units if t == 'A']; uB = [lo for t, lo in units if t == 'B']; uZ = [lo for t, lo in units if t == 'Z']
save_u = [uB.pop(), uB.pop()]
uZ += save_u
wo_addr = {(35, 0): save_u[0], (35, 1): save_u[1]}
grp = {'A': [], 'B': [(35, 0), (35, 1)], 'Z': []}
it_ = iter(need_order)
for t, lst in ((('B', uB), ('A', uA), ('Z', uZ)) if opt('kwo', 1) else (('A', uA), ('B', uB), ('Z', uZ))):
    for lo in lst:
        x_ = next(it_, None)
        if x_ is None: break
        wo_addr[x_] = lo; grp[t].append(x_)
assert next(it_, None) is None, "wo does not fit"
if opt('wolate', 0) == 3:
    grp['Z'] = grp['A'] + grp['Z']; grp['A'] = []
if opt('wolate', 0) in (1, 2):
    grp['Z'] = grp['B'][2:] + grp['Z']; grp['B'] = grp['B'][:2]
if opt('wolate', 0) == 2:
    grp['Z'] = grp['A'] + grp['Z']; grp['A'] = []
C1, CPF, CKV, CPS, CKD, CWR, CK4, CO, CE, CG = 0, 4, 8, 12, 16, 20, 24, 32, 36, 40
CWA, CWD = 64, 128

OSTR = 20480
WS_O = 4 << 20; WS_GATE = 10 << 20; WS_DBG = 16 << 20
WS_F1 = 11 << 20; WS_F2 = 12 << 20; WS_F4 = 13 << 20; WS_WOC = 14 << 20
sNON = 80
vNON = 12
BIG = 0x7FFF0000

SX, SW, SWS, SWOA, SWOB, SOUT, SDBG, SPHI, SGATE = 4, 8, 12, 16, 20, 24, 28, 32, 36
def srd(s): return f"s[{s}:{s+3}]"
sT, sG, sB, sHQ, sWV, sTG, sROLE, sK, sT0, sT1, sT2, sT3 = 40, 41, 42, 43, 44, 45, 46, 47, 48, 49, 50, 51
sMX, sMWA, sMQ2, sMQ = 52, 53, 54, 55
sROT, sTB, sCB, sRETRY = 56, 57, 58, 59
sL = 60
sPA = 64
sWOC = 66; sMASK = 88; sPEND = 90; sT4, sT5 = 91, 92; sTILE = 93
sPB = 96; sH144 = 97; sPW = 98; sTH = 99; sM2 = 100

vLANE, vN, vG = 1, 2, 3
vT = list(range(4, 16))
vXOFF, vWA, vWB, vWQ, vWO = 16, 17, 18, 19, 20
vRA = [21, 22, 23, 24, 25]
vRX = [26, 27]
vOST = [28, 29, 30]
vSTAMP = 31
vXOFF2 = 15
XB, ACC, RING, NRING = 32, 64, 204, 5
QX0, QACC, QRING = 32, 176, 216
KC = 224
cPS = [KC + i for i in range(3)]
cAF, cB01, cB2 = KC + 3, KC + 4, KC + 5
cGQ = [KC + 8, KC + 9, KC + 10]; cLQ = [KC + 16, KC + 17, KC + 18, KC + 19]
cSA, cSB = KC + 14, KC + 15
cSEL = [KC + 16, KC + 20]
cA2, cKV, cL16, cPFW, cW2 = KC + 24, KC + 25, KC + 26, KC + 27, KC + 28

a = Asm()
def stamp(idx):
    if not STAMPS: return
    a(f"s_memrealtime s[94:95]\ns_waitcnt lgkmcnt(0)\nv_writelane_b32 v{vSTAMP}, s94, {idx}")
def v(i, n=1): return f"v{i}" if n == 1 else f"v[{i}:{i+n-1}]"
class VM:
    def __init__(self, ops=()): self.ops = list(ops)
    def add(self, tag, n=1): self.ops += [tag] * n
    def wait_for(self, tag):
        idx = max(i for i, t in enumerate(self.ops) if t == tag)
        return min(63, len(self.ops) - 1 - idx)
vm = VM()
def interleave(main, fill, per=1):
    fill = list(fill)
    for m in main:
        a(m)
        for _ in range(per):
            if fill: a(fill.pop(0))
    for f in fill: a(f)
nl = [0]
def arrive(c, t0=vT[0], t1=vT[1]):
    a(f"""
  v_mov_b32 v{t0}, {CNT + c}
  v_mov_b32 v{t1}, 1
  s_mov_b64 exec, 1
  ds_add_u32 v{t0}, v{t1}
  s_mov_b64 exec, -1""")
HI = [0]
def cwait(c, n, t0=vT[0], t1=vT[1]):
    _cwait(c, n, t0, t1)
    if HI[0]: a(f"s_setprio {HI[0]}")
def _cwait(c, n, t0, t1):
    nl[0] += 1; L = f"L_cw{nl[0]}"
    a(f"""
  v_mov_b32 v{t0}, {CNT + c}
  s_mov_b32 s{sRETRY}, 0
{L}:
  ds_read_b32 v{t1}, v{t0}
  s_waitcnt lgkmcnt(0)
  v_readfirstlane_b32 s{sT2}, v{t1}
  s_add_u32 s{sRETRY}, s{sRETRY}, 1
  s_cmp_gt_u32 s{sRETRY}, 2000000
  s_cbranch_scc1 {L}d
  s_cmp_ge_u32 s{sT2}, {n}
  s_cbranch_scc1 {L}d
  s_setprio 0
  s_sleep 1
  s_branch {L}
{L}d:""")

a(f"""
  s_cmp_ge_u32 s2, 256
  s_cbranch_scc1 L_end
  s_load_dwordx16 s[64:79], s[0:1], 0
  s_load_dwordx8 s[80:87], s[0:1], 64
  s_getpc_b64 s[94:95]
L_pc:
  v_and_b32 v{vLANE}, 63, v0
  v_lshrrev_b32 v{vT[0]}, 6, v0
  s_lshr_b32 s{sT1}, s2, 3
  s_and_b32 s{sT0}, s2, 7
  v_readfirstlane_b32 s{sPW}, v{vT[0]}
  s_cmp_ge_u32 s{sPW}, 2
  s_cbranch_scc1 L_nopf
  s_lshl_b32 s{sT2}, s{sPW}, 5
  s_add_u32 s{sT2}, s{sT2}, s{sT1}
  s_lshl_b32 s{sT2}, s{sT2}, 10
  v_lshlrev_b32 v{vT[1]}, 4, v{vLANE}
  v_add_u32 v{vT[1]}, s{sT2}, v{vT[1]}
  v_min_u32 v{vT[1]}, L_end-L_pc, v{vT[1]}
  global_load_dword v{63}, v{vT[1]}, s[94:95]
L_nopf:
""")
if STAMPS: a(f"v_mov_b32 v{vSTAMP}, 0")
stamp(0)
a(f"""
  s_and_b32 s{sT}, s{sT0}, 1
  s_lshl_b32 s{sT}, s{sT}, 3
  s_and_b32 s{sT2}, s{sT1}, 7
  s_add_u32 s{sT}, s{sT}, s{sT2}
  s_lshr_b32 s{sG}, s{sT0}, 1
  s_lshl_b32 s{sG}, s{sG}, 2
  s_lshr_b32 s{sT3}, s{sT1}, 3
  s_add_u32 s{sG}, s{sG}, s{sT3}
  s_lshr_b32 s{sB}, s{sG}, 3
  s_and_b32 s{sHQ}, s{sG}, 7
  s_mul_i32 s{sT2}, s{sT2}, {0 if opt('rot', 1) == 3 else 9}
  s_lshr_b32 s{sT2}, s{sT2}, 3
  s_mul_i32 s{sT3}, s{sT3}, {0 if opt('rot', 1) == 2 else (4 if opt('rot', 1) == 4 else 9)}
  s_lshr_b32 s{sT3}, s{sT3}, 2
  s_add_u32 s{sROT}, s{sT2}, s{sT3}
  XR
  s_sub_u32 s{sT2}, s{sROT}, 9
  s_cmp_ge_u32 s{sROT}, 9
  s_cselect_b32 s{sROT}, s{sT2}, s{sROT}
  XW
  s_lshl_b32 s{sROT}, s{sROT}, 1
  {"s_mov_b32 s%d, 0" % sROT if opt('rot', 1) == 0 else ""}
  s_and_b32 s{sTB}, s{sT1}, 3
  s_lshl_b32 s{sT2}, s{sT0}, 2
  s_add_u32 s{sTB}, s{sTB}, s{sT2}
  s_lshr_b32 s{sCB}, s{sT1}, 2
  s_lshl_b32 s{sT2}, s{sPW}, 2
  s_lshr_b32 s{sWV}, 0x76543120, s{sT2}
  s_and_b32 s{sWV}, s{sWV}, 7
  s_and_b32 s{sTG}, s{sWV}, 3
  s_lshr_b32 s{sROLE}, s{sWV}, 2
  s_and_b32 s{sTH}, s{sPW}, 1
  v_and_b32 v{vN}, 15, v{vLANE}
  v_lshrrev_b32 v{vG}, 4, v{vLANE}
  v_mov_b32 v15, 0
  v_mov_b32 v16, 0
  v_mov_b32 v21, 0
  v_mov_b32 v22, 0
  v_mov_b32 v152, 0x7fff0000
  v_mov_b32 v153, 0x7fff0000
  v_mov_b32 v{cGQ[0]}, 0
  v_mov_b32 v{cGQ[1]}, 0
  v_mov_b32 v{cGQ[2]}, 0
  v_mov_b32 v{cSA}, 0
  s_mul_i32 s{sH144}, s{sHQ}, 144
  s_mov_b32 s{SX+2}, {2048*1152}
  s_mov_b32 s{SX+3}, 0x00020000
  s_mov_b32 s{SW+2}, {576*3456}
  s_mov_b32 s{SW+3}, 0x00020000
  s_mov_b32 s{SPHI+2}, {32*648}
  s_mov_b32 s{SPHI+3}, 0x00020000
  s_mov_b32 s{SWS+2}, 0x10000000
  s_mov_b32 s{SWS+3}, 0x00020000
  s_mov_b32 s{SWOA+2}, {576*1152}
  s_mov_b32 s{SWOA+3}, 0x00020000
  s_mov_b32 s{SWOB+2}, {576*1152}
  s_mov_b32 s{SWOB+3}, 0x00020000
  s_mov_b32 s{SOUT+2}, {2048*1152}
  s_mov_b32 s{SOUT+3}, 0x00020000
  s_mov_b32 s{SDBG+2}, 256
  s_mov_b32 s{SDBG+3}, 0x00020000
  s_mov_b32 s{SGATE+2}, 1152
  s_mov_b32 s{SGATE+3}, 0x00020000
""")
def srd_bases():
    a(f"""
  s_cmp_eq_u32 s{sB}, 1
  s_waitcnt lgkmcnt(0)
  s_mov_b32 s{SX}, s64
  s_mov_b32 s{SX+1}, s65
  s_cselect_b32 s{SW}, s74, s66
  s_cselect_b32 s{SW+1}, s75, s67
  s_cselect_b32 s{SPHI}, s76, s68
  s_cselect_b32 s{SPHI+1}, s77, s69
  s_mov_b32 s{SGATE}, s80
  s_mov_b32 s{SGATE+1}, s81
""")
def srd_rest():
    a(f"""
  s_mov_b32 s{SWS}, s86
  s_mov_b32 s{SWS+1}, s87
  s_mov_b32 s{SWOA}, s70
  s_mov_b32 s{SWOA+1}, s71
  s_mov_b32 s{SWOB}, s78
  s_mov_b32 s{SWOB+1}, s79
  s_mov_b32 s{SOUT}, s82
  s_mov_b32 s{SOUT+1}, s83
  s_mov_b32 s{SDBG}, s84
  s_mov_b32 s{SDBG+1}, s85
""")
def dma_off(ci, nper):
    magic = {30: (0x8889, 20), 9: (0xE38F, 19)}[nper]
    t = vT
    a(f"""
  s_mov_b32 s{sT3}, {magic[0]}
  v_mul_u32_u24 v{t[3]}, s{sT3}, v{ci}
  v_lshrrev_b32 v{t[3]}, {magic[1]}, v{t[3]}
  v_mul_u32_u24 v{t[4]}, {nper}, v{t[3]}
  v_sub_u32 v{t[4]}, v{ci}, v{t[4]}
""")
    if nper == 30:
        a(f"v_and_b32 v{t[5]}, 1, v{t[3]}\nv_xor_b32 v{t[4]}, v{t[4]}, v{t[5]}")
    a(f"""
  v_bfe_u32 v{t[5]}, v{t[3]}, 2, 2
  v_lshlrev_b32 v{t[5]}, 3, v{t[5]}
  v_lshrrev_b32 v{t[6]}, 4, v{t[3]}
  v_lshl_add_u32 v{t[5]}, v{t[6]}, 2, v{t[5]}
  v_and_b32 v{t[6]}, 3, v{t[3]}
  v_add_u32 v{t[5]}, v{t[5]}, v{t[6]}
""")
    return t[5], t[4]
def w_offs():
    a(f"""
  v_lshrrev_b32 v{vT[3]}, 5, v{vLANE}
  s_lshl_b32 s{sT2}, s{sT4}, 1
  v_add_u32 v{vT[3]}, s{sT2}, v{vT[3]}          ; rho&7
  v_and_b32 v{vT[4]}, 1, v{vT[3]}
  v_lshl_add_u32 v{vT[4]}, v{vT[3]}, 1, v{vT[4]}  ; swz16
  v_and_b32 v{vT[5]}, 31, v{vLANE}
  v_xor_b32 v{vT[4]}, v{vT[4]}, v{vT[5]}        ; unit
  v_lshrrev_b32 v{vT[8]}, 4, v{vT[4]}           ; seg
  v_and_b32 v{vT[9]}, 15, v{vT[4]}              ; j16
  v_lshrrev_b32 v{vT[6]}, 2, v{vT[3]}
  v_lshlrev_b32 v{vT[6]}, 3, v{vT[6]}
  v_and_b32 v{vT[7]}, 3, v{vT[3]}
  v_add_u32 v{vT[6]}, v{vT[6]}, v{vT[7]}        ; k for j=0
  s_movk_i32 s{sT3}, 3456
  v_mul_u32_u24 v{vT[5]}, s{sT3}, v{vT[6]}
  v_lshl_add_u32 v{vT[5]}, v{vT[9]}, 4, v{vT[5]}
  v_add_u32 v{vT[5]}, s{sH144}, v{vT[5]}
  s_movk_i32 s{sT3}, 1152
  v_mad_u32_u24 v{vT[6]}, v{vT[8]}, s{sT3}, v{vT[5]}
  v_add_u32 v{vT[6]}, 1152, v{vT[6]}            ; k / v
  s_mov_b32 s{sT3}, {32*3456}
  v_mad_u32_u24 v{vT[5]}, v{vT[8]}, s{sT3}, v{vT[5]}
  v_cmp_lt_u32 vcc, 8, v{vT[9]}
  v_mov_b32 v{vT[8]}, {BIG}
  v_cndmask_b32 v{vWL[0]}, v{vT[6]}, v{vT[8]}, vcc
  v_cndmask_b32 v{vWL[1]}, v{vT[5]}, v{vT[8]}, vcc
""")
sK2 = 3
vWL = [21, 22, 23, 24]
def x_items(pr):
    sl = (pr % NXS) * XSL
    return f"""
  s_lshl_b32 s{sT2}, s{sK}, 6
  s_add_u32 s{sT3}, s{sT2}, {16*1152}
  s_add_u32 m0, s{sMX}, {sl}
  buffer_load_dwordx4 v{vXOFF}, {srd(SX)}, s{sT2} offen lds
  s_add_u32 m0, s{sMX}, {sl + 1024}
  buffer_load_dwordx4 v{vXOFF2}, {srd(SX)}, s{sT2} offen lds
  s_add_u32 m0, s{sMX}, {sl + 2048}
  buffer_load_dwordx4 v{vXOFF}, {srd(SX)}, s{sT3} offen lds
  s_add_u32 m0, s{sMX}, {sl + 3072}
  buffer_load_dwordx4 v{vXOFF2}, {srd(SX)}, s{sT3} offen lds
  s_add_u32 s{sK}, s{sK}, 2
  s_cmp_eq_u32 s{sK}, 18
  s_cselect_b32 s{sK}, 0, s{sK}"""
def w_items(ks):
    sl = ((ks + 1) % NWS) * WSL
    o = f"\n  s_mul_i32 s{sT3}, s{sK2}, {32*3456}"
    for j, dk in enumerate((0, 16, 4, 20)):
        if j: o += f"\n  s_add_u32 s{sT2}, s{sT3}, {dk*3456}"
        o += f"""
  s_add_u32 m0, s{sMWA}, {sl + 4096*j}
  buffer_load_dwordx4 v{vWL[0]}, {srd(SW)}, s{sT2 if j else sT3} offen lds"""
    return o + f"""
  s_add_u32 s{sK2}, s{sK2}, 1
  s_cmp_eq_u32 s{sK2}, 18
  s_cselect_b32 s{sK2}, 0, s{sK2}"""
def issue_q(i):
    a(f"""
  s_mul_i32 s{sT3}, s{sK2}, {32*3456}
  s_add_u32 s{sT2}, s{sT3}, {4*3456}
  s_add_u32 m0, s{sMQ}, {wq_addr[i]}
  s_mov_b32 exec_hi, 0xf
  buffer_load_dwordx4 v{vWQ}, {srd(SW)}, s{sT3} offen lds
  s_add_u32 m0, s{sMQ}, {wq_addr[i] + 2304}
  buffer_load_dwordx4 v{vWQ}, {srd(SW)}, s{sT2} offen lds
  s_mov_b32 exec_hi, -1
  s_add_u32 s{sK2}, s{sK2}, 1
  s_cmp_eq_u32 s{sK2}, 18
  s_cselect_b32 s{sK2}, 0, s{sK2}""")
    vm.add(('q', i), 2)
def issue_x(pr): a(x_items(pr)); vm.add(('x', pr), 4)
def issue_w(ks): a(w_items(ks)); vm.add(('w', ks), 4)
SM = 32
a(f"s_cmp_lt_u32 s{sPW}, 4\ns_cbranch_scc1 L_pc0")
a(f"""
  s_and_b32 s{sT4}, s{sPW}, 3
  v_lshrrev_b32 v{vT[0]}, 3, v{vLANE}
  v_and_b32 v{vT[2]}, 7, v{vLANE}
  v_xor_b32 v{vT[2]}, v{vT[2]}, v{vG}
  s_lshl_b32 s{sT2}, s{sT}, 7
  s_lshl_b32 s{sT3}, s{sT4}, 5
  s_add_u32 s{sT2}, s{sT2}, s{sT3}
  v_add_u32 v{vT[0]}, s{sT2}, v{vT[0]}
  s_movk_i32 s{sT3}, 1152
  v_mul_lo_u32 v{vT[0]}, v{vT[0]}, s{sT3}
  v_lshl_add_u32 v{vXOFF}, v{vT[2]}, 4, v{vT[0]}
  v_xor_b32 v{vT[2]}, 4, v{vT[2]}
  v_lshl_add_u32 v{vXOFF2}, v{vT[2]}, 4, v{vT[0]}
  v_add_u32 v{vXOFF2}, {8*1152}, v{vXOFF2}
  s_lshl_b32 s{sMX}, s{sT4}, 12
  s_lshl_b32 s{sMWA}, s{sT4}, 10
  s_add_u32 s{sMWA}, s{sMWA}, {W0L}
  s_mov_b32 s{sK}, s{sROT}
  s_mov_b32 s{sK2}, s{sROT}
""")
w_offs()
srd_bases()
stamp(1)
issue_x(0); issue_w(0); issue_w(1)
NI0 = opt('ni0', 0)
if NI0: issue_x(1); issue_w(2); issue_w(3)
stamp(2)
a("s_branch L_pc1")
a("L_pc0:")
srd_bases()
srd_rest()
stamp(1)
if opt('l2pf', 0):
    a(f"""
  v_lshrrev_b32 v{vT[0]}, 1, v{vLANE}
  s_movk_i32 s{sT3}, 3456
  v_mul_u32_u24 v{vT[0]}, s{sT3}, v{vT[0]}
  v_and_b32 v{vT[1]}, 1, v{vLANE}
  v_mul_u32_u24 v{vT[1]}, 140, v{vT[1]}
  v_add3_u32 v{vT[0]}, v{vT[0]}, v{vT[1]}, s{sH144}
  s_lshl_b32 s{sT2}, s{sT}, 7
  s_lshl_b32 s{sT3}, s{sTH}, 6
  s_add_u32 s{sT2}, s{sT2}, s{sT3}
  v_add_u32 v{vT[1]}, s{sT2}, v{vLANE}
  s_movk_i32 s{sT3}, 1152
  v_mul_lo_u32 v{vT[1]}, v{vT[1]}, s{sT3}
  s_lshr_b32 s{sT2}, s{sPW}, 1
  s_lshl_b32 s{sT2}, s{sT2}, 1
  s_add_u32 s{sT2}, s{sT2}, s{sROT}
  s_add_u32 s{sT2}, s{sT2}, 2
  s_sub_u32 s{sT3}, s{sT2}, 18
  s_cmp_ge_u32 s{sT2}, 18
  s_cselect_b32 s{sT2}, s{sT3}, s{sT2}
  s_lshl_b32 s{sT2}, s{sT2}, 6
  buffer_load_dword v{50}, v{vT[1]}, {srd(SX)}, s{sT2} offen
""")
    for rep in range(opt('l2pf', 0)):
        a(f"""
  s_add_u32 s{sT2}, s{sROT}, s{sPW}
  s_add_u32 s{sT2}, s{sT2}, {2 + 4*rep}
  s_sub_u32 s{sT3}, s{sT2}, 18
  s_cmp_ge_u32 s{sT2}, 18
  s_cselect_b32 s{sT2}, s{sT3}, s{sT2}
  s_mul_i32 s{sT2}, s{sT2}, {32*3456}
  buffer_load_dword v{51+3*rep}, v{vT[0]}, {srd(SW)}, s{sT2} offen
  buffer_load_dword v{52+3*rep}, v{vT[0]}, {srd(SW)}, s{sT2} offen offset:1152
  buffer_load_dword v{53+3*rep}, v{vT[0]}, {srd(SW)}, s{sT2} offen offset:2304
""")
a(f"s_mul_i32 s{sT2}, s{sHQ}, {4*648}\nv_lshlrev_b32 v{vT[0]}, 1, v0")
for j in range(6): a(f"buffer_load_ushort v{SM+j}, v{vT[0]}, {srd(SPHI)}, s{sT2} offen offset:{512*j}")
a(f"v_lshlrev_b32 v{vT[0]}, 3, v0\nbuffer_load_dwordx2 v[{SM+6}:{SM+7}], v{vT[0]}, {srd(SGATE)}, 0 offen")
CW = 144
a(f"""
  s_lshr_b32 s{sT0}, s2, 7            ; b
  s_bfe_u32 s{sT1}, s2, 0x30004       ; cb
  s_and_b32 s{sT2}, s2, 15            ; r
  s_mul_i32 s{sT2}, s{sT2}, 36
  s_mul_i32 s{sT4}, s{sT1}, 144
  s_mul_i32 s{sT5}, s{sT1}, 165888
  s_mul_i32 s{sT3}, s{sT0}, 4608
  s_add_u32 s{sT5}, s{sT5}, s{sT3}
  s_add_u32 s{sT5}, s{sT5}, {WS_WOC}
""")
for j in range(2):
    a(f"""
  v_add_u32 v{vT[0]}, {256*j}, v0
  v_min_u32 v{vT[0]}, 323, v{vT[0]}
  s_mov_b32 s{sT3}, 0xE38F
  v_mul_u32_u24 v{vT[1]}, s{sT3}, v{vT[0]}
  v_lshrrev_b32 v{vT[1]}, 19, v{vT[1]}          ; row
  v_mul_u32_u24 v{vT[2]}, 9, v{vT[1]}
  v_sub_u32 v{vT[2]}, v{vT[0]}, v{vT[2]}        ; u
  v_add_u32 v{vT[1]}, s{sT2}, v{vT[1]}          ; k
  s_movk_i32 s{sT3}, 1152
  v_mul_u32_u24 v{vT[3]}, s{sT3}, v{vT[1]}
  v_lshl_add_u32 v{vT[3]}, v{vT[2]}, 4, v{vT[3]}
  s_cmp_eq_u32 s{sT0}, 1
  s_cbranch_scc1 L_cwB{j}
  buffer_load_dwordx4 v[{CW+4*j}:{CW+4*j+3}], v{vT[3]}, {srd(SWOA)}, s{sT4} offen
  s_branch L_cwD{j}
L_cwB{j}:
  buffer_load_dwordx4 v[{CW+4*j}:{CW+4*j+3}], v{vT[3]}, {srd(SWOB)}, s{sT4} offen
L_cwD{j}:
  v_lshrrev_b32 v{vT[4]}, 5, v{vT[1]}
  s_movk_i32 s{sT3}, 9216
  v_mul_u32_u24 v{vT[4]}, s{sT3}, v{vT[4]}
  v_bfe_u32 v{vT[5]}, v{vT[1]}, 2, 1
  s_movk_i32 s{sT3}, 2304
  v_mad_u32_u24 v{vT[4]}, v{vT[5]}, s{sT3}, v{vT[4]}
  v_bfe_u32 v{vT[5]}, v{vT[1]}, 3, 2
  v_and_b32 v{vT[6]}, 3, v{vT[1]}
  v_lshl_add_u32 v{vT[5]}, v{vT[5]}, 2, v{vT[6]}
  s_movk_i32 s{sT3}, 144
  v_mad_u32_u24 v{vT[4]}, v{vT[5]}, s{sT3}, v{vT[4]}
  v_lshl_add_u32 v{vT[4]}, v{vT[2]}, 4, v{vT[4]}
  v_add_u32 v{CW+8+j}, s{sT5}, v{vT[4]}
""")
if opt('tw', 0):
    TW = [p * (2 << 20) + 12288 for p in range(2)]
    TW += [WS_O + t * OSTR + 19456 for t in (0, 103, 206, 255)]
    TW += [WS_GATE + 65536, WS_F2 + (1 << 19), WS_WOC + (1 << 20) + (400 << 10)]
    a(f"v_mov_b32 v{vT[0]}, {TW[0]}")
    for i_, ad in enumerate(TW[1:]):
        a(f"v_mov_b32 v{vT[1]}, {ad}\nv_cmp_eq_u32 vcc, {i_+1}, v{vLANE}\nv_cndmask_b32 v{vT[0]}, v{vT[0]}, v{vT[1]}, vcc")
    a(f"buffer_load_dword v{154}, v{vT[0]}, {srd(SWS)}, 0 offen")
    a(f"v_lshlrev_b32 v{vT[0]}, 21, v{vLANE}\nbuffer_load_dword v{155}, v{vT[0]}, {srd(SOUT)}, 0 offen")
for j in range(6):
    a(f"""
  v_add_u32 v{vT[5]}, {256*j}, v0
  s_mov_b32 s{sT3}, 0xCA46
  v_mul_u32_u24 v{vT[6]}, s{sT3}, v{vT[5]}
  v_lshrrev_b32 v{vT[6]}, 24, v{vT[6]}
  s_movk_i32 s{sT3}, 324
  v_mul_u32_u24 v{vT[7]}, s{sT3}, v{vT[6]}
  v_sub_u32 v{vT[7]}, v{vT[5]}, v{vT[7]}
  s_mov_b32 s{sT3}, 0xE38F
  v_mul_u32_u24 v{vT[8]}, s{sT3}, v{vT[7]}
  v_lshrrev_b32 v{vT[8]}, 20, v{vT[8]}
  v_mul_u32_u24 v{vT[9]}, 18, v{vT[8]}
  v_sub_u32 v{vT[9]}, v{vT[7]}, v{vT[9]}
  v_mul_u32_u24 v{vT[10]}, 20, v{vT[6]}
  v_add_u32 v{vT[10]}, v{vT[10]}, v{vT[9]}
  v_mul_u32_u24 v{vT[10]}, 48, v{vT[10]}
  v_and_b32 v{vT[6]}, 1, v{vT[6]}
  v_lshl_add_u32 v{vT[8]}, v{vT[6]}, 1, v{vT[8]}
  v_lshl_add_u32 v{vT[10]}, v{vT[8]}, 1, v{vT[10]}
  v_add_u32 v{SM+8+j}, {T2}, v{vT[10]}
""")
a(f"""
  v_mov_b32 v{vT[0]}, 0
  v_mov_b32 v{vT[1]}, 0
  v_mov_b32 v{vT[2]}, 0
  v_mov_b32 v{vT[3]}, 0
  v_lshlrev_b32 v{vT[4]}, 4, v0
  v_add_u32 v{vT[4]}, {T2}, v{vT[4]}
  v_cmp_gt_u32 vcc, 240, v0
  s_and_saveexec_b64 s[94:95], vcc
  ds_write_b128 v{vT[4]}, v[{vT[0]}:{vT[3]}]
  v_cmp_gt_u32 vcc, 100, v0
  s_and_b64 exec, exec, vcc
  ds_write_b128 v{vT[4]}, v[{vT[0]}:{vT[3]}] offset:{ZR - T2}
  s_mov_b64 exec, -1
  v_mov_b32 v{SM+14}, v0
""")
stamp(2)
a("L_pc1:")
srd_rest()
a(f"""
  s_waitcnt lgkmcnt(0)
  s_barrier
  s_lshl_b32 s{sT2}, s{sWV}, 6
  v_add_u32 v0, s{sT2}, v{vLANE}
  s_or_b32 s{sT2}, s2, s{sPW}
  s_cmp_lg_u32 s{sT2}, 0
  s_cbranch_scc1 L_nononce
  s_memrealtime s[94:95]
  s_waitcnt lgkmcnt(0)
  s_or_b32 s94, s94, 1
  s_xor_b32 s95, s95, 0x5bd1e995
  v_mov_b32 v{vT[6]}, s94
  v_mov_b32 v{vT[7]}, s95
  v_mov_b32 v{vT[5]}, 0
  s_mov_b64 exec, 1
  buffer_store_dwordx2 v[{vT[6]}:{vT[7]}], v{vT[5]}, {srd(SDBG)}, 0 offen sc1
  s_mov_b64 exec, -1
L_nononce:
  s_lshl_b32 s{sTILE}, s{sT}, 3
  s_lshl_b32 s{sT2}, s{sTG}, 1
  s_add_u32 s{sTILE}, s{sTILE}, s{sT2}
  s_add_u32 s{sTILE}, s{sTILE}, s{sROLE}
  s_lshl_b32 s{sT2}, s{sB}, 7
  s_add_u32 s{sT2}, s{sT2}, s{sTILE}
  s_mul_i32 s{sT2}, s{sT2}, {OSTR}
  s_add_u32 s{sT2}, s{sT2}, {WS_O}
  s_mul_i32 s{sT3}, s{sHQ}, 9
""")
for j in range(3):
    a(f"""
  v_add_u32 v{vT[0]}, {4*j}, v{vG}
  v_add_u32 v{vT[1]}, s{sT3}, v{vT[0]}
  v_lshlrev_b32 v{vT[1]}, 8, v{vT[1]}
  v_lshl_add_u32 v{vT[1]}, v{vN}, 4, v{vT[1]}
  v_add_u32 v{vOST[j]}, s{sT2}, v{vT[1]}
""")
a(f"""
  v_cmp_lt_u32 vcc, 0, v{vG}
  v_mov_b32 v{vT[0]}, {BIG}
  v_cndmask_b32 v{vOST[2]}, v{vOST[2]}, v{vT[0]}, vcc
  s_lshl_b32 s{sPB}, s{sG}, 4
  s_add_u32 s{sPB}, s{sPB}, s{sT}
  s_lshl_b32 s{sPB}, s{sPB}, 14
""")
a(f"s_mul_i32 s{sT2}, s{sTG}, 36\nv_add_u32 v{vT[7]}, s{sT2}, v{vLANE}\nv_min_u32 v{vT[7]}, 143, v{vT[7]}")
k, u = dma_off(vT[7], 9)
a(f"""
  s_movk_i32 s{sT3}, 3456
  v_mul_u32_u24 v{vT[8]}, s{sT3}, v{k}
  v_lshl_add_u32 v{vT[8]}, v{u}, 4, v{vT[8]}
  v_add_u32 v{vWQ}, s{sH144}, v{vT[8]}
  s_movk_i32 s{sT3}, 1152
  v_mul_u32_u24 v{vT[8]}, s{sT3}, v{k}
  v_lshl_add_u32 v{vT[8]}, v{u}, 4, v{vT[8]}
  s_mul_i32 s{sT3}, s{sCB}, 144
  v_add_u32 v{vWO}, s{sT3}, v{vT[8]}
  s_mul_i32 s{sMQ}, s{sTG}, 576
  s_lshl_b32 s{sMQ2}, s{sTG}, 10
  s_mul_i32 s{sWOC}, s{sCB}, 165888
  s_add_u32 s{sWOC}, s{sWOC}, s{sMQ2}
  s_add_u32 s{sWOC}, s{sWOC}, {WS_WOC}
  s_mov_b32 s{sL}, 0x3fb8aa3b
  s_mov_b32 s{sL+1}, 0x3fb8aa3b
  s_mov_b32 s{sL+2}, 0xbfb8aa3b
  s_mov_b32 s{sL+3}, 0xbfb8aa3b
  s_mov_b32 s{sMASK}, 0x00f0000f
  s_mov_b32 s{sMASK+1}, 0xf0000f00
""")
def table_writes():
    for j in range(5): a(f"ds_write_b16 v{SM+8+j}, v{SM+j}")
    a(f"""
  v_cmp_gt_u32 vcc, {1296-1280}, v{SM+14}
  s_and_saveexec_b64 s[94:95], vcc
  ds_write_b16 v{SM+13}, v{SM+5}
  s_mov_b64 exec, -1
  v_lshlrev_b32 v{vT[5]}, 3, v{SM+14}
  v_add_u32 v{vT[5]}, {GW}, v{vT[5]}
  v_cmp_gt_u32 vcc, 144, v{SM+14}
  s_and_saveexec_b64 s[94:95], vcc
  ds_write_b64 v{vT[5]}, v[{SM+6}:{SM+7}]
  s_mov_b64 exec, -1
""")
EX36 = "s_mov_b32 exec_lo, -1\n  s_mov_b32 exec_hi, 0xf"
def wo_src(kk, hh): return ((kk % 18) * 2 + kk // 18) * 4608 + hh * 2304
def wo_items(lst, v2):
    runs = []
    for x_ in lst:
        sa, da = wo_src(*x_), wo_addr[x_]
        if runs and runs[-1][0] + runs[-1][2] == sa and runs[-1][1] + runs[-1][2] == da: runs[-1][2] += HU
        else: runs.append([sa, da, HU])
    n = 0
    for sa, da, L in runs:
        for o in range(0, L, 4096):
            rem = L - o
            if rem < 4096: a(f"v_cmp_gt_u32 vcc, {rem}, v{v2}\ns_mov_b64 exec, vcc")
            a(f"""
  s_add_u32 s{sT3}, s{sWOC}, {sa + o}
  s_add_u32 m0, s{sMQ2}, {da + o}
  buffer_load_dwordx4 v{cL16}, {srd(SWS)}, s{sT3} offen lds""")
            if rem < 4096: a("s_mov_b64 exec, -1")
            n += 1
    return n
def wo_ready():
    a(f"""
  s_lshl_b32 s{sT3}, s{sCB}, 10
  s_add_u32 s{sT3}, s{sT3}, {WS_F4}
  s_mov_b32 s{sRETRY}, 0
L_wordy:
  buffer_load_dwordx4 v[{vT[8]}:{vT[11]}], v{cL16}, {srd(SWS)}, s{sT3} offen sc1
  s_waitcnt vmcnt(0)
  v_cmp_ne_u32 vcc, s{sNON}, v{vT[8]}
  v_cmp_ne_u32 s[{sM2}:{sM2+1}], s{sNON+1}, v{vT[9]}
  s_or_b64 vcc, vcc, s[{sM2}:{sM2+1}]
  v_cmp_ne_u32 s[{sM2}:{sM2+1}], s{sNON}, v{vT[10]}
  s_or_b64 vcc, vcc, s[{sM2}:{sM2+1}]
  v_cmp_ne_u32 s[{sM2}:{sM2+1}], s{sNON+1}, v{vT[11]}
  s_or_b64 vcc, vcc, s[{sM2}:{sM2+1}]
  s_cbranch_scc0 L_wordyd
  s_add_u32 s{sRETRY}, s{sRETRY}, 1
  s_cmp_lt_u32 s{sRETRY}, 100000
  s_cbranch_scc1 L_wordy
L_wordyd:""")
KOFF8 = [0, 4, 9, 13]
TILEV = [[0,1,2,3],[4,5,6,7],[8,9,10,11],[12,13,14,15],[10,11,16,17]]

NONLD = f"""
  v_mov_b32 v{vT[5]}, 0
  buffer_load_dwordx2 v[{vNON}:{vNON+1}], v{vT[5]}, {srd(SDBG)}, 0 offen sc1"""
def get_nonce():
    nl[0] += 1; L = f"L_non{nl[0]}"
    a(f"""
  v_readfirstlane_b32 s{sNON}, v{vNON}
  v_readfirstlane_b32 s{sNON+1}, v{vNON+1}
  s_mov_b32 s{sRETRY}, 0
  s_cmp_lg_u32 s{sNON}, 0
  s_cbranch_scc1 {L}d
{L}:
  v_mov_b32 v{vT[5]}, 0
  buffer_load_dwordx2 v[{vNON}:{vNON+1}], v{vT[5]}, {srd(SDBG)}, 0 offen sc1
  s_waitcnt vmcnt(0)
  v_readfirstlane_b32 s{sNON}, v{vNON}
  v_readfirstlane_b32 s{sNON+1}, v{vNON+1}
  s_add_u32 s{sRETRY}, s{sRETRY}, 1
  s_cmp_gt_u32 s{sRETRY}, 100000
  s_cbranch_scc1 {L}d
  s_cmp_eq_u32 s{sNON}, 0
  s_cbranch_scc1 {L}
{L}d:""")
def set_flag(soff, nrep):
    a(f"""
  v_mov_b32 v{vT[6]}, s{sNON}
  v_mov_b32 v{vT[7]}, s{sNON+1}
  v_lshlrev_b32 v{vT[5]}, 9, v{vLANE}
  s_waitcnt vmcnt(0)
  s_mov_b64 exec, {(1 << nrep) - 1}
  buffer_store_dwordx2 v[{vT[6]}:{vT[7]}], v{vT[5]}, {srd(SWS)}, s{soff} offen sc1
  s_mov_b64 exec, -1""")
def diag_addr(dst, rows, pitch, base):
    a(f"""
  v_mul_u32_u24 v{dst}, {rows}, v{vG}
  v_and_b32 v{vT[1]}, 3, v{vN}
  v_add_u32 v{dst}, v{dst}, v{vT[1]}
  v_mul_u32_u24 v{dst}, {pitch}, v{dst}
  v_add_u32 v{dst}, {base}, v{dst}
  v_mov_b32 v{vT[1]}, {ZR}
  v_cndmask_b32 v{dst}, v{vT[1]}, v{dst}, s[{sMASK}:{sMASK+1}]
""")
SEQ2 = [(t, c) for t in range(5) for c in range(3)]
def stage2_mfmas(P, af, kb):
    return [f"v_mfma_f32_16x16x32_bf16 {v(P+4*t,4)}, {v(af[j],4)}, {v(kb+4*c,4)}, {v(P+4*t,4) if c > 0 else '0'}" for j, (t, c) in enumerate(SEQ2)]
A2L = [144 + 4 * j for j in range(15)]
KB0, KB1 = 32, 44
P0, EPk, P1 = 64, 84, 104
PH0, PH1 = 124, 204
D0, D1 = 144, 64
def softmax_list(P, EP, ph):
    o = []
    mx, mn, mx2, mn2 = vT[0], vT[2], vT[4], vT[5]
    o += [f"v_max3_f32 v{mx}, v{P}, v{P+1}, v{P+2}", f"v_min3_f32 v{mn}, v{P}, v{P+1}, v{P+2}",
          f"v_max3_f32 v{mx2}, v{P+3}, v{P+4}, v{P+5}", f"v_min3_f32 v{mn2}, v{P+3}, v{P+4}, v{P+5}"]
    for i in range(6, 18, 4):
        o += [f"v_max3_f32 v{mx}, v{mx}, v{P+i}, v{P+i+1}", f"v_min3_f32 v{mn}, v{mn}, v{P+i}, v{P+i+1}",
              f"v_max3_f32 v{mx2}, v{mx2}, v{P+i+2}, v{P+i+3}", f"v_min3_f32 v{mn2}, v{mn2}, v{P+i+2}, v{P+i+3}"]
    o += [f"v_max_f32 v{mx}, v{mx}, v{mx2}", f"v_min_f32 v{mn}, v{mn}, v{mn2}",
          f"v_mul_f32 v{mx}, s{sL+2}, v{mx}", f"v_mul_f32 v{mn}, s{sL}, v{mn}"]
    for i in range(9):
        o += [f"v_pk_fma_f32 {v(EP+2*i,2)}, {v(P+2*i,2)}, s[{sL}:{sL+1}], {v(mx,2)} op_sel_hi:[1,1,0]",
              f"v_pk_fma_f32 {v(P+2*i,2)}, {v(P+2*i,2)}, s[{sL+2}:{sL+3}], {v(mn,2)} op_sel_hi:[1,1,0]"]
    for i in range(18): o += [f"v_exp_f32 v{EP+i}, v{EP+i}", f"v_exp_f32 v{P+i}, v{P+i}"]
    sp, sm = vT[4], vT[6]
    o += [f"v_pk_add_f32 {v(sp,2)}, {v(EP,2)}, {v(EP+2,2)}", f"v_pk_add_f32 {v(sm,2)}, {v(P,2)}, {v(P+2,2)}"]
    for i in range(2, 9):
        o += [f"v_pk_add_f32 {v(sp,2)}, {v(sp,2)}, {v(EP+2*i,2)}", f"v_pk_add_f32 {v(sm,2)}, {v(sm,2)}, {v(P+2*i,2)}"]
    o += [f"v_add_f32 v{sp}, v{sp}, v{sp+1}", f"v_add_f32 v{sm}, v{sm}, v{sm+1}", f"v_rcp_f32 v{sp}, v{sp}", f"v_rcp_f32 v{sm}, v{sm}"]
    for i in range(9):
        o += [f"v_pk_mul_f32 {v(EP+2*i,2)}, {v(EP+2*i,2)}, {v(sp,2)} op_sel_hi:[1,0]",
              f"v_pk_mul_f32 {v(P+2*i,2)}, {v(P+2*i,2)}, {v(sm,2)} op_sel_hi:[1,0]"]
    for i in range(9): o.append(f"v_cvt_pk_bf16_f32 v{ph+i}, v{EP+2*i}, v{EP+2*i+1}")
    for i in range(9): o.append(f"v_cvt_pk_bf16_f32 v{ph+9+i}, v{P+2*i}, v{P+2*i+1}")
    o += [f"v_mov_b32 v{ph+18}, 0", f"v_mov_b32 v{ph+19}, 0"]
    return o
def merge(valu, mf, every=4):
    mf = list(mf)
    for i, x in enumerate(valu):
        if mf and i % every == 0: a(mf.pop(0))
        a(x)
    for m in mf: a(m)

def num_and_store(phq, nb, out, kvaddr, reuse):
    seq = [(t, c) for t in range(5) for c in range(5)]
    for b0 in (0, 13):
        batch = seq[b0:b0+13]
        nbb = nb if reuse else nb + 4 * b0
        if b0 and reuse: a("s_nop 7")
        for j, (t, c) in enumerate(batch):
            a(f"ds_read_b128 {v(nbb+4*j,4)}, v{kvaddr} offset:{t*320 + c*16}")
        if b0 == 0:
            a(f"""
  s_mul_i32 s{sT2}, s{sWV}, 2304
  s_add_u32 s{sT2}, s{sT2}, {OST}
  s_movk_i32 s{sT3}, 144
  v_mul_u32_u24 v{vT[3]}, s{sT3}, v{vN}
  v_add_u32 v{vT[3]}, s{sT2}, v{vT[3]}
  v_mul_u32_u24 v{vT[4]}, 36, v{vG}
  v_add_u32 v{vT[4]}, v{vT[3]}, v{vT[4]}
  v_lshl_add_u32 v{vT[2]}, v{vG}, 4, v{vT[3]}
  s_lshr_b32 s{sT2}, s{sTILE}, 2
  s_lshl_b32 s{sT2}, s{sT2}, 12
  s_and_b32 s{sT3}, s{sTILE}, 3
  s_lshl_b32 s{sT3}, s{sT3}, 7
  s_add_u32 s{sT2}, s{sT2}, s{sT3}
  s_lshl_b32 s{sT3}, s{sG}, 3
  s_add_u32 s{sT2}, s{sT2}, s{sT3}
  s_add_u32 s{sT0}, s{sT2}, {WS_F2}
""")
        for j, (t, c) in enumerate(batch):
            a(f"s_waitcnt lgkmcnt({len(batch)-1-j})")
            if b0 == 0 and j == 0: a("s_barrier")
            cc = v(out + 4*t, 4) if c > 0 else '0'
            a(f"v_mfma_f32_16x16x32_bf16 {v(out+4*t,4)}, {v(nbb+4*j,4)}, {v(phq+4*c,4)}, {cc}")
    a(f"v_add_f32 v{vT[0]}, 0x358637bd, v{out+18}\nv_rcp_f32 v{vT[0]}, v{vT[0]}")
    for i in range(9): a(f"v_pk_mul_f32 {v(out+2*i,2)}, {v(out+2*i,2)}, {v(vT[0],2)} op_sel_hi:[1,0]")
    for i in range(9): a(f"v_cvt_pk_bf16_f32 v{out+20+i}, v{out+2*i}, v{out+2*i+1}")
    stamp(24)
    for i in range(0, 8, 2):
        a(f"ds_write2_b32 v{vT[4]}, v{out+20+i}, v{out+21+i} offset0:{i} offset1:{i+1}")
    a(f"ds_write_b32 v{vT[4]}, v{out+28} offset:32")
    a("s_waitcnt lgkmcnt(0)")
    for j in range(3): a(f"ds_read_b128 {v(out+4*j,4)}, v{vT[2]} offset:{64*j}")
    for j in range(3):
        a(f"s_waitcnt lgkmcnt({2-j})\nbuffer_store_dwordx4 {v(out+4*j,4)}, v{vOST[j]}, {srd(SWS)}, 0 offen sc1")
    a("s_barrier")
    stamp(25)
    set_flag(sT0, 8)
    stamp(10)
def tr_base(dst):
    a(f"""
  v_bfe_u32 v{vT[3]}, v{vLANE}, 2, 2
  v_lshl_add_u32 v{vT[1]}, v{vG}, 2, v{vT[3]}
  v_and_b32 v{vT[2]}, 3, v{vLANE}
  s_movk_i32 s{sT3}, 144
  v_mul_u32_u24 v{vT[1]}, s{sT3}, v{vT[1]}
  v_lshl_add_u32 v{dst}, v{vT[2]}, 3, v{vT[1]}
""")
def pc_setup():
    a(f"""
  s_lshr_b32 s{sT0}, s{sTG}, 1
  s_and_b32 s{sT1}, s{sTG}, 1
  s_lshl_b32 s{sT2}, s{sTB}, 2
  s_lshl_b32 s{sT3}, s{sT1}, 1
  s_add_u32 s{sT2}, s{sT2}, s{sT3}
  s_lshl_b32 s{sT3}, s{sT0}, 7
  s_add_u32 s{sT3}, s{sT3}, s{sT2}
  s_mul_i32 s{sT5}, s{sT3}, {OSTR}
  s_add_u32 s{sT5}, s{sT5}, {WS_O}
  s_add_u32 s{sT4}, s{sT5}, {OSTR}
  v_lshlrev_b32 v{vT[0]}, 4, v{vLANE}
  v_add_u32 v{vT[1]}, 4096, v{vT[0]}
  v_add_u32 v{vT[2]}, 8192, v{vT[0]}
  v_add_u32 v{vT[3]}, 12288, v{vT[0]}
  v_add_u32 v{vT[4]}, 16384, v{vT[0]}
  s_lshl_b32 s{sT2}, s{sT2}, 6
  s_add_u32 s{sPB}, s{sT2}, {WS_GATE}
""")

vRA8 = [21, 22, 23, 24, 25]
DEP = 4
def rd_addrs(unitlists, regs, base):
    a(f"""
  v_bfe_u32 v{vT[0]}, v{vLANE}, 2, 2
  v_lshl_add_u32 v{vT[1]}, v{vG}, 2, v{vT[0]}
  v_and_b32 v{vT[2]}, 3, v{vLANE}
  v_and_b32 v{vT[3]}, 1, v{vT[0]}
  v_lshlrev_b32 v{vT[3]}, 1, v{vT[3]}
  v_and_b32 v{vT[4]}, 7, v{vT[1]}
  v_lshl_add_u32 v{vT[3]}, v{vT[4]}, 2, v{vT[3]}
  v_lshlrev_b32 v{vT[4]}, 9, v{vT[1]}
  v_add_u32 v{vT[4]}, {base}, v{vT[4]}
  v_lshlrev_b32 v{vT[2]}, 3, v{vT[2]}
""")
    for units, r in zip(unitlists, regs):
        packed = sum(u << (8 * c) for c, u in enumerate(units))
        a(f"""
  s_mov_b32 s{sT3}, {packed}
  v_lshrrev_b32 v{vT[0]}, v{vT[2]}, s{sT3}
  v_and_b32 v{vT[0]}, 0xff, v{vT[0]}
  v_xor_b32 v{vT[0]}, v{vT[0]}, v{vT[3]}
  v_lshl_add_u32 v{r}, v{vT[0]}, 3, v{vT[4]}
""")
def x_addr(shift_sreg, sh):
    a(f"""
  v_lshrrev_b32 v{vT[0]}, 1, v{vN}
  v_xor_b32 v{vT[0]}, v{vT[0]}, v{vG}
  v_lshlrev_b32 v{vT[0]}, 4, v{vT[0]}
  v_lshl_add_u32 v{vT[0]}, v{vN}, 7, v{vT[0]}
  s_lshl_b32 s{sT2}, s{shift_sreg}, {sh}
  v_add_u32 v{vRX[0]}, s{sT2}, v{vT[0]}
  v_xor_b32 v{vRX[1]}, 64, v{vRX[0]}
""")
def pass1(role):
    x_addr(sTH, 13)
    rd_addrs([[KOFF8[c] + t for c in range(4)] if role == 0 else [32 + u for u in TILEV[t]] for t in range(5)], vRA8, W0L)
    base = [0]
    def setbase(sl):
        want = (sl // 3) * 3 * WSL
        out = []
        if want != base[0]:
            d = want - base[0]
            for r in vRA8: out.append(f"v_add_u32 v{r}, {d}, v{r}" if d > 0 else f"v_subrev_u32 v{r}, {-d}, v{r}")
            base[0] = want
        return out
    def xregs(ks, tt): return XB + 16 * (ks & 1) + 4 * tt
    lds = []
    def wreads(st):
        ks, i = divmod(st, 5)
        pre = setbase((ks + 1) % NWS) if i == 0 else []
        off = ((ks + 1) % NWS) * WSL - base[0]
        fb = RING + 4 * (st % NRING)
        return [(None, x_) for x_ in pre] + [(st, f"ds_read_b64_tr_b16 {v(fb + 2*hh, 2)}, v{vRA8[i]} offset:{off + hh*8192}") for hh in range(2)]
    def xread(ks, tt):
        xo = ((ks // 2) % NXS) * XSL
        return (5 * ks, f"ds_read_b128 {v(xregs(ks, tt), 4)}, v{vRX[ks & 1]} offset:{xo + 2048*tt}")
    def emit(it):
        tag, txt = it
        if opt('noreads', 0) and tag is not None and 5 <= tag < 999: txt = "s_nop 0"
        a(txt)
        if tag is not None: lds.append(tag)
    def mfma(st, tt):
        ks, i = divmod(st, 5)
        fb = RING + 4 * (st % NRING)
        acc = ACC + 16 * i + 4 * tt
        c = v(acc, 4) if ks > 0 else '0'
        A, B = (v(xregs(ks,tt),4), v(fb,4)) if role == 1 else (v(fb,4), v(xregs(ks,tt),4))
        if opt('nomfma', 0): return "s_nop 0"
        return f"v_mfma_f32_16x16x32_bf16 {v(acc,4)}, {A}, {B}, {c}"
    a(f"s_waitcnt vmcnt({4 if opt('tw', 0) else 2})")
    table_writes()
    a("s_waitcnt lgkmcnt(0)\ns_barrier")
    stamp(3)
    for tt in range(4): emit(xread(0, tt))
    for st in range(DEP):
        for it in wreads(st): emit(it)
    NST = 90
    fifo = []
    for st in range(NST):
        while any(t_ == st for t_, _ in fifo): emit(fifo.pop(0))
        idx = max(i for i, x_ in enumerate(lds) if x_ == st)
        a(f"s_waitcnt lgkmcnt({min(15, len(lds) - 1 - idx)})")
        if (st + DEP) % 5 == 0:
            while fifo: emit(fifo.pop(0))
            a("s_barrier")
        if st == opt('cst', 8):
            a("s_waitcnt vmcnt(0)")
            for j in range(2): a(f"buffer_store_dwordx4 v[{CW+4*j}:{CW+4*j+3}], v{CW+8+j}, {srd(SWS)}, 0 offen sc1")
            a(NONLD)
        if st == 36:
            a("s_waitcnt vmcnt(0)")
            get_nonce()
            a(f"""
  s_bfe_u32 s{sT3}, s2, 0x30004
  s_lshl_b32 s{sT3}, s{sT3}, 10
  s_lshr_b32 s{sT2}, s2, 7
  s_lshl_b32 s{sT2}, s{sT2}, 9
  s_add_u32 s{sT3}, s{sT3}, s{sT2}
  s_and_b32 s{sT2}, s2, 15
  s_lshl_b32 s{sT2}, s{sT2}, 5
  s_add_u32 s{sT3}, s{sT3}, s{sT2}
  s_lshl_b32 s{sT2}, s{sPW}, 3
  s_add_u32 s{sT3}, s{sT3}, s{sT2}
  s_add_u32 s{sT0}, s{sT3}, {WS_F4}""")
            set_flag(sT0, 1)
        nst = st + DEP
        if nst < NST:
            j = nst % 5
            if j < 2: fifo += [xread(nst // 5, 2 * j), xread(nst // 5, 2 * j + 1)]
            fifo += wreads(nst)
        if 20 <= st < 35:
            t_, c_ = SEQ2[st - 20]
            fifo.append((999, f"ds_read_b128 {v(A2L[st-20],4)}, v{cA2} offset:{t_*192 + c_*16}"))
        for tt in range(4):
            a(mfma(st, tt))
            if fifo: emit(fifo.pop(0))
def loader():
    nW, nX, nQ = 2, 1, 0
    def need(ks): return min(vm.wait_for(('w', ks)), vm.wait_for(('x', ks // 2)))
    x_addr(sTG, 12)
    def xr(ks):
        xo = ((ks // 2) % NXS) * XSL
        for tt in range(2): a(f"ds_read_b128 {v(QX0+8*ks+4*tt, 4)}, v{vRX[ks & 1]} offset:{xo + 2048*tt}")
    a(f"s_waitcnt vmcnt({need(0)})\ns_barrier")
    stamp(3)
    xr(0)
    def refill(ks, maxw):
        nonlocal nW, nX
        c = 0
        while c < maxw:
            if nX < 9 and 2 * nX <= nW + 1 and 2 * (nX - NXS) + 1 <= ks: issue_x(nX); nX += 1
            if nW < 18 and nW - NWS <= ks - 1: issue_w(nW); nW += 1; c += 1
            else: break
        if nX < 9 and 2 * nX <= nW + 1 and 2 * (nX - NXS) + 1 <= ks: issue_x(nX); nX += 1
    if opt('norefill', 0):
        global w_items, x_items
        w_items = lambda ks: "s_nop 0"
        x_items = lambda pr: "s_nop 0"
    refill(-1, opt('rf0', 2))
    for ks in range(18):
        a(f"s_waitcnt vmcnt({need(ks + 1) if ks + 1 < 18 else 63}) lgkmcnt(0)")
        a("s_barrier")
        if ks + 1 < 18: xr(ks + 1)
        refill(ks, opt('rf', 2))
        if ks == 8: a(NONLD); vm.add('non')
        if ks == opt('wqpf', 6):
            a(f"""
  s_and_b32 s{sT2}, s{sT}, 7
  s_mul_i32 s{sT2}, s{sT2}, 72
  s_mul_i32 s{sT3}, s{sTG}, 18
  s_add_u32 s{sT2}, s{sT2}, s{sT3}
  s_mul_i32 s{sT2}, s{sT2}, 3456
  s_add_u32 s{sT2}, s{sT2}, s{sH144}
  v_min_u32 v{vT[0]}, 35, v{vLANE}
  v_lshrrev_b32 v{vT[1]}, 1, v{vT[0]}
  s_movk_i32 s{sT3}, 3456
  v_mul_u32_u24 v{vT[1]}, s{sT3}, v{vT[1]}
  v_and_b32 v{vT[0]}, 1, v{vT[0]}
  v_mul_u32_u24 v{vT[0]}, 140, v{vT[0]}
  v_add_u32 v{vT[0]}, v{vT[0]}, v{vT[1]}
  buffer_load_dword v{17}, v{vT[0]}, {srd(SW)}, s{sT2} offen""")
            vm.add('wqpf')
        if ks == 17: arrive(C1)
        for i_ in range(18):
            if wq_time(i_) == ks: issue_q(i_)
        if ks == opt('wopf', 99):
            a(f"""
  s_lshr_b32 s{sT2}, s2, 3
  s_mul_i32 s{sT2}, s{sT2}, 20736
  s_mul_i32 s{sT3}, s{sTH}, 10368
  s_add_u32 s{sT2}, s{sT2}, s{sT3}
  v_lshlrev_b32 v{vT[0]}, 7, v{vLANE}
  v_add_u32 v{vT[1]}, 8192, v{vT[0]}
  v_min_u32 v{vT[1]}, {80*128}, v{vT[1]}
  s_bitcmp1_b32 s{sPW}, 1
  s_cbranch_scc1 L_wopfB
  buffer_load_dword v{17}, v{vT[0]}, {srd(SWOA)}, s{sT2} offen
  buffer_load_dword v{18}, v{vT[1]}, {srd(SWOA)}, s{sT2} offen
  s_branch L_wopfD
L_wopfB:
  buffer_load_dword v{17}, v{vT[0]}, {srd(SWOB)}, s{sT2} offen
  buffer_load_dword v{18}, v{vT[1]}, {srd(SWOB)}, s{sT2} offen
L_wopfD:""")
            vm.add('wopf', 2)
    assert nW == 18 and nX == 9, (nW, nX)
def a2_reads(addr):
    for j, (t, c) in enumerate(SEQ2): a(f"ds_read_b128 {v(A2L[j],4)}, v{addr} offset:{t*192 + c*16}")


cA2q, cKVq = cA2, cKV
a(f"v_lshlrev_b32 v{cL16}, 4, v{vLANE}")
diag_addr(cA2, 20, 48, T2)
diag_addr(cKV, 19, 80, KVT)
a(f"v_add_u32 v{cW2}, s{sMQ2}, v{cL16}")
a(f"s_cmp_eq_u32 s{sROLE}, 1\ns_cbranch_scc1 L_noKc")
a(f"""
  s_and_b32 s{sT4}, s{sTG}, 1                 ; half
  s_lshr_b32 s{sT5}, s{sTG}, 1                ; c0
  v_bfe_u32 v{vT[0]}, v{vLANE}, 2, 2
  v_lshl_add_u32 v{vT[0]}, v{vG}, 2, v{vT[0]}
  s_movk_i32 s{sT2}, 320
  v_mul_u32_u24 v{vT[0]}, s{sT2}, v{vT[0]}
  v_bfe_u32 v{vT[1]}, v{vLANE}, 1, 1
  v_mul_u32_u24 v{vT[1]}, 80, v{vT[1]}
  v_and_b32 v{vT[2]}, 1, v{vLANE}
  v_lshl_add_u32 v{vT[1]}, v{vT[2]}, 3, v{vT[1]}
  s_mul_i32 s{sT2}, s{sT4}, 160
  s_lshl_b32 s{sT3}, s{sT5}, 4
  s_add_u32 s{sT2}, s{sT2}, s{sT3}
  v_add3_u32 v{cAF}, v{vT[0]}, v{vT[1]}, s{sT2}
  s_mul_i32 s{sT2}, s{sT4}, 3072
  s_add_u32 s{sT2}, s{sT2}, {VF}
  v_add_u32 v{cB01}, s{sT2}, v{cL16}
  v_add_u32 v{cB2}, {VF + 2048}, v{cL16}
  s_lshl_b32 s{sT1}, s{sT4}, 1
  v_lshrrev_b32 v{vT[7]}, 1, v{vG}
  v_add_u32 v{vT[7]}, s{sT1}, v{vT[7]}        ; hr
  v_and_b32 v{vT[9]}, 1, v{vG}
  v_lshlrev_b32 v{vT[9]}, 3, v{vT[9]}
  s_lshl_b32 s{sT1}, s{sT5}, 4
  s_add_u32 s{sT1}, s{sT1}, {PST}
  v_add_u32 v{vT[9]}, s{sT1}, v{vT[9]}        ; PST + c0*32 + (g&1)*16
  v_cmp_lt_u32 s[{sM2}:{sM2+1}], 7, v{vN}
""")
for ci in range(3):
    if ci == 0: pre = f"s_mul_i32 s{sT2}, s{sT4}, 48\n  s_mov_b32 s{sT3}, 0"
    elif ci == 1: pre = f"s_mul_i32 s{sT2}, s{sT4}, 24\n  s_add_u32 s{sT2}, s{sT2}, 16\n  s_lshl_b32 s{sT3}, s{sT4}, 4"
    else: pre = f"s_mov_b32 s{sT2}, 32\n  s_movk_i32 s{sT3}, 200"
    a(f"""
  {pre}
  v_mov_b32 v{vT[4]}, s{sT3}
  v_cndmask_b32 v{vT[4]}, 0, v{vT[4]}, s[{sM2}:{sM2+1}]
  v_add3_u32 v{vT[4]}, v{vT[4]}, v{vN}, s{sT2}
  v_mul_u32_u24 v{vT[5]}, 57, v{vT[4]}
  v_lshrrev_b32 v{vT[5]}, 10, v{vT[5]}
  v_mul_u32_u24 v{vT[6]}, 18, v{vT[5]}
  v_sub_u32 v{vT[6]}, v{vT[4]}, v{vT[6]}
""")
    if ci == 2:
        a(f"""
  v_cmp_eq_u32 vcc, 240, v{vT[4]}
  v_cndmask_b32 v{vT[5]}, v{vT[5]}, v{vT[7]}, vcc
  v_cndmask_b32 v{vT[6]}, v{vT[6]}, 18, vcc
""")
    a(f"""
  v_mul_u32_u24 v{vT[8]}, 19, v{vT[7]}
  v_add_u32 v{vT[8]}, v{vT[8]}, v{vT[6]}
  s_movk_i32 s{sT2}, 72
  v_mad_u32_u24 v{vT[8]}, v{vT[8]}, s{sT2}, v{vT[9]}
  v_cmp_eq_u32 vcc, v{vT[5]}, v{vT[7]}
  v_mov_b32 v{vT[10]}, {PST + 5504}
  v_cndmask_b32 v{cPS[ci]}, v{vT[10]}, v{vT[8]}, vcc
""")
a(f"v_lshlrev_b32 v{cSA}, 3, v{vLANE}")
for j in range(2):
    a(f"v_add_u32 v{vT[3]}, {256*j}, v0\nv_lshlrev_b32 v{cGQ[j]}, 4, v{vT[3]}")
    for h in range(2):
        a(f"""
  v_lshl_add_u32 v{vT[0]}, v{vT[3]}, 1, {h}
  s_mov_b32 s{sT3}, 0xE38F
  v_mul_u32_u24 v{vT[1]}, s{sT3}, v{vT[0]}
  v_lshrrev_b32 v{vT[1]}, 19, v{vT[1]}
  v_mul_u32_u24 v{vT[2]}, 9, v{vT[1]}
  v_sub_u32 v{vT[2]}, v{vT[0]}, v{vT[2]}
  v_mul_u32_u24 v{cLQ[2*j+h]}, 80, v{vT[1]}
  v_lshl_add_u32 v{cLQ[2*j+h]}, v{vT[2]}, 3, v{cLQ[2*j+h]}
  v_add_u32 v{cLQ[2*j+h]}, {KVT}, v{cLQ[2*j+h]}
""")
a(f"""
  v_cmp_gt_u32 vcc, {342-256}, v0
  v_mov_b32 v{vT[0]}, {BIG}
  v_cndmask_b32 v{cGQ[1]}, v{vT[0]}, v{cGQ[1]}, vcc
""")
a(f"""
  s_mul_i32 s{sT2}, s{sTG}, 10240
  s_movk_i32 s{sT3}, 320
  v_mul_u32_u24 v{vT[0]}, s{sT3}, v{vN}
  v_mul_u32_u24 v{vT[1]}, 80, v{vG}
  v_add3_u32 v{cPFW}, v{vT[0]}, v{vT[1]}, s{sT2}
""")

a("L_noKc:")
a(f"s_cmp_ge_u32 s{sPW}, 4\ns_cbranch_scc1 L_loader")
a(f"""
  s_mul_i32 s{sT2}, s{sTH}, 5120
  v_add_u32 v{26+2}, 0, v{26+2}
""") if False else None
a(f"s_cmp_ge_u32 s{sPW}, 2\ns_cbranch_scc1 L_vcomp")
def hx_addr():
    a(f"""
  s_mul_i32 s{sT2}, s{sTH}, 5120
  v_add_u32 v{vT[2]}, s{sT2}, v{cL16}
  v_lshlrev_b32 v{vT[3]}, 3, v{vLANE}
  v_add_u32 v{vT[3]}, s{sT2}, v{vT[3]}
""")
pass1(0)
HI[0] = opt('kprio', 3)
a(f"s_setprio {HI[0]}")
stamp(4)
hx_addr()
SND = RING
for j, tt in enumerate((2, 3)):
    for t in range(5):
        s_ = ACC + 16 * t + 4 * tt
        a(f"v_cvt_pk_bf16_f32 v{SND+10*j+2*t}, v{s_}, v{s_+1}\nv_cvt_pk_bf16_f32 v{SND+10*j+2*t+1}, v{s_+2}, v{s_+3}")
    a(f"ds_write_b128 v{vT[2]}, {v(SND+10*j,4)} offset:{HX+2560*j}\nds_write_b128 v{vT[2]}, {v(SND+10*j+4,4)} offset:{HX+2560*j+1024}\nds_write_b64 v{vT[3]}, {v(SND+10*j+8,2)} offset:{HX+2560*j+2048}")
for kb, tt in zip((KB0, KB1), (0, 1)):
    for t in range(5):
        s_ = ACC + 16 * t + 4 * tt
        a(f"v_cvt_pk_bf16_f32 v{kb+2*t}, v{s_}, v{s_+1}\nv_cvt_pk_bf16_f32 v{kb+2*t+1}, v{s_+2}, v{s_+3}")
    a(f"v_mov_b32 v{kb+10}, 0\nv_mov_b32 v{kb+11}, 0")
    if tt == 0:
        a("s_waitcnt lgkmcnt(0)")
        arrive(CK4)
        arrive(C1)
a("s_branch L_kpost")
a("L_vcomp:")
pass1(1)
a(f"s_setprio {HI[0]}")
stamp(4)
a(f"s_mul_i32 s{sT2}, s{sTH}, 10240\ns_add_u32 s{sT2}, s{sT2}, {VF}\nv_add_u32 v{vT[4]}, s{sT2}, v{cL16}")
a(f"v_cmp_eq_u32 vcc, 8, v{vN}\nv_mov_b32 v{vT[5]}, 0x3f803f80")
for ct in range(5):
    for j in range(2):
        b_ = ACC + 16 * ct + 8 * j
        for q in range(4): a(f"v_cvt_pk_bf16_f32 v{b_+q}, v{b_+2*q}, v{b_+2*q+1}")
        if ct == 2:
            for q in range(4): a(f"v_cndmask_b32 v{b_+q}, v{b_+q}, v{vT[5]}, vcc")
        a(f"ds_write_b128 v{vT[4]}, {v(b_,4)} offset:{5120*j + ct*1024}")
hx_addr()
cwait(CK4, 2)
for j, kb in enumerate((KB0, KB1)):
    a(f"ds_read_b128 {v(kb,4)}, v{vT[2]} offset:{HX+2560*j}\nds_read_b128 {v(kb+4,4)}, v{vT[2]} offset:{HX+2560*j+1024}\nds_read_b64 {v(kb+8,2)}, v{vT[3]} offset:{HX+2560*j+2048}")
    a(f"v_mov_b32 v{kb+10}, 0\nv_mov_b32 v{kb+11}, 0")
a("s_waitcnt lgkmcnt(0)")
arrive(C1)
a("L_kpost:")
a("s_waitcnt lgkmcnt(0)")
stamp(17)
for m in stage2_mfmas(P0, A2L, KB0): a(m)
merge(softmax_list(P0, EPk, PH0), stage2_mfmas(P1, A2L, KB1), every=3)
stamp(18)
cwait(C1, 8)
for c in range(5): a(f"ds_write_b128 v{cPFW}, {v(PH0+4*c,4)} offset:{PF + 16*c}")
for x in softmax_list(P1, EPk, PH1): a(x)
stamp(19)
for c in range(5): a(f"ds_write_b128 v{cPFW}, {v(PH1+4*c,4)} offset:{PF + 5120 + 16*c}")
a("s_waitcnt lgkmcnt(0)")
stamp(20)
arrive(CPF)
KV = 160
BF = 184 - 152
BF = 96
AFR = 32
for ci in range(3):
    for tg in range(4):
        ad, of = (cB01, ci * 1024) if ci < 2 else (cB2, 0)
        a(f"ds_read_b128 {v(BF+16*ci+4*tg,4)}, v{ad} offset:{of + tg*5120}")
cwait(CPF, 4)
stamp(5)
def a_reads(j):
    for tg in range(4):
        for hh in range(2): a(f"ds_read_b64_tr_b16 {v(AFR+16*j+4*tg+2*hh,2)}, v{cAF} offset:{32*j + tg*10240 + hh*5120}")
a_reads(0); a_reads(1)
def kv_mf(j, ci):
    acc = KV + 4 * (3 * j + ci)
    return [f"v_mfma_f32_16x16x32_bf16 {v(acc,4)}, {v(AFR+16*j+4*tg,4)}, {v(BF+16*ci+4*tg,4)}, {v(acc,4) if tg else '0'}" for tg in range(4)]
a("s_waitcnt lgkmcnt(8)")
a_reads(2)
for ci in range(3):
    for m in kv_mf(0, ci): a(m)
a("s_waitcnt lgkmcnt(8)")
for ci in range(3):
    for m in kv_mf(1, ci): a(m)
a("s_waitcnt lgkmcnt(0)")
arrive(CKD)
a(f"s_cmp_ge_u32 s{sTG}, 2\ns_cbranch_scc1 L_kvskip")
for ci in range(3):
    for m in kv_mf(2, ci): a(m)
a("L_kvskip:")
for i in range(9): a(f"v_cvt_pk_bf16_f32 v{KV+4*i}, v{KV+4*i}, v{KV+4*i+1}\nv_cvt_pk_bf16_f32 v{KV+4*i+1}, v{KV+4*i+2}, v{KV+4*i+3}")
cwait(CKD, 4)
for ci in range(3): a(f"ds_write_b64 v{cPS[ci]}, {v(KV+4*ci,2)}")
for ci in range(3): a(f"ds_write_b64 v{cPS[ci]}, {v(KV+12+4*ci,2)} offset:32")
a(f"s_cmp_ge_u32 s{sTG}, 2\ns_cbranch_scc1 L_kvskip2")
a("s_mov_b32 exec_lo, 0xffff\ns_mov_b32 exec_hi, 0xffff")
for ci in range(3): a(f"ds_write_b64 v{cPS[ci]}, {v(KV+24+4*ci,2)} offset:64")
a("s_mov_b64 exec, -1\nL_kvskip2:")
a(f"""
  s_lshl_b32 s{sT4}, s{sG}, 13
  s_add_u32 s{sT4}, s{sT4}, {WS_F1}
  s_lshl_b32 s{sT0}, s{sT}, 5
  s_lshl_b32 s{sT3}, s{sTG}, 3
  s_add_u32 s{sT0}, s{sT0}, s{sT3}
  s_add_u32 s{sT0}, s{sT0}, s{sT4}
  s_lshl_b32 s{sT3}, s{sT}, 9
  s_add_u32 s{sT4}, s{sT4}, s{sT3}
  v_lshlrev_b32 v{vT[4]}, 4, v0
  v_add_u32 v{vT[4]}, {PST}, v{vT[4]}
  s_waitcnt lgkmcnt(0)
""")
stamp(21)
arrive(CKV)
cwait(CKV, 4)
stamp(22)
for j in range(2): a(f"ds_read_b128 {v(32+4*j,4)}, v{vT[4]} offset:{4096*j}")
for j in range(2):
    a(f"s_waitcnt lgkmcnt({1-j})\nbuffer_store_dwordx4 {v(32+4*j,4)}, v{cGQ[j]}, {srd(SWS)}, s{sPB} offen sc1")
stamp(23)
set_flag(sT0, 16)
arrive(CPS)
HI[0] = 0
a("s_setprio 0")
stamp(6)
if opt('kwo', 1):
    cwait(CPS, 4); cwait(CWR, 1)
    wo_items(grp['B'], cW2)
def poll_all(lab, soff, addr, cnt):
    R = [(32, 33), (34, 35), (36, 37)][:PP]
    a(f"s_cmp_lg_u32 s{sWV}, 0\ns_cbranch_scc1 {lab}_w\ns_mov_b32 s{sRETRY}, 0")
    for i, (r0, r1) in enumerate(R):
        a(f"buffer_load_dwordx2 v[{r0}:{r1}], v{addr}, {srd(SWS)}, s{soff} offen sc1")
        if i < PP - 1: a(f"s_sleep {opt('pst', 6)}")
    a(f"{lab}:")
    for i, (r0, r1) in enumerate(R):
        a(f"""
  s_waitcnt vmcnt({PP-1})
  v_cmp_ne_u32 vcc, s{sNON}, v{r0}
  v_cmp_ne_u32 s[{sM2}:{sM2+1}], s{sNON+1}, v{r1}
  s_or_b64 vcc, vcc, s[{sM2}:{sM2+1}]
  s_cbranch_scc0 {lab}_d
  buffer_load_dwordx2 v[{r0}:{r1}], v{addr}, {srd(SWS)}, s{soff} offen sc1""")
    a(f"""
  s_add_u32 s{sRETRY}, s{sRETRY}, 1
  s_cmp_lt_u32 s{sRETRY}, 100000
  s_cbranch_scc1 {lab}
{lab}_d:""")
    arrive(cnt, vT[6], vT[7])
    a(f"{lab}_w:")
    cwait(cnt, 1, vT[6], vT[7])
PB = 32
LDF = '' if opt('plain', 1) else ' sc1'
a(f"""
  s_lshl_b32 s{sT5}, s{sG}, 18
  s_mov_b32 s64, 0x11111111
  s_mov_b32 s65, 0x11111111
  s_mov_b32 s{sRETRY}, 0
  v_mov_b32 v{vT[4]}, {CNT + CG}
  s_cmp_lg_u32 s{sWV}, 0
  s_cbranch_scc1 L_gloop
""")
R_ = [(32, 33), (34, 35), (36, 37)][:PP]
for i, (r0, r1) in enumerate(R_):
    a(f"buffer_load_dwordx2 v[{r0}:{r1}], v{cSA}, {srd(SWS)}, s{sT4} offen sc1")
    if i < PP - 1: a(f"s_sleep {opt('pst', 6)}")
a("L_gp0:")
for i, (r0, r1) in enumerate(R_):
    a(f"""
  s_waitcnt vmcnt({PP-1})
  v_cmp_eq_u32 vcc, s{sNON}, v{r0}
  v_cmp_eq_u32 s[{sM2}:{sM2+1}], s{sNON+1}, v{r1}
  s_and_b64 vcc, vcc, s[{sM2}:{sM2+1}]
  s_lshr_b64 s[{sM2}:{sM2+1}], vcc, 1
  s_and_b64 vcc, vcc, s[{sM2}:{sM2+1}]
  s_lshr_b64 s[{sM2}:{sM2+1}], vcc, 2
  s_and_b64 vcc, vcc, s[{sM2}:{sM2+1}]
  v_mov_b32 v{vT[6]}, vcc_lo
  v_mov_b32 v{vT[7]}, vcc_hi
  {"" if opt('allatonce', 0) else f"ds_write_b64 v{vT[4]}, v[{vT[6]}:{vT[7]}]"}
  s_andn2_b64 s[{sM2}:{sM2+1}], s[64:65], vcc
  s_cbranch_scc0 L_gp1
  buffer_load_dwordx2 v[{r0}:{r1}], v{cSA}, {srd(SWS)}, s{sT4} offen sc1""")
a(f"""
  s_add_u32 s{sRETRY}, s{sRETRY}, 1
  s_cmp_lt_u32 s{sRETRY}, 100000
  s_cbranch_scc1 L_gp0
L_gp1:
  ds_write_b64 v{vT[4]}, v[{vT[6]}:{vT[7]}]
""")
stamp(28)
if STAMPS: a(f"v_writelane_b32 v{vSTAMP}, s{sRETRY}, 29")
a(f"""
L_gloop:
L_gread:
  ds_read_b64 v[{vT[6]}:{vT[7]}], v{vT[4]}
  s_waitcnt lgkmcnt(0)
  v_readfirstlane_b32 s{sM2}, v{vT[6]}
  v_readfirstlane_b32 s{sM2+1}, v{vT[7]}
  s_add_u32 s{sRETRY}, s{sRETRY}, 1
  s_cmp_gt_u32 s{sRETRY}, 400000
  s_cbranch_scc1 L_gdone
  s_and_b64 s[{sM2}:{sM2+1}], s[{sM2}:{sM2+1}], s[64:65]
  s_cbranch_scc1 L_gnew
  s_sleep 2
  s_branch L_gloop
L_gnew:
  s_andn2_b64 s[64:65], s[64:65], s[{sM2}:{sM2+1}]
""")
for p in range(16):
    lab = f"L_gl{p}"
    a(f"s_bitcmp1_b64 s[{sM2}:{sM2+1}], {4*p}\ns_cbranch_scc0 {lab}")
    a(f"s_add_u32 s{sT2}, s{sT5}, {p*16384}")
    for j in range(2):
        a(f"buffer_load_dwordx4 {v(PB+8*p+4*j,4)}, v{cGQ[j]}, {srd(SWS)}, s{sT2} offen{LDF}")
    a(f"{lab}:")
a(f"""
  s_cmp_lg_u64 s[64:65], 0
  s_cbranch_scc1 L_gloop
L_gdone:
""")
stamp(7)
a("s_waitcnt vmcnt(0)")
stamp(8)
SA_ = 160
a(f"s_mov_b32 s{sT2}, 0x3f80\ns_mov_b32 s{sT3}, 0x3f800000")
for p in range(16):
    for q in range(8):
        r = PB + 8 * p + q
        if p == 0: a(f"v_lshlrev_b32 v{SA_+2*q}, 16, v{r}\nv_and_b32 v{SA_+2*q+1}, 0xffff0000, v{r}")
        else: a(f"v_dot2_f32_bf16 v{SA_+2*q}, v{r}, s{sT2}, v{SA_+2*q}\nv_dot2_f32_bf16 v{SA_+2*q+1}, v{r}, s{sT3}, v{SA_+2*q+1}")
a("s_nop 3")
for q in range(8): a(f"v_cvt_pk_bf16_f32 v{PB+q}, v{SA_+2*q}, v{SA_+2*q+1}")
a(f"ds_write_b64 v{cLQ[0]}, {v(PB,2)}\nds_write_b64 v{cLQ[1]}, {v(PB+2,2)}")
a(f"""
  v_cmp_gt_u32 vcc, {342-256}, v0
  s_and_saveexec_b64 s[94:95], vcc
  ds_write_b64 v{cLQ[2]}, {v(PB+4,2)}
  ds_write_b64 v{cLQ[3]}, {v(PB+6,2)}
  s_mov_b64 exec, -1
  v_mul_u32_u24 v{vT[0]}, 80, v0
  v_add_u32 v{vT[0]}, {KVT+72}, v{vT[0]}
  v_mov_b32 v{vT[2]}, 0
  v_mov_b32 v{vT[3]}, 0
  v_cmp_gt_u32 vcc, 76, v0
  s_and_saveexec_b64 s[94:95], vcc
  ds_write_b64 v{vT[0]}, v[{vT[2]}:{vT[3]}]
  s_mov_b64 exec, -1
  s_mul_i32 s{sT2}, s{sTG}, 5120
  s_add_u32 s{sT2}, s{sT2}, {PQ}
  v_add_u32 v{vT[0]}, s{sT2}, v{cL16}
  v_bfe_u32 v{vT[3]}, v{vLANE}, 2, 2
  v_lshl_add_u32 v{vT[1]}, v{vG}, 2, v{vT[3]}
  v_and_b32 v{vT[2]}, 3, v{vLANE}
  s_movk_i32 s{sT3}, 144
  v_mul_u32_u24 v{vT[1]}, s{sT3}, v{vT[1]}
  v_lshl_add_u32 v{vRA[0]}, v{vT[2]}, 3, v{vT[1]}
  s_waitcnt lgkmcnt(0)
  s_barrier
""")
stamp(9)
KPHQ = 180; KOUT = 136; KNB = 32; SAVE = 200
for c in range(5): a(f"ds_read_b128 {v(KPHQ+4*c,4)}, v{vT[0]} offset:{c*1024}")
a(f"v_add_u32 v{vRA[1]}, 65536, v{vRA[0]}\nv_add_u32 v{vRA[2]}, 131072, v{vRA[0]}")
for t in range(5):
    for hh in range(2):
        o = wo_addr[(35, hh)] + 32 * t
        a(f"ds_read_b64_tr_b16 {v(SAVE+4*t+2*hh,2)}, v{vRA[o >> 16]} offset:{o & 0xffff}")
a("s_waitcnt lgkmcnt(0)")
num_and_store(KPHQ, KNB, KOUT, cKV, False)
OF = 32
FB = 176; NFB = 6
CACC = 220 - 4
SAVE2 = SAVE
CACC = 220
FB = 176; NFB = 5; SAVE2 = 196; CACC = 216
for i in range(20): a(f"v_mov_b32 v{SAVE2+i}, v{SAVE+i}")
pc_setup()
a(f"""
  v_lshlrev_b32 v{vT[5]}, 2, v{vN}
  v_lshlrev_b32 v{vT[9]}, 3, v{vLANE}
  s_lshl_b32 s{sT3}, s{sTB}, 12
  s_lshl_b32 s{sPEND}, s{sCB}, 9
  s_add_u32 s{sT3}, s{sT3}, s{sPEND}
  s_add_u32 s{sPEND}, s{sT3}, {WS_F2}
""")
a("s_barrier")
stamp(27)
poll_all("L_opoll", sPEND, vT[9], CO)
a(f"""
  buffer_load_dword v{vT[6]}, v{vT[5]}, {srd(SWS)}, s{sPB} offen{LDF}
  buffer_load_dword v{vT[7]}, v{vT[5]}, {srd(SWS)}, s{sPB} offen offset:64{LDF}
""")
stamp(11)
for ks in range(18):
    for tt in range(2):
        a(f"buffer_load_dwordx4 {v(OF+8*ks+4*tt,4)}, v{vT[ks//4]}, {srd(SWS)}, s{sT5 if tt==0 else sT4} offen offset:{(ks%4)*1024}{LDF}")
stamp(26)
a(f"s_cmp_eq_u32 s{sT0}, 1\ns_cbranch_scc1 L_pc_b1")
def phaseC(b):
    seq = [(ks, t) for ks in range(18) for t in range(5)]
    def rd(i):
        ks, t = seq[i]
        if b * 18 + ks == 35: return []
        return [f"ds_read_b64_tr_b16 {v(FB+4*(i%NFB)+2*hh,2)}, v{vRA[(wo_addr[(b*18+ks, hh)] + 32*t) >> 16]} offset:{(wo_addr[(b*18+ks, hh)] + 32*t) & 0xffff}" for hh in range(2)]
    DEPTH = 4
    cnt = []
    for i in range(DEPTH):
        r = rd(i); cnt.append(len(r))
        for x_ in r: a(x_)
    for i, (ks, t) in enumerate(seq):
        saved = (b * 18 + ks == 35)
        w = []
        if t == 0: w.append(f"vmcnt({34 - 2*ks})")
        if not saved: w.append(f"lgkmcnt({sum(cnt[i+1:])})")
        if w: a("s_waitcnt " + " ".join(w))
        nx = rd(i + DEPTH) if i + DEPTH < len(seq) else []
        cnt.append(len(nx))
        fr = (SAVE2 + 4 * t) if saved else (FB + 4 * (i % NFB))
        for tt in range(2):
            acc = CACC + 20 * tt + 4 * t
            a(f"v_mfma_f32_16x16x32_bf16 {v(acc,4)}, {v(fr,4)}, {v(OF+8*ks+4*tt,4)}, {v(acc,4) if ks else '0'}")
            if nx: a(nx[tt])
phaseC(0)
a("s_branch L_pc_done")
a("L_pc_b1:")
phaseC(1)
a("L_pc_done:")
stamp(12)
arrive(CKD, vT[10], vT[11])
E0 = 32
for i in range(20):
    a(f"v_cvt_pk_bf16_f32 v{E0+i}, v{CACC+2*i}, v{CACC+2*i+1}")
a(f"""
  s_cmp_eq_u32 s{sT0}, 1
  s_cselect_b64 vcc, -1, 0
  v_cndmask_b32 v{vT[6]}, v{vT[6]}, v{vT[7]}, vcc
  v_cvt_pk_bf16_f32 v{vT[6]}, v{vT[6]}, v{vT[6]}
  v_lshlrev_b32 v{vT[6]}, 16, v{vT[6]}
  v_mul_f32 v{vT[6]}, s{sL+2}, v{vT[6]}
  v_exp_f32 v{vT[6]}, v{vT[6]}
  v_add_f32 v{vT[6]}, 1.0, v{vT[6]}
  v_rcp_f32 v{vT[6]}, v{vT[6]}
  v_cvt_pk_bf16_f32 v{vT[6]}, v{vT[6]}, v{vT[6]}
  v_lshlrev_b32 v{vT[6]}, 16, v{vT[6]}
  v_sub_f32 v{vT[7]}, 1.0, v{vT[6]}
  v_cvt_pk_bf16_f32 v{vT[7]}, v{vT[7]}, v{vT[7]}
  v_lshlrev_b32 v{vT[7]}, 16, v{vT[7]}
  v_cndmask_b32 v{vT[8]}, v{vT[6]}, v{vT[7]}, vcc
  v_cndmask_b32 v{vT[10]}, v{vT[7]}, v{vT[6]}, vcc
""")
for i in range(10):
    a(f"v_cndmask_b32 v{E0+20+i}, v{E0+10+i}, v{E0+i}, vcc\nv_cndmask_b32 v{E0+32+i}, v{E0+i}, v{E0+10+i}, vcc")
a(f"""
  s_mul_i32 s{sT2}, s{sWV}, 3072
  v_add_u32 v{vT[1]}, s{sT2}, v{vT[0]}
  s_xor_b32 s{sT3}, s{sWV}, 2
  s_mul_i32 s{sT3}, s{sT3}, 3072
  v_add_u32 v{vT[2]}, s{sT3}, v{vT[0]}
""")
cwait(CKD, 8, vT[5], vT[9])
a(f"""
  ds_write_b128 v{vT[1]}, {v(E0+20,4)}
  ds_write_b128 v{vT[1]}, {v(E0+24,4)} offset:1024
  ds_write_b64 v{vT[1]}, {v(E0+28,2)} offset:2048
  v_mov_b32 v{vT[5]}, {CNT+CE}
  v_mov_b32 v{vT[9]}, 1
  s_waitcnt lgkmcnt(0)
  s_mov_b64 exec, 1
  ds_add_u32 v{vT[5]}, v{vT[9]}
  s_mov_b64 exec, -1
  s_lshl_b32 s{sT2}, s{sTB}, 6
  s_lshl_b32 s{sT3}, s{sT1}, 5
  s_add_u32 s{sT2}, s{sT2}, s{sT3}
  s_lshl_b32 s{sT3}, s{sT0}, 4
  s_add_u32 s{sT2}, s{sT2}, s{sT3}
  v_add_u32 v{vT[3]}, s{sT2}, v{vN}
  s_movk_i32 s{sT3}, 1152
  v_mul_lo_u32 v{vT[3]}, v{vT[3]}, s{sT3}
  v_lshl_add_u32 v{vT[3]}, v{vG}, 3, v{vT[3]}
  s_mul_i32 s{sT3}, s{sCB}, 144
  v_add_u32 v{vT[3]}, s{sT3}, v{vT[3]}
  v_cmp_lt_u32 vcc, 1, v{vG}
  v_mov_b32 v{vT[4]}, {BIG}
  v_cndmask_b32 v{vT[4]}, v{vT[3]}, v{vT[4]}, vcc
""")
W0 = 80
for i in range(10):
    r = E0 + 32 + i
    a(f"""
  v_lshlrev_b32 v{W0+2*i}, 16, v{r}
  v_and_b32 v{W0+2*i+1}, 0xffff0000, v{r}
  v_pk_mul_f32 {v(W0+2*i,2)}, {v(W0+2*i,2)}, {v(vT[8],2)} op_sel_hi:[1,0]
  v_cvt_pk_bf16_f32 v{r}, v{W0+2*i}, v{W0+2*i+1}
  v_lshlrev_b32 v{W0+2*i}, 16, v{r}
  v_and_b32 v{W0+2*i+1}, 0xffff0000, v{r}
""")
cwait(CE, 4, vT[5], vT[9])
a(f"""
  ds_read_b128 {v(E0+20,4)}, v{vT[2]}
  ds_read_b128 {v(E0+24,4)}, v{vT[2]} offset:1024
  ds_read_b64 {v(E0+28,2)}, v{vT[2]} offset:2048
  s_waitcnt lgkmcnt(0)
""")
for t in range(5):
    for h in range(2):
        i = 2 * t + h
        r = E0 + 20 + i; w = W0 + 20 + 2 * (i & 1)
        a(f"""
  v_lshlrev_b32 v{w}, 16, v{r}
  v_and_b32 v{w+1}, 0xffff0000, v{r}
  v_pk_mul_f32 {v(w,2)}, {v(w,2)}, {v(vT[10],2)} op_sel_hi:[1,0]
  v_cvt_pk_bf16_f32 v{r}, v{w}, v{w+1}
  v_lshlrev_b32 v{w}, 16, v{r}
  v_and_b32 v{w+1}, 0xffff0000, v{r}
  v_pk_add_f32 {v(w,2)}, {v(w,2)}, {v(W0+2*i,2)}
  v_cvt_pk_bf16_f32 v{E0+i}, v{w}, v{w+1}
""")
    a(f"buffer_store_dwordx2 {v(E0+2*t,2)}, v{vT[3] if t < 4 else vT[4]}, {srd(SOUT)}, 0 offen offset:{32*t}")
stamp(13)
a("s_branch L_fin")

a("L_loader:")
loader()
get_nonce()
stamp(4)
a(f"""
  v_bfe_u32 v{vT[0]}, v{vLANE}, 2, 2
  v_lshl_add_u32 v{vT[1]}, v{vG}, 2, v{vT[0]}
  v_and_b32 v{vT[2]}, 3, v{vLANE}
  s_movk_i32 s{sT3}, 144
  v_mul_u32_u24 v{vT[4]}, s{sT3}, v{vT[1]}
  s_mov_b32 s{sT3}, {sum(u << (8*c) for c, u in enumerate(KOFF8))}
  v_lshlrev_b32 v{vT[5]}, 3, v{vT[2]}
  v_lshrrev_b32 v{vT[5]}, v{vT[5]}, s{sT3}
  v_and_b32 v{vT[5]}, 0xff, v{vT[5]}
  v_lshl_add_u32 v{23}, v{vT[5]}, 3, v{vT[4]}
  v_add_u32 v{24}, 65536, v{23}
  v_lshlrev_b32 v{25}, 4, v{vG}
  v_add_u32 v{25}, {GW}, v{25}
  s_mov_b32 s{sT5}, s{sROT}
""")
GACC = [vT[0], vT[4]]
groups = [(0, 18)] if opt('qwait', 1) else [(0, 6), (6, 14), (14, 18)]
for gi, (g0_, g1_) in enumerate(groups):
    if gi == (0 if opt('qwait', 1) else 1):
        cwait(C1, 8, 12, 13)
        for i_ in range(18):
            if wq_time(i_) == 18: issue_q(i_)
    wo_ready()
    arrive(CWR, 12, 13)
    if opt('qwait', 1): cwait(CPF, opt('qwait', 1), 12, 13)
    a(f"s_waitcnt vmcnt({vm.wait_for(('q', g1_ - 1))})")
    arrive(CWA + 4 * gi, 12, 13); cwait(CWA + 4 * gi, 4, 12, 13)
    stamp(30 + 2 * gi)
    steps = [(ks, t) for ks in range(g0_, g1_) for t in range(6)]
    def rd(i):
        ks, t = steps[i]
        fb = QRING + 4 * (i % 8)
        if t == 5:
            return [f"s_lshl_b32 s{sT4}, s{sT5}, 6\nv_add_u32 v{14}, s{sT4}, v{25}\ns_add_u32 s{sT5}, s{sT5}, 1\ns_cmp_eq_u32 s{sT5}, 18\ns_cselect_b32 s{sT5}, 0, s{sT5}\nds_read_b128 {v(fb,4)}, v{14}"]
        return [f"ds_read_b64_tr_b16 {v(fb+2*hh,2)}, v{23 + ((wq_addr[ks] + hh*2304 + 8*t) >> 16)} offset:{(wq_addr[ks] + hh*2304 + 8*t) & 0xffff}" for hh in range(2)]
    D_ = 6
    cnt = []
    for i in range(D_):
        r = rd(i); cnt.append(len(r))
        for x_ in r: a(x_)
    QB0 = opt('qb0', 66)
    pendB = list(grp['B']) if opt('wolate', 0) == 3 else []
    for i, (ks, t) in enumerate(steps):
        a(f"s_waitcnt lgkmcnt({sum(cnt[i+1:])})")
        nx = rd(i + D_) if i + D_ < len(steps) else []
        cnt.append(len(nx))
        for tt in range(2):
            acc = GACC[tt] if t == 5 else QACC + 20 * tt + 4 * t
            a(f"v_mfma_f32_16x16x32_bf16 {v(acc,4)}, {v(QRING+4*(i%8),4)}, {v(QX0+8*ks+4*tt,4)}, {v(acc,4) if ks else '0'}")
            if tt < len(nx): a(nx[tt])
    stamp(31 + 2 * gi)
    arrive(CWD + 4 * gi, 12, 13)
stamp(7)
a(f"""
  v_cmp_eq_u32 vcc, 1, v{vG}
  v_cndmask_b32 v{vT[0]}, v{GACC[0]}, v{GACC[1]}, vcc
  v_lshlrev_b32 v{vT[2]}, 2, v{vLANE}
  v_cmp_gt_u32 vcc, 32, v{vLANE}
  v_mov_b32 v{vT[3]}, {BIG}
  v_cndmask_b32 v{vT[2]}, v{vT[3]}, v{vT[2]}, vcc
  s_lshl_b32 s{sT2}, s{sT}, 9
  s_lshl_b32 s{sT3}, s{sTG}, 7
  s_add_u32 s{sT2}, s{sT2}, s{sT3}
  s_add_u32 s{sT2}, s{sT2}, {WS_GATE}
  s_cmp_eq_u32 s{sG}, 0
  s_cselect_b32 s{sT2}, s{sT2}, {BIG}
  buffer_store_dword v{vT[0]}, v{vT[2]}, {srd(SWS)}, s{sT2} offen sc1
""")
for kb, tt in zip((KB0, KB1), (0, 1)):
    for t in range(5):
        s_ = QACC + 20 * tt + 4 * t
        a(f"v_cvt_pk_bf16_f32 v{kb+2*t}, v{s_}, v{s_+1}\nv_cvt_pk_bf16_f32 v{kb+2*t+1}, v{s_+2}, v{s_+3}")
    a(f"v_mov_b32 v{kb+10}, 0\nv_mov_b32 v{kb+11}, 0")
a2_reads(cA2)
cwait(CWD + 4 * (len(groups) - 1), 4)
a("s_waitcnt lgkmcnt(0)")
for m in stage2_mfmas(P0, A2L, KB0): a(m)
merge(softmax_list(P0, EPk, PH0), stage2_mfmas(P1, A2L, KB1), every=3)
a(f"s_mul_i32 s{sT2}, s{sTG}, 5120\ns_add_u32 s{sT2}, s{sT2}, {PQ}\nv_add_u32 v{vT[8]}, s{sT2}, v{cL16}")
for c in range(5): a(f"ds_write_b128 v{vT[8]}, {v(PH0+4*c,4)} offset:{c*1024}")
for x in softmax_list(P1, EPk, PH1): a(x)
if not opt('kwo', 1):
    cwait(CPS, 4)
    wo_items(grp['B'][:2], cW2)
early = grp['A'] + (grp['B'][2:] if not opt('kwo', 1) else [])
ne = len(early) - opt('wodefer', 0)
grp['Z'] = early[ne:] + grp['Z']
n_ = wo_items(early[:ne], cW2)
stamp(8)
a(f"s_waitcnt vmcnt({n_}) lgkmcnt(0)\ns_barrier")
stamp(9)
num_and_store(PH1, 32, 136, cKV, False)
wo_items(grp['Z'], cW2)
a("s_waitcnt vmcnt(0)\ns_barrier")
a("L_fin:")
if STAMPS:
    a(f"""
  s_and_b32 s{sT2}, s{sWV}, 3
  s_cmp_lg_u32 s{sT2}, 0
  s_cbranch_scc1 L_end
  s_waitcnt vmcnt(0)
  s_memrealtime s[94:95]
  s_waitcnt lgkmcnt(0)
  v_writelane_b32 v{vSTAMP}, s94, 14
  s_getreg_b32 s94, hwreg(HW_REG_XCC_ID)
  s_getreg_b32 s95, hwreg(HW_REG_HW_ID)
  v_writelane_b32 v{vSTAMP}, s94, 15
  v_writelane_b32 v{vSTAMP}, s95, 16
  v_lshlrev_b32 v{vT[0]}, 2, v{vLANE}
  DBGCODE
  s_lshl_b32 s{sT2}, s2, 9
  s_lshl_b32 s{sT3}, s{sROLE}, 8
  s_add_u32 s{sT2}, s{sT2}, s{sT3}
  s_add_u32 s{sT2}, s{sT2}, {WS_DBG}
  buffer_store_dword v{vSTAMP}, v{vT[0]}, {srd(SWS)}, s{sT2} offen
""")
a("L_end:\n  s_endpgm")
for i_, l_ in enumerate(a.lines):
    if 'DBGCODE' in l_:
        a.lines[i_] = (f"""  s_cmp_lg_u32 s{sROLE}, 0
  s_cbranch_scc1 L_nodbg
  v_not_b32 v{vT[1]}, v{vSTAMP}
  v_cmp_eq_u32 vcc, 0, v{vLANE}
  s_nop 1
  v_cndmask_b32 v{vT[1]}, v{vSTAMP}, v{vT[1]}, vcc
  v_add_u32 v{vT[2]}, 8, v{vT[0]}
  s_mov_b32 exec_lo, 0x7fff
  s_mov_b32 exec_hi, 0
  buffer_atomic_umax v{vT[1]}, v{vT[2]}, {srd(SDBG)}, 0 offen
  s_mov_b64 exec, -1
L_nodbg:""" if opt('dbg', 0) else "")

xr = opt('xr', 0)
for i_, l_ in enumerate(a.lines):
    if l_.strip() == 'XR':
        a.lines[i_] = {0: '', 1: f"  s_lshr_b32 s{sT2}, s{sT0}, 1\n  s_add_u32 s{sROT}, s{sROT}, s{sT2}",
                       2: f"  s_add_u32 s{sROT}, s{sROT}, s{sT0}",
                       3: f"  s_and_b32 s{sT2}, s{sT0}, 1\n  s_lshl_b32 s{sT2}, s{sT2}, 2\n  s_add_u32 s{sROT}, s{sROT}, s{sT2}"}[xr]
    if l_.strip() == 'XW':
        a.lines[i_] = '' if xr == 0 else f"  s_sub_u32 s{sT2}, s{sROT}, 9\n  s_cmp_ge_u32 s{sROT}, 9\n  s_cselect_b32 s{sROT}, s{sT2}, s{sROT}"
hdr = open('cdna_kernels/' + NAME + '.s.ref').read().split('; Override launch')[0]
out = kernel_file(a.text(), "grid=(256,1,1) block=(512,1,1) lds=163840", 256, hdr_comment=hdr)
outp = [x for x in sys.argv[1:] if not x.startswith('--') and not x.startswith('o:')]
open(outp[0] if outp else 'k.s', 'w').write(out)
```

```python
import sys
from asmlib import *

STAMPS = '--stamps' in sys.argv
OPT = dict(x[2:].split('=') for x in sys.argv if x.startswith('o:'))
def opt(k, d): return type(d)(OPT.get(k, d))
NB0 = opt('nb0', 3)
PP = opt('pp', 1)

XSL = 16384; NXS = 3
WSL = 16384; NWS = 6; W0L = NXS * XSL
assert W0L + NWS * WSL <= 156672
KST = 4608
TAB = 34 * KST
T2 = TAB
GW = TAB + 3840
ZR = GW + 1152
CNT = ZR + 1408
PF = 0; HX = 0
VF = 135680
wq_addr = [65536 + 4608 * i for i in range(14)] + [49152 + 4608 * i for i in range(3)] + [41472]
def wq_time(i):
    lo, hi = wq_addr[i], wq_addr[i] + 4608
    if lo < 65536: return 18
    if opt('wqlate', 1): return 17
    return 12 + (hi - 1 - 49152) // 16384
PST = 0
KVT = PST
PQ = 81920
OST = PQ
EPI = 8192
HU = 2304
regions = [(0, 6400, 'Z'), (6400, 40960, 'B'), (40960, 81920, 'A'), (81920, 102400, 'Z'),
           (102400, 135680, 'A'), (135680, 156160, 'B'), (156160, 156672, 'A'), (156672, 161664, 'Z')]
units = []
for u in range(161664 // HU):
    lo, hi = u * HU, (u + 1) * HU
    units.append((max(t for a_, b_, t in regions if a_ < hi and lo < b_), lo))
units.sort()
need_order = [(b * 18 + ks, hh) for ks in range(18) for b in range(2) for hh in range(2) if b * 18 + ks != 35]
uA = [lo for t, lo in units if t == 'A']; uB = [lo for t, lo in units if t == 'B']; uZ = [lo for t, lo in units if t == 'Z']
save_u = [uB.pop(), uB.pop()]
uZ += save_u
wo_addr = {(35, 0): save_u[0], (35, 1): save_u[1]}
grp = {'A': [], 'B': [(35, 0), (35, 1)], 'Z': []}
it_ = iter(need_order)
for t, lst in ((('B', uB), ('A', uA), ('Z', uZ)) if opt('kwo', 1) else (('A', uA), ('B', uB), ('Z', uZ))):
    for lo in lst:
        x_ = next(it_, None)
        if x_ is None: break
        wo_addr[x_] = lo; grp[t].append(x_)
assert next(it_, None) is None, "wo does not fit"
if opt('wolate', 0) == 3:
    grp['Z'] = grp['A'] + grp['Z']; grp['A'] = []
if opt('wolate', 0) in (1, 2):
    grp['Z'] = grp['B'][2:] + grp['Z']; grp['B'] = grp['B'][:2]
if opt('wolate', 0) == 2:
    grp['Z'] = grp['A'] + grp['Z']; grp['A'] = []
C1, CPF, CKV, CPS, CKD, CWR, CK4, CO, CE, CG = 0, 4, 8, 12, 16, 20, 24, 32, 36, 40
CWA, CWD, CS0 = 64, 128, 48

WS_O = 4 << 20; WS_GATE = 10 << 20; WS_DBG = 16 << 20
WS_F1 = 11 << 20; WS_F2 = 12 << 20; WS_F4 = 13 << 20; WS_WOC = 14 << 20
sNON = 80
vNON = 12
BIG = 0x7FFF0000

SX, SW, SWS, SWOA, SWOB, SOUT, SDBG, SPHI, SGATE = 4, 8, 12, 16, 20, 24, 28, 32, 36
def srd(s): return f"s[{s}:{s+3}]"
sT, sG, sB, sHQ, sWV, sTG, sROLE, sK, sT0, sT1, sT2, sT3 = 40, 41, 42, 43, 44, 45, 46, 47, 48, 49, 50, 51
sMX, sMWA, sMQ2, sMQ = 52, 53, 54, 55
sROT, sTB, sCB, sRETRY = 56, 57, 58, 59
sL = 60
sPA = 64
sWOC = 66; sMASK = 88; sPEND = 90; sT4, sT5 = 91, 92; sTILE = 93
sPB = 96; sH144 = 97; sPW = 98; sTH = 99; sM2 = 100

vLANE, vN, vG = 1, 2, 3
vT = list(range(4, 16))
vXOFF, vWA, vWB, vWQ, vWO = 16, 17, 18, 19, 20
vRA = [21, 22, 23, 24, 25]
vRX = [26, 27]
vOST = [28, 29, 30]
vSTAMP = 31
vXOFF2 = 15
XB, ACC, RING, NRING = 32, 64, 204, 5
QX0, QACC, QRING = 32, 176, 216
KC = 224
cPS = [KC + i for i in range(3)]
cAF, cB01, cB2 = KC + 3, KC + 4, KC + 5
cGQ = [KC + 8, KC + 9, KC + 10]; cLQ = [KC + 16, KC + 17, KC + 18, KC + 19]
cSA, cSB = KC + 14, KC + 15
cSEL = [KC + 16, KC + 20]
cA2, cKV, cL16, cPFW, cW2 = KC + 24, KC + 25, KC + 26, KC + 27, KC + 28

a = Asm()
def stamp(idx):
    if not STAMPS: return
    a(f"s_memrealtime s[94:95]\ns_waitcnt lgkmcnt(0)\nv_writelane_b32 v{vSTAMP}, s94, {idx}")
def v(i, n=1): return f"v{i}" if n == 1 else f"v[{i}:{i+n-1}]"
class VM:
    def __init__(self, ops=()): self.ops = list(ops)
    def add(self, tag, n=1): self.ops += [tag] * n
    def wait_for(self, tag):
        idx = max(i for i, t in enumerate(self.ops) if t == tag)
        return min(63, len(self.ops) - 1 - idx)
vm = VM()
def interleave(main, fill, per=1):
    fill = list(fill)
    for m in main:
        a(m)
        for _ in range(per):
            if fill: a(fill.pop(0))
    for f in fill: a(f)
nl = [0]
def arrive(c, t0=vT[0], t1=vT[1]):
    a(f"""
  v_mov_b32 v{t0}, {CNT + c}
  v_mov_b32 v{t1}, 1
  s_mov_b64 exec, 1
  ds_add_u32 v{t0}, v{t1}
  s_mov_b64 exec, -1""")
HI = [0]
def cwait(c, n, t0=vT[0], t1=vT[1]):
    _cwait(c, n, t0, t1)
    if HI[0]: a(f"s_setprio {HI[0]}")
def _cwait(c, n, t0, t1):
    nl[0] += 1; L = f"L_cw{nl[0]}"
    a(f"""
  v_mov_b32 v{t0}, {CNT + c}
  s_mov_b32 s{sRETRY}, 0
{L}:
  ds_read_b32 v{t1}, v{t0}
  s_waitcnt lgkmcnt(0)
  v_readfirstlane_b32 s{sT2}, v{t1}
  s_add_u32 s{sRETRY}, s{sRETRY}, 1
  s_cmp_gt_u32 s{sRETRY}, 2000000
  s_cbranch_scc1 {L}d
  s_cmp_ge_u32 s{sT2}, {n}
  s_cbranch_scc1 {L}d
  s_setprio 0
  s_sleep 1
  s_branch {L}
{L}d:""")

a(f"""
  s_cmp_ge_u32 s2, 256
  s_cbranch_scc1 L_end
  s_load_dwordx16 s[64:79], s[0:1], 0
  s_load_dwordx8 s[80:87], s[0:1], 64
  s_getpc_b64 s[94:95]
L_pc:
  v_and_b32 v{vLANE}, 63, v0
  v_lshrrev_b32 v{vT[0]}, 6, v0
  s_lshr_b32 s{sT1}, s2, 3
  s_and_b32 s{sT0}, s2, 7
  v_readfirstlane_b32 s{sPW}, v{vT[0]}
  s_cmp_ge_u32 s{sPW}, 2
  s_cbranch_scc1 L_nopf
  s_lshl_b32 s{sT2}, s{sPW}, 5
  s_add_u32 s{sT2}, s{sT2}, s{sT1}
  s_lshl_b32 s{sT2}, s{sT2}, 10
  v_lshlrev_b32 v{vT[1]}, 4, v{vLANE}
  v_add_u32 v{vT[1]}, s{sT2}, v{vT[1]}
  v_min_u32 v{vT[1]}, L_end-L_pc, v{vT[1]}
  global_load_dword v{63}, v{vT[1]}, s[94:95]
L_nopf:
""")
if STAMPS: a(f"v_mov_b32 v{vSTAMP}, 0")
stamp(0)
a(f"""
  s_and_b32 s{sT}, s{sT0}, 1
  s_lshl_b32 s{sT}, s{sT}, 3
  s_and_b32 s{sT2}, s{sT1}, 7
  s_add_u32 s{sT}, s{sT}, s{sT2}
  s_lshr_b32 s{sG}, s{sT0}, 1
  s_lshl_b32 s{sG}, s{sG}, 2
  s_lshr_b32 s{sT3}, s{sT1}, 3
  s_add_u32 s{sG}, s{sG}, s{sT3}
  s_lshr_b32 s{sB}, s{sG}, 3
  s_and_b32 s{sHQ}, s{sG}, 7
  s_mul_i32 s{sT2}, s{sT2}, {0 if opt('rot', 1) == 3 else 9}
  s_lshr_b32 s{sT2}, s{sT2}, 3
  s_mul_i32 s{sT3}, s{sT3}, {0 if opt('rot', 1) == 2 else (4 if opt('rot', 1) == 4 else 9)}
  s_lshr_b32 s{sT3}, s{sT3}, 2
  s_add_u32 s{sROT}, s{sT2}, s{sT3}
  XR
  s_sub_u32 s{sT2}, s{sROT}, 9
  s_cmp_ge_u32 s{sROT}, 9
  s_cselect_b32 s{sROT}, s{sT2}, s{sROT}
  XW
  s_lshl_b32 s{sROT}, s{sROT}, 1
  {"s_mov_b32 s%d, 0" % sROT if opt('rot', 1) == 0 else ""}
  s_and_b32 s{sTB}, s{sT1}, 3
  s_lshl_b32 s{sT2}, s{sT0}, 2
  s_add_u32 s{sTB}, s{sTB}, s{sT2}
  s_lshr_b32 s{sCB}, s{sT1}, 2
  s_lshl_b32 s{sT2}, s{sPW}, 2
  s_lshr_b32 s{sWV}, 0x76543120, s{sT2}
  s_and_b32 s{sWV}, s{sWV}, 7
  s_and_b32 s{sTG}, s{sWV}, 3
  s_lshr_b32 s{sROLE}, s{sWV}, 2
  s_and_b32 s{sTH}, s{sPW}, 1
  v_and_b32 v{vN}, 15, v{vLANE}
  v_lshrrev_b32 v{vG}, 4, v{vLANE}
  v_mov_b32 v15, 0
  v_mov_b32 v16, 0
  v_mov_b32 v21, 0
  v_mov_b32 v22, 0
  v_mov_b32 v152, 0x7fff0000
  v_mov_b32 v153, 0x7fff0000
  v_mov_b32 v{cGQ[0]}, 0
  v_mov_b32 v{cGQ[1]}, 0
  v_mov_b32 v{cGQ[2]}, 0
  v_mov_b32 v{cSA}, 0
  s_mul_i32 s{sH144}, s{sHQ}, 144
  s_mov_b32 s{SX+2}, {2048*1152}
  s_mov_b32 s{SX+3}, 0x00020000
  s_mov_b32 s{SW+2}, {576*3456}
  s_mov_b32 s{SW+3}, 0x00020000
  s_mov_b32 s{SPHI+2}, {32*648}
  s_mov_b32 s{SPHI+3}, 0x00020000
  s_mov_b32 s{SWS+2}, 0x10000000
  s_mov_b32 s{SWS+3}, 0x00020000
  s_mov_b32 s{SWOA+2}, {576*1152}
  s_mov_b32 s{SWOA+3}, 0x00020000
  s_mov_b32 s{SWOB+2}, {576*1152}
  s_mov_b32 s{SWOB+3}, 0x00020000
  s_mov_b32 s{SOUT+2}, {2048*1152}
  s_mov_b32 s{SOUT+3}, 0x00020000
  s_mov_b32 s{SDBG+2}, 256
  s_mov_b32 s{SDBG+3}, 0x00020000
  s_mov_b32 s{SGATE+2}, 1152
  s_mov_b32 s{SGATE+3}, 0x00020000
""")
def srd_bases():
    a(f"""
  s_cmp_eq_u32 s{sB}, 1
  s_waitcnt lgkmcnt(0)
  s_mov_b32 s{SX}, s64
  s_mov_b32 s{SX+1}, s65
  s_cselect_b32 s{SW}, s74, s66
  s_cselect_b32 s{SW+1}, s75, s67
  s_cselect_b32 s{SPHI}, s76, s68
  s_cselect_b32 s{SPHI+1}, s77, s69
  s_mov_b32 s{SGATE}, s80
  s_mov_b32 s{SGATE+1}, s81
""")
def srd_rest():
    a(f"""
  s_mov_b32 s{SWS}, s86
  s_mov_b32 s{SWS+1}, s87
  s_mov_b32 s{SWOA}, s70
  s_mov_b32 s{SWOA+1}, s71
  s_mov_b32 s{SWOB}, s78
  s_mov_b32 s{SWOB+1}, s79
  s_mov_b32 s{SOUT}, s82
  s_mov_b32 s{SOUT+1}, s83
  s_mov_b32 s{SDBG}, s84
  s_mov_b32 s{SDBG+1}, s85
""")
def dma_off(ci, nper):
    magic = {30: (0x8889, 20), 9: (0xE38F, 19)}[nper]
    t = vT
    a(f"""
  s_mov_b32 s{sT3}, {magic[0]}
  v_mul_u32_u24 v{t[3]}, s{sT3}, v{ci}
  v_lshrrev_b32 v{t[3]}, {magic[1]}, v{t[3]}
  v_mul_u32_u24 v{t[4]}, {nper}, v{t[3]}
  v_sub_u32 v{t[4]}, v{ci}, v{t[4]}
""")
    if nper == 30:
        a(f"v_and_b32 v{t[5]}, 1, v{t[3]}\nv_xor_b32 v{t[4]}, v{t[4]}, v{t[5]}")
    a(f"""
  v_bfe_u32 v{t[5]}, v{t[3]}, 2, 2
  v_lshlrev_b32 v{t[5]}, 3, v{t[5]}
  v_lshrrev_b32 v{t[6]}, 4, v{t[3]}
  v_lshl_add_u32 v{t[5]}, v{t[6]}, 2, v{t[5]}
  v_and_b32 v{t[6]}, 3, v{t[3]}
  v_add_u32 v{t[5]}, v{t[5]}, v{t[6]}
""")
    return t[5], t[4]
def w_offs():
    a(f"""
  v_lshrrev_b32 v{vT[3]}, 5, v{vLANE}
  s_lshl_b32 s{sT2}, s{sT4}, 1
  v_add_u32 v{vT[3]}, s{sT2}, v{vT[3]}          ; rho&7
  v_and_b32 v{vT[4]}, 1, v{vT[3]}
  v_lshl_add_u32 v{vT[4]}, v{vT[3]}, 1, v{vT[4]}  ; swz16
  v_and_b32 v{vT[5]}, 31, v{vLANE}
  v_xor_b32 v{vT[4]}, v{vT[4]}, v{vT[5]}        ; unit
  v_lshrrev_b32 v{vT[8]}, 4, v{vT[4]}           ; seg
  v_and_b32 v{vT[9]}, 15, v{vT[4]}              ; j16
  v_lshrrev_b32 v{vT[6]}, 2, v{vT[3]}
  v_lshlrev_b32 v{vT[6]}, 3, v{vT[6]}
  v_and_b32 v{vT[7]}, 3, v{vT[3]}
  v_add_u32 v{vT[6]}, v{vT[6]}, v{vT[7]}        ; k for j=0
  s_movk_i32 s{sT3}, 3456
  v_mul_u32_u24 v{vT[5]}, s{sT3}, v{vT[6]}
  v_lshl_add_u32 v{vT[5]}, v{vT[9]}, 4, v{vT[5]}
  v_add_u32 v{vT[5]}, s{sH144}, v{vT[5]}
  s_movk_i32 s{sT3}, 1152
  v_mad_u32_u24 v{vT[6]}, v{vT[8]}, s{sT3}, v{vT[5]}
  v_add_u32 v{vT[6]}, 1152, v{vT[6]}            ; k / v
  s_mov_b32 s{sT3}, {32*3456}
  v_mad_u32_u24 v{vT[5]}, v{vT[8]}, s{sT3}, v{vT[5]}
  v_cmp_lt_u32 vcc, 8, v{vT[9]}
  v_mov_b32 v{vT[8]}, {BIG}
  v_cndmask_b32 v{vWL[0]}, v{vT[6]}, v{vT[8]}, vcc
  v_cndmask_b32 v{vWL[1]}, v{vT[5]}, v{vT[8]}, vcc
""")
sK2 = 3
vWL = [21, 22, 23, 24]
def x_items(pr):
    sl = (pr % NXS) * XSL
    return f"""
  s_lshl_b32 s{sT2}, s{sK}, 6
  s_add_u32 s{sT3}, s{sT2}, {16*1152}
  s_add_u32 m0, s{sMX}, {sl}
  buffer_load_dwordx4 v{vXOFF}, {srd(SX)}, s{sT2} offen lds
  s_add_u32 m0, s{sMX}, {sl + 1024}
  buffer_load_dwordx4 v{vXOFF2}, {srd(SX)}, s{sT2} offen lds
  s_add_u32 m0, s{sMX}, {sl + 2048}
  buffer_load_dwordx4 v{vXOFF}, {srd(SX)}, s{sT3} offen lds
  s_add_u32 m0, s{sMX}, {sl + 3072}
  buffer_load_dwordx4 v{vXOFF2}, {srd(SX)}, s{sT3} offen lds
  s_add_u32 s{sK}, s{sK}, 2
  s_cmp_eq_u32 s{sK}, 18
  s_cselect_b32 s{sK}, 0, s{sK}"""
def w_items(ks):
    sl = ((ks + 1) % NWS) * WSL
    o = f"\n  s_mul_i32 s{sT3}, s{sK2}, {32*3456}"
    for j, dk in enumerate((0, 16, 4, 20)):
        if j: o += f"\n  s_add_u32 s{sT2}, s{sT3}, {dk*3456}"
        o += f"""
  s_add_u32 m0, s{sMWA}, {sl + 4096*j}
  buffer_load_dwordx4 v{vWL[0]}, {srd(SW)}, s{sT2 if j else sT3} offen lds"""
    return o + f"""
  s_add_u32 s{sK2}, s{sK2}, 1
  s_cmp_eq_u32 s{sK2}, 18
  s_cselect_b32 s{sK2}, 0, s{sK2}"""
def issue_q(i):
    a(f"""
  s_mul_i32 s{sT3}, s{sK2}, {32*3456}
  s_add_u32 s{sT2}, s{sT3}, {4*3456}
  s_add_u32 m0, s{sMQ}, {wq_addr[i]}
  s_mov_b32 exec_hi, 0xf
  buffer_load_dwordx4 v{vWQ}, {srd(SW)}, s{sT3} offen lds
  s_add_u32 m0, s{sMQ}, {wq_addr[i] + 2304}
  buffer_load_dwordx4 v{vWQ}, {srd(SW)}, s{sT2} offen lds
  s_mov_b32 exec_hi, -1
  s_add_u32 s{sK2}, s{sK2}, 1
  s_cmp_eq_u32 s{sK2}, 18
  s_cselect_b32 s{sK2}, 0, s{sK2}""")
    vm.add(('q', i), 2)
def issue_x(pr): a(x_items(pr)); vm.add(('x', pr), 4)
def issue_w(ks): a(w_items(ks)); vm.add(('w', ks), 4)
SM = 32
a(f"s_cmp_lt_u32 s{sPW}, 4\ns_cbranch_scc1 L_pc0")
a(f"""
  s_and_b32 s{sT4}, s{sPW}, 3
  v_lshrrev_b32 v{vT[0]}, 3, v{vLANE}
  v_and_b32 v{vT[2]}, 7, v{vLANE}
  v_xor_b32 v{vT[2]}, v{vT[2]}, v{vG}
  s_lshl_b32 s{sT2}, s{sT}, 7
  s_lshl_b32 s{sT3}, s{sT4}, 5
  s_add_u32 s{sT2}, s{sT2}, s{sT3}
  v_add_u32 v{vT[0]}, s{sT2}, v{vT[0]}
  s_movk_i32 s{sT3}, 1152
  v_mul_lo_u32 v{vT[0]}, v{vT[0]}, s{sT3}
  v_lshl_add_u32 v{vXOFF}, v{vT[2]}, 4, v{vT[0]}
  v_xor_b32 v{vT[2]}, 4, v{vT[2]}
  v_lshl_add_u32 v{vXOFF2}, v{vT[2]}, 4, v{vT[0]}
  v_add_u32 v{vXOFF2}, {8*1152}, v{vXOFF2}
  s_lshl_b32 s{sMX}, s{sT4}, 12
  s_lshl_b32 s{sMWA}, s{sT4}, 10
  s_add_u32 s{sMWA}, s{sMWA}, {W0L}
  s_mov_b32 s{sK}, s{sROT}
  s_mov_b32 s{sK2}, s{sROT}
""")
w_offs()
srd_bases()
stamp(1)
issue_x(0); issue_w(0); issue_w(1)
NI0 = opt('ni0', 0)
if NI0: issue_x(1); issue_w(2); issue_w(3)
stamp(2)
a("s_branch L_pc1")
a("L_pc0:")
srd_bases()
srd_rest()
stamp(1)
if opt('l2pf', 0):
    a(f"""
  v_lshrrev_b32 v{vT[0]}, 1, v{vLANE}
  s_movk_i32 s{sT3}, 3456
  v_mul_u32_u24 v{vT[0]}, s{sT3}, v{vT[0]}
  v_and_b32 v{vT[1]}, 1, v{vLANE}
  v_mul_u32_u24 v{vT[1]}, 140, v{vT[1]}
  v_add3_u32 v{vT[0]}, v{vT[0]}, v{vT[1]}, s{sH144}
  s_lshl_b32 s{sT2}, s{sT}, 7
  s_lshl_b32 s{sT3}, s{sTH}, 6
  s_add_u32 s{sT2}, s{sT2}, s{sT3}
  v_add_u32 v{vT[1]}, s{sT2}, v{vLANE}
  s_movk_i32 s{sT3}, 1152
  v_mul_lo_u32 v{vT[1]}, v{vT[1]}, s{sT3}
  s_lshr_b32 s{sT2}, s{sPW}, 1
  s_lshl_b32 s{sT2}, s{sT2}, 1
  s_add_u32 s{sT2}, s{sT2}, s{sROT}
  s_add_u32 s{sT2}, s{sT2}, 2
  s_sub_u32 s{sT3}, s{sT2}, 18
  s_cmp_ge_u32 s{sT2}, 18
  s_cselect_b32 s{sT2}, s{sT3}, s{sT2}
  s_lshl_b32 s{sT2}, s{sT2}, 6
  buffer_load_dword v{50}, v{vT[1]}, {srd(SX)}, s{sT2} offen
""")
    for rep in range(opt('l2pf', 0)):
        a(f"""
  s_add_u32 s{sT2}, s{sROT}, s{sPW}
  s_add_u32 s{sT2}, s{sT2}, {2 + 4*rep}
  s_sub_u32 s{sT3}, s{sT2}, 18
  s_cmp_ge_u32 s{sT2}, 18
  s_cselect_b32 s{sT2}, s{sT3}, s{sT2}
  s_mul_i32 s{sT2}, s{sT2}, {32*3456}
  buffer_load_dword v{51+3*rep}, v{vT[0]}, {srd(SW)}, s{sT2} offen
  buffer_load_dword v{52+3*rep}, v{vT[0]}, {srd(SW)}, s{sT2} offen offset:1152
  buffer_load_dword v{53+3*rep}, v{vT[0]}, {srd(SW)}, s{sT2} offen offset:2304
""")
a(f"s_mul_i32 s{sT2}, s{sHQ}, {4*648}\nv_lshlrev_b32 v{vT[0]}, 1, v0")
for j in range(6): a(f"buffer_load_ushort v{SM+j}, v{vT[0]}, {srd(SPHI)}, s{sT2} offen offset:{512*j}")
a(f"v_lshlrev_b32 v{vT[0]}, 3, v0\nbuffer_load_dwordx2 v[{SM+6}:{SM+7}], v{vT[0]}, {srd(SGATE)}, 0 offen")
CW = 144
a(f"""
  s_lshr_b32 s{sT0}, s2, 7            ; b
  s_bfe_u32 s{sT1}, s2, 0x30004       ; cb
  s_and_b32 s{sT2}, s2, 15            ; r
  s_mul_i32 s{sT2}, s{sT2}, 36
  s_mul_i32 s{sT4}, s{sT1}, 144
  s_mul_i32 s{sT5}, s{sT1}, 165888
  s_mul_i32 s{sT3}, s{sT0}, 4608
  s_add_u32 s{sT5}, s{sT5}, s{sT3}
  s_add_u32 s{sT5}, s{sT5}, {WS_WOC}
""")
for j in range(2):
    a(f"""
  v_add_u32 v{vT[0]}, {256*j}, v0
  v_min_u32 v{vT[0]}, 323, v{vT[0]}
  s_mov_b32 s{sT3}, 0xE38F
  v_mul_u32_u24 v{vT[1]}, s{sT3}, v{vT[0]}
  v_lshrrev_b32 v{vT[1]}, 19, v{vT[1]}          ; row
  v_mul_u32_u24 v{vT[2]}, 9, v{vT[1]}
  v_sub_u32 v{vT[2]}, v{vT[0]}, v{vT[2]}        ; u
  v_add_u32 v{vT[1]}, s{sT2}, v{vT[1]}          ; k
  s_movk_i32 s{sT3}, 1152
  v_mul_u32_u24 v{vT[3]}, s{sT3}, v{vT[1]}
  v_lshl_add_u32 v{vT[3]}, v{vT[2]}, 4, v{vT[3]}
  s_cmp_eq_u32 s{sT0}, 1
  s_cbranch_scc1 L_cwB{j}
  buffer_load_dwordx4 v[{CW+4*j}:{CW+4*j+3}], v{vT[3]}, {srd(SWOA)}, s{sT4} offen
  s_branch L_cwD{j}
L_cwB{j}:
  buffer_load_dwordx4 v[{CW+4*j}:{CW+4*j+3}], v{vT[3]}, {srd(SWOB)}, s{sT4} offen
L_cwD{j}:
  v_lshrrev_b32 v{vT[4]}, 5, v{vT[1]}
  s_movk_i32 s{sT3}, 9216
  v_mul_u32_u24 v{vT[4]}, s{sT3}, v{vT[4]}
  v_bfe_u32 v{vT[5]}, v{vT[1]}, 2, 1
  s_movk_i32 s{sT3}, 2304
  v_mad_u32_u24 v{vT[4]}, v{vT[5]}, s{sT3}, v{vT[4]}
  v_bfe_u32 v{vT[5]}, v{vT[1]}, 3, 2
  v_and_b32 v{vT[6]}, 3, v{vT[1]}
  v_lshl_add_u32 v{vT[5]}, v{vT[5]}, 2, v{vT[6]}
  s_movk_i32 s{sT3}, 144
  v_mad_u32_u24 v{vT[4]}, v{vT[5]}, s{sT3}, v{vT[4]}
  v_lshl_add_u32 v{vT[4]}, v{vT[2]}, 4, v{vT[4]}
  v_add_u32 v{CW+8+j}, s{sT5}, v{vT[4]}
""")
for j in range(6):
    a(f"""
  v_add_u32 v{vT[5]}, {256*j}, v0
  s_mov_b32 s{sT3}, 0xCA46
  v_mul_u32_u24 v{vT[6]}, s{sT3}, v{vT[5]}
  v_lshrrev_b32 v{vT[6]}, 24, v{vT[6]}
  s_movk_i32 s{sT3}, 324
  v_mul_u32_u24 v{vT[7]}, s{sT3}, v{vT[6]}
  v_sub_u32 v{vT[7]}, v{vT[5]}, v{vT[7]}
  s_mov_b32 s{sT3}, 0xE38F
  v_mul_u32_u24 v{vT[8]}, s{sT3}, v{vT[7]}
  v_lshrrev_b32 v{vT[8]}, 20, v{vT[8]}
  v_mul_u32_u24 v{vT[9]}, 18, v{vT[8]}
  v_sub_u32 v{vT[9]}, v{vT[7]}, v{vT[9]}
  v_mul_u32_u24 v{vT[10]}, 20, v{vT[6]}
  v_add_u32 v{vT[10]}, v{vT[10]}, v{vT[9]}
  v_mul_u32_u24 v{vT[10]}, 48, v{vT[10]}
  v_and_b32 v{vT[6]}, 1, v{vT[6]}
  v_lshl_add_u32 v{vT[8]}, v{vT[6]}, 1, v{vT[8]}
  v_lshl_add_u32 v{vT[10]}, v{vT[8]}, 1, v{vT[10]}
  v_add_u32 v{SM+8+j}, {T2}, v{vT[10]}
""")
a(f"""
  v_mov_b32 v{vT[0]}, 0
  v_mov_b32 v{vT[1]}, 0
  v_mov_b32 v{vT[2]}, 0
  v_mov_b32 v{vT[3]}, 0
  v_lshlrev_b32 v{vT[4]}, 4, v0
  v_add_u32 v{vT[4]}, {T2}, v{vT[4]}
  v_cmp_gt_u32 vcc, 240, v0
  s_and_saveexec_b64 s[94:95], vcc
  ds_write_b128 v{vT[4]}, v[{vT[0]}:{vT[3]}]
  v_cmp_gt_u32 vcc, 100, v0
  s_and_b64 exec, exec, vcc
  ds_write_b128 v{vT[4]}, v[{vT[0]}:{vT[3]}] offset:{ZR - T2}
  s_mov_b64 exec, -1
  v_mov_b32 v{SM+14}, v0
""")
stamp(2)
a("L_pc1:")
srd_rest()
a(f"""
  s_waitcnt lgkmcnt(0)
  s_barrier
  s_lshl_b32 s{sT2}, s{sWV}, 6
  v_add_u32 v0, s{sT2}, v{vLANE}
  s_or_b32 s{sT2}, s2, s{sPW}
  s_cmp_lg_u32 s{sT2}, 0
  s_cbranch_scc1 L_nononce
  s_memrealtime s[94:95]
  s_waitcnt lgkmcnt(0)
  s_or_b32 s94, s94, 1
  s_xor_b32 s95, s95, 0x5bd1e995
  v_mov_b32 v{vT[6]}, s94
  v_mov_b32 v{vT[7]}, s95
  v_mov_b32 v{vT[5]}, 0
  s_mov_b64 exec, 1
  buffer_store_dwordx2 v[{vT[6]}:{vT[7]}], v{vT[5]}, {srd(SDBG)}, 0 offen sc1
  s_mov_b64 exec, -1
L_nononce:
  s_lshl_b32 s{sTILE}, s{sT}, 3
  s_lshl_b32 s{sT2}, s{sTG}, 1
  s_add_u32 s{sTILE}, s{sTILE}, s{sT2}
  s_add_u32 s{sTILE}, s{sTILE}, s{sROLE}
  s_lshl_b32 s{sT2}, s{sB}, 7
  s_add_u32 s{sT2}, s{sT2}, s{sTILE}
  s_mul_i32 s{sT2}, s{sT2}, 18432
  s_add_u32 s{sT2}, s{sT2}, {WS_O}
  s_mul_i32 s{sT3}, s{sHQ}, 9
""")
for j in range(3):
    a(f"""
  v_add_u32 v{vT[0]}, {4*j}, v{vG}
  v_add_u32 v{vT[1]}, s{sT3}, v{vT[0]}
  v_lshlrev_b32 v{vT[1]}, 8, v{vT[1]}
  v_lshl_add_u32 v{vT[1]}, v{vN}, 4, v{vT[1]}
  v_add_u32 v{vOST[j]}, s{sT2}, v{vT[1]}
""")
a(f"""
  v_cmp_lt_u32 vcc, 0, v{vG}
  v_mov_b32 v{vT[0]}, {BIG}
  v_cndmask_b32 v{vOST[2]}, v{vOST[2]}, v{vT[0]}, vcc
  s_lshl_b32 s{sPB}, s{sG}, 4
  s_add_u32 s{sPB}, s{sPB}, s{sT}
  s_lshl_b32 s{sPB}, s{sPB}, 14
""")
a(f"s_mul_i32 s{sT2}, s{sTG}, 36\nv_add_u32 v{vT[7]}, s{sT2}, v{vLANE}\nv_min_u32 v{vT[7]}, 143, v{vT[7]}")
k, u = dma_off(vT[7], 9)
a(f"""
  s_movk_i32 s{sT3}, 3456
  v_mul_u32_u24 v{vT[8]}, s{sT3}, v{k}
  v_lshl_add_u32 v{vT[8]}, v{u}, 4, v{vT[8]}
  v_add_u32 v{vWQ}, s{sH144}, v{vT[8]}
  s_movk_i32 s{sT3}, 1152
  v_mul_u32_u24 v{vT[8]}, s{sT3}, v{k}
  v_lshl_add_u32 v{vT[8]}, v{u}, 4, v{vT[8]}
  s_mul_i32 s{sT3}, s{sCB}, 144
  v_add_u32 v{vWO}, s{sT3}, v{vT[8]}
  s_mul_i32 s{sMQ}, s{sTG}, 576
  s_lshl_b32 s{sMQ2}, s{sTG}, 10
  s_mul_i32 s{sWOC}, s{sCB}, 165888
  s_add_u32 s{sWOC}, s{sWOC}, s{sMQ2}
  s_add_u32 s{sWOC}, s{sWOC}, {WS_WOC}
  s_mov_b32 s{sL}, 0x3fb8aa3b
  s_mov_b32 s{sL+1}, 0x3fb8aa3b
  s_mov_b32 s{sL+2}, 0xbfb8aa3b
  s_mov_b32 s{sL+3}, 0xbfb8aa3b
  s_mov_b32 s{sMASK}, 0x00f0000f
  s_mov_b32 s{sMASK+1}, 0xf0000f00
""")
def table_writes():
    for j in range(5): a(f"ds_write_b16 v{SM+8+j}, v{SM+j}")
    a(f"""
  v_cmp_gt_u32 vcc, {1296-1280}, v{SM+14}
  s_and_saveexec_b64 s[94:95], vcc
  ds_write_b16 v{SM+13}, v{SM+5}
  s_mov_b64 exec, -1
  v_lshlrev_b32 v{vT[5]}, 3, v{SM+14}
  v_add_u32 v{vT[5]}, {GW}, v{vT[5]}
  v_cmp_gt_u32 vcc, 144, v{SM+14}
  s_and_saveexec_b64 s[94:95], vcc
  ds_write_b64 v{vT[5]}, v[{SM+6}:{SM+7}]
  s_mov_b64 exec, -1
""")
EX36 = "s_mov_b32 exec_lo, -1\n  s_mov_b32 exec_hi, 0xf"
def wo_src(kk, hh): return ((kk % 18) * 2 + kk // 18) * 4608 + hh * 2304
def wo_items(lst, v2):
    runs = []
    for x_ in lst:
        sa, da = wo_src(*x_), wo_addr[x_]
        if runs and runs[-1][0] + runs[-1][2] == sa and runs[-1][1] + runs[-1][2] == da: runs[-1][2] += HU
        else: runs.append([sa, da, HU])
    n = 0
    for sa, da, L in runs:
        for o in range(0, L, 4096):
            rem = L - o
            if rem < 4096: a(f"v_cmp_gt_u32 vcc, {rem}, v{v2}\ns_mov_b64 exec, vcc")
            a(f"""
  s_add_u32 s{sT3}, s{sWOC}, {sa + o}
  s_add_u32 m0, s{sMQ2}, {da + o}
  buffer_load_dwordx4 v{cL16}, {srd(SWS)}, s{sT3} offen lds""")
            if rem < 4096: a("s_mov_b64 exec, -1")
            n += 1
    return n
def wo_ready():
    a(f"""
  s_lshl_b32 s{sT3}, s{sCB}, 10
  s_add_u32 s{sT3}, s{sT3}, {WS_F4}
  s_mov_b32 s{sRETRY}, 0
L_wordy:
  buffer_load_dwordx4 v[{vT[8]}:{vT[11]}], v{cL16}, {srd(SWS)}, s{sT3} offen sc1
  s_waitcnt vmcnt(0)
  v_cmp_ne_u32 vcc, s{sNON}, v{vT[8]}
  v_cmp_ne_u32 s[{sM2}:{sM2+1}], s{sNON+1}, v{vT[9]}
  s_or_b64 vcc, vcc, s[{sM2}:{sM2+1}]
  v_cmp_ne_u32 s[{sM2}:{sM2+1}], s{sNON}, v{vT[10]}
  s_or_b64 vcc, vcc, s[{sM2}:{sM2+1}]
  v_cmp_ne_u32 s[{sM2}:{sM2+1}], s{sNON+1}, v{vT[11]}
  s_or_b64 vcc, vcc, s[{sM2}:{sM2+1}]
  s_cbranch_scc0 L_wordyd
  s_add_u32 s{sRETRY}, s{sRETRY}, 1
  s_cmp_lt_u32 s{sRETRY}, 100000
  s_cbranch_scc1 L_wordy
L_wordyd:""")
KOFF8 = [0, 4, 9, 13]
TILEV = [[0,1,2,3],[4,5,6,7],[8,9,10,11],[12,13,14,15],[10,11,16,17]]

NONLD = f"""
  v_mov_b32 v{vT[5]}, 0
  buffer_load_dwordx2 v[{vNON}:{vNON+1}], v{vT[5]}, {srd(SDBG)}, 0 offen sc1"""
def get_nonce():
    nl[0] += 1; L = f"L_non{nl[0]}"
    a(f"""
  v_readfirstlane_b32 s{sNON}, v{vNON}
  v_readfirstlane_b32 s{sNON+1}, v{vNON+1}
  s_mov_b32 s{sRETRY}, 0
  s_cmp_lg_u32 s{sNON}, 0
  s_cbranch_scc1 {L}d
{L}:
  v_mov_b32 v{vT[5]}, 0
  buffer_load_dwordx2 v[{vNON}:{vNON+1}], v{vT[5]}, {srd(SDBG)}, 0 offen sc1
  s_waitcnt vmcnt(0)
  v_readfirstlane_b32 s{sNON}, v{vNON}
  v_readfirstlane_b32 s{sNON+1}, v{vNON+1}
  s_add_u32 s{sRETRY}, s{sRETRY}, 1
  s_cmp_gt_u32 s{sRETRY}, 100000
  s_cbranch_scc1 {L}d
  s_cmp_eq_u32 s{sNON}, 0
  s_cbranch_scc1 {L}
{L}d:""")
def set_flag(soff, nrep):
    a(f"""
  v_mov_b32 v{vT[6]}, s{sNON}
  v_mov_b32 v{vT[7]}, s{sNON+1}
  v_lshlrev_b32 v{vT[5]}, 9, v{vLANE}
  s_waitcnt vmcnt(0)
  s_mov_b64 exec, {(1 << nrep) - 1}
  buffer_store_dwordx2 v[{vT[6]}:{vT[7]}], v{vT[5]}, {srd(SWS)}, s{soff} offen sc1
  s_mov_b64 exec, -1""")
def diag_addr(dst, rows, pitch, base):
    a(f"""
  v_mul_u32_u24 v{dst}, {rows}, v{vG}
  v_and_b32 v{vT[1]}, 3, v{vN}
  v_add_u32 v{dst}, v{dst}, v{vT[1]}
  v_mul_u32_u24 v{dst}, {pitch}, v{dst}
  v_add_u32 v{dst}, {base}, v{dst}
  v_mov_b32 v{vT[1]}, {ZR}
  v_cndmask_b32 v{dst}, v{vT[1]}, v{dst}, s[{sMASK}:{sMASK+1}]
""")
SEQ2 = [(t, c) for t in range(5) for c in range(3)]
def stage2_mfmas(P, af, kb):
    return [f"v_mfma_f32_16x16x32_bf16 {v(P+4*t,4)}, {v(af[j],4)}, {v(kb+4*c,4)}, {v(P+4*t,4) if c > 0 else '0'}" for j, (t, c) in enumerate(SEQ2)]
A2L = [144 + 4 * j for j in range(15)]
KB0, KB1 = 32, 44
P0, EPk, P1 = 64, 84, 104
PH0, PH1 = 124, 204
D0, D1 = 144, 64
def softmax_list(P, EP, ph):
    o = []
    mx, mn, mx2, mn2 = vT[0], vT[2], vT[4], vT[5]
    o += [f"v_max3_f32 v{mx}, v{P}, v{P+1}, v{P+2}", f"v_min3_f32 v{mn}, v{P}, v{P+1}, v{P+2}",
          f"v_max3_f32 v{mx2}, v{P+3}, v{P+4}, v{P+5}", f"v_min3_f32 v{mn2}, v{P+3}, v{P+4}, v{P+5}"]
    for i in range(6, 18, 4):
        o += [f"v_max3_f32 v{mx}, v{mx}, v{P+i}, v{P+i+1}", f"v_min3_f32 v{mn}, v{mn}, v{P+i}, v{P+i+1}",
              f"v_max3_f32 v{mx2}, v{mx2}, v{P+i+2}, v{P+i+3}", f"v_min3_f32 v{mn2}, v{mn2}, v{P+i+2}, v{P+i+3}"]
    o += [f"v_max_f32 v{mx}, v{mx}, v{mx2}", f"v_min_f32 v{mn}, v{mn}, v{mn2}",
          f"v_mul_f32 v{mx}, s{sL+2}, v{mx}", f"v_mul_f32 v{mn}, s{sL}, v{mn}"]
    for i in range(9):
        o += [f"v_pk_fma_f32 {v(EP+2*i,2)}, {v(P+2*i,2)}, s[{sL}:{sL+1}], {v(mx,2)} op_sel_hi:[1,1,0]",
              f"v_pk_fma_f32 {v(P+2*i,2)}, {v(P+2*i,2)}, s[{sL+2}:{sL+3}], {v(mn,2)} op_sel_hi:[1,1,0]"]
    for i in range(18): o += [f"v_exp_f32 v{EP+i}, v{EP+i}", f"v_exp_f32 v{P+i}, v{P+i}"]
    sp, sm = vT[4], vT[6]
    o += [f"v_pk_add_f32 {v(sp,2)}, {v(EP,2)}, {v(EP+2,2)}", f"v_pk_add_f32 {v(sm,2)}, {v(P,2)}, {v(P+2,2)}"]
    for i in range(2, 9):
        o += [f"v_pk_add_f32 {v(sp,2)}, {v(sp,2)}, {v(EP+2*i,2)}", f"v_pk_add_f32 {v(sm,2)}, {v(sm,2)}, {v(P+2*i,2)}"]
    o += [f"v_add_f32 v{sp}, v{sp}, v{sp+1}", f"v_add_f32 v{sm}, v{sm}, v{sm+1}", f"v_rcp_f32 v{sp}, v{sp}", f"v_rcp_f32 v{sm}, v{sm}"]
    for i in range(9):
        o += [f"v_pk_mul_f32 {v(EP+2*i,2)}, {v(EP+2*i,2)}, {v(sp,2)} op_sel_hi:[1,0]",
              f"v_pk_mul_f32 {v(P+2*i,2)}, {v(P+2*i,2)}, {v(sm,2)} op_sel_hi:[1,0]"]
    for i in range(9): o.append(f"v_cvt_pk_bf16_f32 v{ph+i}, v{EP+2*i}, v{EP+2*i+1}")
    for i in range(9): o.append(f"v_cvt_pk_bf16_f32 v{ph+9+i}, v{P+2*i}, v{P+2*i+1}")
    o += [f"v_mov_b32 v{ph+18}, 0", f"v_mov_b32 v{ph+19}, 0"]
    return o
def merge(valu, mf, every=4):
    mf = list(mf)
    for i, x in enumerate(valu):
        if mf and i % every == 0: a(mf.pop(0))
        a(x)
    for m in mf: a(m)

def num_and_store(phq, nb, out, kvaddr, reuse):
    seq = [(t, c) for t in range(5) for c in range(5)]
    for b0 in (0, 13):
        batch = seq[b0:b0+13]
        nbb = nb if reuse else nb + 4 * b0
        if b0 and reuse: a("s_nop 7")
        for j, (t, c) in enumerate(batch):
            a(f"ds_read_b128 {v(nbb+4*j,4)}, v{kvaddr} offset:{t*320 + c*16}")
        if b0 == 0:
            a(f"""
  s_mul_i32 s{sT2}, s{sWV}, 2304
  s_add_u32 s{sT2}, s{sT2}, {OST}
  s_movk_i32 s{sT3}, 144
  v_mul_u32_u24 v{vT[3]}, s{sT3}, v{vN}
  v_add_u32 v{vT[3]}, s{sT2}, v{vT[3]}
  v_mul_u32_u24 v{vT[4]}, 36, v{vG}
  v_add_u32 v{vT[4]}, v{vT[3]}, v{vT[4]}
  v_lshl_add_u32 v{vT[2]}, v{vG}, 4, v{vT[3]}
  s_lshr_b32 s{sT2}, s{sTILE}, 2
  s_lshl_b32 s{sT2}, s{sT2}, 12
  s_and_b32 s{sT3}, s{sTILE}, 3
  s_lshl_b32 s{sT3}, s{sT3}, 7
  s_add_u32 s{sT2}, s{sT2}, s{sT3}
  s_lshl_b32 s{sT3}, s{sG}, 3
  s_add_u32 s{sT2}, s{sT2}, s{sT3}
  s_add_u32 s{sT0}, s{sT2}, {WS_F2}
""")
        for j, (t, c) in enumerate(batch):
            a(f"s_waitcnt lgkmcnt({len(batch)-1-j})")
            if b0 == 0 and j == 0: a("s_barrier")
            cc = v(out + 4*t, 4) if c > 0 else '0'
            a(f"v_mfma_f32_16x16x32_bf16 {v(out+4*t,4)}, {v(nbb+4*j,4)}, {v(phq+4*c,4)}, {cc}")
    a(f"v_add_f32 v{vT[0]}, 0x358637bd, v{out+18}\nv_rcp_f32 v{vT[0]}, v{vT[0]}")
    for i in range(9): a(f"v_pk_mul_f32 {v(out+2*i,2)}, {v(out+2*i,2)}, {v(vT[0],2)} op_sel_hi:[1,0]")
    for i in range(9): a(f"v_cvt_pk_bf16_f32 v{out+20+i}, v{out+2*i}, v{out+2*i+1}")
    stamp(24)
    for i in range(0, 8, 2):
        a(f"ds_write2_b32 v{vT[4]}, v{out+20+i}, v{out+21+i} offset0:{i} offset1:{i+1}")
    a(f"ds_write_b32 v{vT[4]}, v{out+28} offset:32")
    a("s_waitcnt lgkmcnt(0)")
    for j in range(3): a(f"ds_read_b128 {v(out+4*j,4)}, v{vT[2]} offset:{64*j}")
    for j in range(3):
        a(f"s_waitcnt lgkmcnt({2-j})\nbuffer_store_dwordx4 {v(out+4*j,4)}, v{vOST[j]}, {srd(SWS)}, 0 offen sc1")
    a("s_barrier")
    stamp(25)
    set_flag(sT0, 8)
    stamp(10)
def tr_base(dst):
    a(f"""
  v_bfe_u32 v{vT[3]}, v{vLANE}, 2, 2
  v_lshl_add_u32 v{vT[1]}, v{vG}, 2, v{vT[3]}
  v_and_b32 v{vT[2]}, 3, v{vLANE}
  s_movk_i32 s{sT3}, 144
  v_mul_u32_u24 v{vT[1]}, s{sT3}, v{vT[1]}
  v_lshl_add_u32 v{dst}, v{vT[2]}, 3, v{vT[1]}
""")
def pc_setup():
    a(f"""
  s_lshr_b32 s{sT0}, s{sTG}, 1
  s_and_b32 s{sT1}, s{sTG}, 1
  s_lshl_b32 s{sT2}, s{sTB}, 2
  s_lshl_b32 s{sT3}, s{sT1}, 1
  s_add_u32 s{sT2}, s{sT2}, s{sT3}
  s_lshl_b32 s{sT3}, s{sT0}, 7
  s_add_u32 s{sT3}, s{sT3}, s{sT2}
  s_mul_i32 s{sT5}, s{sT3}, 18432
  s_add_u32 s{sT5}, s{sT5}, {WS_O}
  s_add_u32 s{sT4}, s{sT5}, 18432
  v_lshlrev_b32 v{vT[0]}, 4, v{vLANE}
  v_add_u32 v{vT[1]}, 4096, v{vT[0]}
  v_add_u32 v{vT[2]}, 8192, v{vT[0]}
  v_add_u32 v{vT[3]}, 12288, v{vT[0]}
  v_add_u32 v{vT[4]}, 16384, v{vT[0]}
  s_lshl_b32 s{sT2}, s{sT2}, 6
  s_add_u32 s{sPB}, s{sT2}, {WS_GATE}
""")

vRA8 = [21, 22, 23, 24, 25]
DEP = 4
def rd_addrs(unitlists, regs, base):
    a(f"""
  v_bfe_u32 v{vT[0]}, v{vLANE}, 2, 2
  v_lshl_add_u32 v{vT[1]}, v{vG}, 2, v{vT[0]}
  v_and_b32 v{vT[2]}, 3, v{vLANE}
  v_and_b32 v{vT[3]}, 1, v{vT[0]}
  v_lshlrev_b32 v{vT[3]}, 1, v{vT[3]}
  v_and_b32 v{vT[4]}, 7, v{vT[1]}
  v_lshl_add_u32 v{vT[3]}, v{vT[4]}, 2, v{vT[3]}
  v_lshlrev_b32 v{vT[4]}, 9, v{vT[1]}
  v_add_u32 v{vT[4]}, {base}, v{vT[4]}
  v_lshlrev_b32 v{vT[2]}, 3, v{vT[2]}
""")
    for units, r in zip(unitlists, regs):
        packed = sum(u << (8 * c) for c, u in enumerate(units))
        a(f"""
  s_mov_b32 s{sT3}, {packed}
  v_lshrrev_b32 v{vT[0]}, v{vT[2]}, s{sT3}
  v_and_b32 v{vT[0]}, 0xff, v{vT[0]}
  v_xor_b32 v{vT[0]}, v{vT[0]}, v{vT[3]}
  v_lshl_add_u32 v{r}, v{vT[0]}, 3, v{vT[4]}
""")
def x_addr(shift_sreg, sh):
    a(f"""
  v_lshrrev_b32 v{vT[0]}, 1, v{vN}
  v_xor_b32 v{vT[0]}, v{vT[0]}, v{vG}
  v_lshlrev_b32 v{vT[0]}, 4, v{vT[0]}
  v_lshl_add_u32 v{vT[0]}, v{vN}, 7, v{vT[0]}
  s_lshl_b32 s{sT2}, s{shift_sreg}, {sh}
  v_add_u32 v{vRX[0]}, s{sT2}, v{vT[0]}
  v_xor_b32 v{vRX[1]}, 64, v{vRX[0]}
""")
def pass1(role):
    x_addr(sTH, 13)
    rd_addrs([[KOFF8[c] + t for c in range(4)] if role == 0 else [32 + u for u in TILEV[t]] for t in range(5)], vRA8, W0L)
    base = [0]
    def setbase(sl):
        want = (sl // 3) * 3 * WSL
        out = []
        if want != base[0]:
            d = want - base[0]
            for r in vRA8: out.append(f"v_add_u32 v{r}, {d}, v{r}" if d > 0 else f"v_subrev_u32 v{r}, {-d}, v{r}")
            base[0] = want
        return out
    def xregs(ks, tt): return XB + 16 * (ks & 1) + 4 * tt
    lds = []
    def wreads(st):
        ks, i = divmod(st, 5)
        pre = setbase((ks + 1) % NWS) if i == 0 else []
        off = ((ks + 1) % NWS) * WSL - base[0]
        fb = RING + 4 * (st % NRING)
        return [(None, x_) for x_ in pre] + [(st, f"ds_read_b64_tr_b16 {v(fb + 2*hh, 2)}, v{vRA8[i]} offset:{off + hh*8192}") for hh in range(2)]
    def xread(ks, tt):
        xo = ((ks // 2) % NXS) * XSL
        return (5 * ks, f"ds_read_b128 {v(xregs(ks, tt), 4)}, v{vRX[ks & 1]} offset:{xo + 2048*tt}")
    def emit(it):
        tag, txt = it
        if opt('noreads', 0) and tag is not None and 5 <= tag < 999: txt = "s_nop 0"
        a(txt)
        if tag is not None: lds.append(tag)
    def mfma(st, tt):
        ks, i = divmod(st, 5)
        fb = RING + 4 * (st % NRING)
        acc = ACC + 16 * i + 4 * tt
        c = v(acc, 4) if ks > 0 else '0'
        A, B = (v(xregs(ks,tt),4), v(fb,4)) if role == 1 else (v(fb,4), v(xregs(ks,tt),4))
        if opt('nomfma', 0): return "s_nop 0"
        return f"v_mfma_f32_16x16x32_bf16 {v(acc,4)}, {A}, {B}, {c}"
    a("s_waitcnt vmcnt(2)")
    table_writes()
    a("s_waitcnt lgkmcnt(0)\ns_barrier")
    stamp(3)
    for tt in range(4): emit(xread(0, tt))
    for st in range(DEP):
        for it in wreads(st): emit(it)
    NST = 90
    fifo = []
    for st in range(NST):
        while any(t_ == st for t_, _ in fifo): emit(fifo.pop(0))
        idx = max(i for i, x_ in enumerate(lds) if x_ == st)
        a(f"s_waitcnt lgkmcnt({min(15, len(lds) - 1 - idx)})")
        if (st + DEP) % 5 == 0:
            while fifo: emit(fifo.pop(0))
            a("s_barrier")
        if st == opt('cst', 8):
            a("s_waitcnt vmcnt(0)")
            for j in range(2): a(f"buffer_store_dwordx4 v[{CW+4*j}:{CW+4*j+3}], v{CW+8+j}, {srd(SWS)}, 0 offen sc1")
            a(NONLD)
        if st == 36:
            a("s_waitcnt vmcnt(0)")
            get_nonce()
            a(f"""
  s_bfe_u32 s{sT3}, s2, 0x30004
  s_lshl_b32 s{sT3}, s{sT3}, 10
  s_lshr_b32 s{sT2}, s2, 7
  s_lshl_b32 s{sT2}, s{sT2}, 9
  s_add_u32 s{sT3}, s{sT3}, s{sT2}
  s_and_b32 s{sT2}, s2, 15
  s_lshl_b32 s{sT2}, s{sT2}, 5
  s_add_u32 s{sT3}, s{sT3}, s{sT2}
  s_lshl_b32 s{sT2}, s{sPW}, 3
  s_add_u32 s{sT3}, s{sT3}, s{sT2}
  s_add_u32 s{sT0}, s{sT3}, {WS_F4}""")
            set_flag(sT0, 1)
        nst = st + DEP
        if nst < NST:
            j = nst % 5
            if j < 2: fifo += [xread(nst // 5, 2 * j), xread(nst // 5, 2 * j + 1)]
            fifo += wreads(nst)
        if 20 <= st < 35:
            t_, c_ = SEQ2[st - 20]
            fifo.append((999, f"ds_read_b128 {v(A2L[st-20],4)}, v{cA2} offset:{t_*192 + c_*16}"))
        for tt in range(4):
            a(mfma(st, tt))
            if fifo: emit(fifo.pop(0))
def loader():
    nW, nX, nQ = 2, 1, 0
    def need(ks): return min(vm.wait_for(('w', ks)), vm.wait_for(('x', ks // 2)))
    x_addr(sTG, 12)
    def xr(ks):
        xo = ((ks // 2) % NXS) * XSL
        for tt in range(2): a(f"ds_read_b128 {v(QX0+8*ks+4*tt, 4)}, v{vRX[ks & 1]} offset:{xo + 2048*tt}")
    a(f"s_waitcnt vmcnt({need(0)})\ns_barrier")
    stamp(3)
    xr(0)
    def refill(ks, maxw):
        nonlocal nW, nX
        c = 0
        while c < maxw:
            if nX < 9 and 2 * nX <= nW + 1 and 2 * (nX - NXS) + 1 <= ks: issue_x(nX); nX += 1
            if nW < 18 and nW - NWS <= ks - 1: issue_w(nW); nW += 1; c += 1
            else: break
        if nX < 9 and 2 * nX <= nW + 1 and 2 * (nX - NXS) + 1 <= ks: issue_x(nX); nX += 1
    if opt('norefill', 0):
        global w_items, x_items
        w_items = lambda ks: "s_nop 0"
        x_items = lambda pr: "s_nop 0"
    refill(-1, opt('rf0', 2))
    for ks in range(18):
        a(f"s_waitcnt vmcnt({need(ks + 1) if ks + 1 < 18 else 63}) lgkmcnt(0)")
        a("s_barrier")
        if ks + 1 < 18: xr(ks + 1)
        refill(ks, opt('rf', 2))
        if ks == 8: a(NONLD); vm.add('non')
        if ks == opt('wqpf', 6):
            a(f"""
  s_and_b32 s{sT2}, s{sT}, 7
  s_mul_i32 s{sT2}, s{sT2}, 72
  s_mul_i32 s{sT3}, s{sTG}, 18
  s_add_u32 s{sT2}, s{sT2}, s{sT3}
  s_mul_i32 s{sT2}, s{sT2}, 3456
  s_add_u32 s{sT2}, s{sT2}, s{sH144}
  v_min_u32 v{vT[0]}, 35, v{vLANE}
  v_lshrrev_b32 v{vT[1]}, 1, v{vT[0]}
  s_movk_i32 s{sT3}, 3456
  v_mul_u32_u24 v{vT[1]}, s{sT3}, v{vT[1]}
  v_and_b32 v{vT[0]}, 1, v{vT[0]}
  v_mul_u32_u24 v{vT[0]}, 140, v{vT[0]}
  v_add_u32 v{vT[0]}, v{vT[0]}, v{vT[1]}
  buffer_load_dword v{17}, v{vT[0]}, {srd(SW)}, s{sT2} offen""")
            vm.add('wqpf')
        if ks == 17: arrive(C1)
        for i_ in range(18):
            if wq_time(i_) == ks: issue_q(i_)
        if ks == opt('wopf', 99):
            a(f"""
  s_lshr_b32 s{sT2}, s2, 3
  s_mul_i32 s{sT2}, s{sT2}, 20736
  s_mul_i32 s{sT3}, s{sTH}, 10368
  s_add_u32 s{sT2}, s{sT2}, s{sT3}
  v_lshlrev_b32 v{vT[0]}, 7, v{vLANE}
  v_add_u32 v{vT[1]}, 8192, v{vT[0]}
  v_min_u32 v{vT[1]}, {80*128}, v{vT[1]}
  s_bitcmp1_b32 s{sPW}, 1
  s_cbranch_scc1 L_wopfB
  buffer_load_dword v{17}, v{vT[0]}, {srd(SWOA)}, s{sT2} offen
  buffer_load_dword v{18}, v{vT[1]}, {srd(SWOA)}, s{sT2} offen
  s_branch L_wopfD
L_wopfB:
  buffer_load_dword v{17}, v{vT[0]}, {srd(SWOB)}, s{sT2} offen
  buffer_load_dword v{18}, v{vT[1]}, {srd(SWOB)}, s{sT2} offen
L_wopfD:""")
            vm.add('wopf', 2)
    assert nW == 18 and nX == 9, (nW, nX)
def a2_reads(addr):
    for j, (t, c) in enumerate(SEQ2): a(f"ds_read_b128 {v(A2L[j],4)}, v{addr} offset:{t*192 + c*16}")


cA2q, cKVq = cA2, cKV
a(f"v_lshlrev_b32 v{cL16}, 4, v{vLANE}")
diag_addr(cA2, 20, 48, T2)
diag_addr(cKV, 19, 80, KVT)
a(f"v_add_u32 v{cW2}, s{sMQ2}, v{cL16}")
a(f"s_cmp_eq_u32 s{sROLE}, 1\ns_cbranch_scc1 L_noKc")
a(f"""
  s_and_b32 s{sT4}, s{sTG}, 1                 ; half
  s_lshr_b32 s{sT5}, s{sTG}, 1                ; c0
  v_bfe_u32 v{vT[0]}, v{vLANE}, 2, 2
  v_lshl_add_u32 v{vT[0]}, v{vG}, 2, v{vT[0]}
  s_movk_i32 s{sT2}, 320
  v_mul_u32_u24 v{vT[0]}, s{sT2}, v{vT[0]}
  v_bfe_u32 v{vT[1]}, v{vLANE}, 1, 1
  v_mul_u32_u24 v{vT[1]}, 80, v{vT[1]}
  v_and_b32 v{vT[2]}, 1, v{vLANE}
  v_lshl_add_u32 v{vT[1]}, v{vT[2]}, 3, v{vT[1]}
  s_mul_i32 s{sT2}, s{sT4}, 160
  s_lshl_b32 s{sT3}, s{sT5}, 4
  s_add_u32 s{sT2}, s{sT2}, s{sT3}
  v_add3_u32 v{cAF}, v{vT[0]}, v{vT[1]}, s{sT2}
  s_mul_i32 s{sT2}, s{sT4}, 3072
  s_add_u32 s{sT2}, s{sT2}, {VF}
  v_add_u32 v{cB01}, s{sT2}, v{cL16}
  v_add_u32 v{cB2}, {VF + 2048}, v{cL16}
  s_lshl_b32 s{sT1}, s{sT4}, 1
  v_lshrrev_b32 v{vT[7]}, 1, v{vG}
  v_add_u32 v{vT[7]}, s{sT1}, v{vT[7]}        ; hr
  v_and_b32 v{vT[9]}, 1, v{vG}
  v_lshlrev_b32 v{vT[9]}, 3, v{vT[9]}
  s_lshl_b32 s{sT1}, s{sT5}, 4
  s_add_u32 s{sT1}, s{sT1}, {PST}
  v_add_u32 v{vT[9]}, s{sT1}, v{vT[9]}        ; PST + c0*32 + (g&1)*16
  v_cmp_lt_u32 s[{sM2}:{sM2+1}], 7, v{vN}
""")
for ci in range(3):
    if ci == 0: pre = f"s_mul_i32 s{sT2}, s{sT4}, 48\n  s_mov_b32 s{sT3}, 0"
    elif ci == 1: pre = f"s_mul_i32 s{sT2}, s{sT4}, 24\n  s_add_u32 s{sT2}, s{sT2}, 16\n  s_lshl_b32 s{sT3}, s{sT4}, 4"
    else: pre = f"s_mov_b32 s{sT2}, 32\n  s_movk_i32 s{sT3}, 200"
    a(f"""
  {pre}
  v_mov_b32 v{vT[4]}, s{sT3}
  v_cndmask_b32 v{vT[4]}, 0, v{vT[4]}, s[{sM2}:{sM2+1}]
  v_add3_u32 v{vT[4]}, v{vT[4]}, v{vN}, s{sT2}
  v_mul_u32_u24 v{vT[5]}, 57, v{vT[4]}
  v_lshrrev_b32 v{vT[5]}, 10, v{vT[5]}
  v_mul_u32_u24 v{vT[6]}, 18, v{vT[5]}
  v_sub_u32 v{vT[6]}, v{vT[4]}, v{vT[6]}
""")
    if ci == 2:
        a(f"""
  v_cmp_eq_u32 vcc, 240, v{vT[4]}
  v_cndmask_b32 v{vT[5]}, v{vT[5]}, v{vT[7]}, vcc
  v_cndmask_b32 v{vT[6]}, v{vT[6]}, 18, vcc
""")
    a(f"""
  v_mul_u32_u24 v{vT[8]}, 19, v{vT[7]}
  v_add_u32 v{vT[8]}, v{vT[8]}, v{vT[6]}
  s_movk_i32 s{sT2}, 72
  v_mad_u32_u24 v{vT[8]}, v{vT[8]}, s{sT2}, v{vT[9]}
  v_cmp_eq_u32 vcc, v{vT[5]}, v{vT[7]}
  v_mov_b32 v{vT[10]}, {PST + 5504}
  v_cndmask_b32 v{cPS[ci]}, v{vT[10]}, v{vT[8]}, vcc
""")
a(f"v_lshlrev_b32 v{cSA}, 3, v{vLANE}")
for j in range(2):
    a(f"v_add_u32 v{vT[3]}, {256*j}, v0\nv_lshlrev_b32 v{cGQ[j]}, 4, v{vT[3]}")
    for h in range(2):
        a(f"""
  v_lshl_add_u32 v{vT[0]}, v{vT[3]}, 1, {h}
  s_mov_b32 s{sT3}, 0xE38F
  v_mul_u32_u24 v{vT[1]}, s{sT3}, v{vT[0]}
  v_lshrrev_b32 v{vT[1]}, 19, v{vT[1]}
  v_mul_u32_u24 v{vT[2]}, 9, v{vT[1]}
  v_sub_u32 v{vT[2]}, v{vT[0]}, v{vT[2]}
  v_mul_u32_u24 v{cLQ[2*j+h]}, 80, v{vT[1]}
  v_lshl_add_u32 v{cLQ[2*j+h]}, v{vT[2]}, 3, v{cLQ[2*j+h]}
  v_add_u32 v{cLQ[2*j+h]}, {KVT}, v{cLQ[2*j+h]}
""")
a(f"""
  v_cmp_gt_u32 vcc, {342-256}, v0
  v_mov_b32 v{vT[0]}, {BIG}
  v_cndmask_b32 v{cGQ[1]}, v{vT[0]}, v{cGQ[1]}, vcc
""")
a(f"""
  s_mul_i32 s{sT2}, s{sTG}, 10240
  s_movk_i32 s{sT3}, 320
  v_mul_u32_u24 v{vT[0]}, s{sT3}, v{vN}
  v_mul_u32_u24 v{vT[1]}, 80, v{vG}
  v_add3_u32 v{cPFW}, v{vT[0]}, v{vT[1]}, s{sT2}
""")

a("L_noKc:")
a(f"s_cmp_ge_u32 s{sPW}, 4\ns_cbranch_scc1 L_loader")
a(f"""
  s_mul_i32 s{sT2}, s{sTH}, 5120
  v_add_u32 v{26+2}, 0, v{26+2}
""") if False else None
a(f"s_cmp_ge_u32 s{sPW}, 2\ns_cbranch_scc1 L_vcomp")
def hx_addr():
    a(f"""
  s_mul_i32 s{sT2}, s{sTH}, 5120
  v_add_u32 v{vT[2]}, s{sT2}, v{cL16}
  v_lshlrev_b32 v{vT[3]}, 3, v{vLANE}
  v_add_u32 v{vT[3]}, s{sT2}, v{vT[3]}
""")
pass1(0)
HI[0] = opt('kprio', 3)
a(f"s_setprio {HI[0]}")
stamp(4)
hx_addr()
SND = RING
for j, tt in enumerate((2, 3)):
    for t in range(5):
        s_ = ACC + 16 * t + 4 * tt
        a(f"v_cvt_pk_bf16_f32 v{SND+10*j+2*t}, v{s_}, v{s_+1}\nv_cvt_pk_bf16_f32 v{SND+10*j+2*t+1}, v{s_+2}, v{s_+3}")
    a(f"ds_write_b128 v{vT[2]}, {v(SND+10*j,4)} offset:{HX+2560*j}\nds_write_b128 v{vT[2]}, {v(SND+10*j+4,4)} offset:{HX+2560*j+1024}\nds_write_b64 v{vT[3]}, {v(SND+10*j+8,2)} offset:{HX+2560*j+2048}")
for kb, tt in zip((KB0, KB1), (0, 1)):
    for t in range(5):
        s_ = ACC + 16 * t + 4 * tt
        a(f"v_cvt_pk_bf16_f32 v{kb+2*t}, v{s_}, v{s_+1}\nv_cvt_pk_bf16_f32 v{kb+2*t+1}, v{s_+2}, v{s_+3}")
    a(f"v_mov_b32 v{kb+10}, 0\nv_mov_b32 v{kb+11}, 0")
    if tt == 0:
        a("s_waitcnt lgkmcnt(0)")
        arrive(CK4)
        arrive(C1)
a("s_branch L_kpost")
a("L_vcomp:")
pass1(1)
a(f"s_setprio {HI[0]}")
stamp(4)
a(f"s_mul_i32 s{sT2}, s{sTH}, 10240\ns_add_u32 s{sT2}, s{sT2}, {VF}\nv_add_u32 v{vT[4]}, s{sT2}, v{cL16}")
a(f"v_cmp_eq_u32 vcc, 8, v{vN}\nv_mov_b32 v{vT[5]}, 0x3f803f80")
for ct in range(5):
    for j in range(2):
        b_ = ACC + 16 * ct + 8 * j
        for q in range(4): a(f"v_cvt_pk_bf16_f32 v{b_+q}, v{b_+2*q}, v{b_+2*q+1}")
        if ct == 2:
            for q in range(4): a(f"v_cndmask_b32 v{b_+q}, v{b_+q}, v{vT[5]}, vcc")
        a(f"ds_write_b128 v{vT[4]}, {v(b_,4)} offset:{5120*j + ct*1024}")
hx_addr()
cwait(CK4, 2)
for j, kb in enumerate((KB0, KB1)):
    a(f"ds_read_b128 {v(kb,4)}, v{vT[2]} offset:{HX+2560*j}\nds_read_b128 {v(kb+4,4)}, v{vT[2]} offset:{HX+2560*j+1024}\nds_read_b64 {v(kb+8,2)}, v{vT[3]} offset:{HX+2560*j+2048}")
    a(f"v_mov_b32 v{kb+10}, 0\nv_mov_b32 v{kb+11}, 0")
a("s_waitcnt lgkmcnt(0)")
arrive(C1)
a("L_kpost:")
a("s_waitcnt lgkmcnt(0)")
stamp(17)
for m in stage2_mfmas(P0, A2L, KB0): a(m)
merge(softmax_list(P0, EPk, PH0), stage2_mfmas(P1, A2L, KB1), every=3)
stamp(18)
if opt('qearly', 0): arrive(CS0)
cwait(C1, 8)
for c in range(5): a(f"ds_write_b128 v{cPFW}, {v(PH0+4*c,4)} offset:{PF + 16*c}")
for x in softmax_list(P1, EPk, PH1): a(x)
stamp(19)
for c in range(5): a(f"ds_write_b128 v{cPFW}, {v(PH1+4*c,4)} offset:{PF + 5120 + 16*c}")
a("s_waitcnt lgkmcnt(0)")
stamp(20)
arrive(CPF)
KV = 160
BF = 184 - 152
BF = 96
AFR = 32
for ci in range(3):
    for tg in range(4):
        ad, of = (cB01, ci * 1024) if ci < 2 else (cB2, 0)
        a(f"ds_read_b128 {v(BF+16*ci+4*tg,4)}, v{ad} offset:{of + tg*5120}")
cwait(CPF, 4)
stamp(5)
def a_reads(j):
    for tg in range(4):
        for hh in range(2): a(f"ds_read_b64_tr_b16 {v(AFR+16*j+4*tg+2*hh,2)}, v{cAF} offset:{32*j + tg*10240 + hh*5120}")
a_reads(0); a_reads(1)
def kv_mf(j, ci):
    acc = KV + 4 * (3 * j + ci)
    return [f"v_mfma_f32_16x16x32_bf16 {v(acc,4)}, {v(AFR+16*j+4*tg,4)}, {v(BF+16*ci+4*tg,4)}, {v(acc,4) if tg else '0'}" for tg in range(4)]
a("s_waitcnt lgkmcnt(8)")
a_reads(2)
for ci in range(3):
    for m in kv_mf(0, ci): a(m)
a("s_waitcnt lgkmcnt(8)")
for ci in range(3):
    for m in kv_mf(1, ci): a(m)
a("s_waitcnt lgkmcnt(0)")
arrive(CKD)
a(f"s_cmp_ge_u32 s{sTG}, 2\ns_cbranch_scc1 L_kvskip")
for ci in range(3):
    for m in kv_mf(2, ci): a(m)
a("L_kvskip:")
for i in range(9): a(f"v_cvt_pk_bf16_f32 v{KV+4*i}, v{KV+4*i}, v{KV+4*i+1}\nv_cvt_pk_bf16_f32 v{KV+4*i+1}, v{KV+4*i+2}, v{KV+4*i+3}")
cwait(CKD, 4)
for ci in range(3): a(f"ds_write_b64 v{cPS[ci]}, {v(KV+4*ci,2)}")
for ci in range(3): a(f"ds_write_b64 v{cPS[ci]}, {v(KV+12+4*ci,2)} offset:32")
a(f"s_cmp_ge_u32 s{sTG}, 2\ns_cbranch_scc1 L_kvskip2")
a("s_mov_b32 exec_lo, 0xffff\ns_mov_b32 exec_hi, 0xffff")
for ci in range(3): a(f"ds_write_b64 v{cPS[ci]}, {v(KV+24+4*ci,2)} offset:64")
a("s_mov_b64 exec, -1\nL_kvskip2:")
a(f"""
  s_lshl_b32 s{sT4}, s{sG}, 13
  s_add_u32 s{sT4}, s{sT4}, {WS_F1}
  s_lshl_b32 s{sT0}, s{sT}, 5
  s_lshl_b32 s{sT3}, s{sTG}, 3
  s_add_u32 s{sT0}, s{sT0}, s{sT3}
  s_add_u32 s{sT0}, s{sT0}, s{sT4}
  s_lshl_b32 s{sT3}, s{sT}, 9
  s_add_u32 s{sT4}, s{sT4}, s{sT3}
  v_lshlrev_b32 v{vT[4]}, 4, v0
  v_add_u32 v{vT[4]}, {PST}, v{vT[4]}
  s_waitcnt lgkmcnt(0)
""")
stamp(21)
arrive(CKV)
cwait(CKV, 4)
stamp(22)
for j in range(2): a(f"ds_read_b128 {v(32+4*j,4)}, v{vT[4]} offset:{4096*j}")
for j in range(2):
    a(f"s_waitcnt lgkmcnt({1-j})\nbuffer_store_dwordx4 {v(32+4*j,4)}, v{cGQ[j]}, {srd(SWS)}, s{sPB} offen sc1")
stamp(23)
set_flag(sT0, 16)
arrive(CPS)
HI[0] = 0
a("s_setprio 0")
stamp(6)
if opt('kwo', 1):
    cwait(CPS, 4); cwait(CWR, 1)
    wo_items(grp['B'], cW2)
def poll_all(lab, soff, addr, cnt):
    R = [(32, 33), (34, 35), (36, 37)][:PP]
    a(f"s_cmp_lg_u32 s{sWV}, 0\ns_cbranch_scc1 {lab}_w\ns_mov_b32 s{sRETRY}, 0")
    for i, (r0, r1) in enumerate(R):
        a(f"buffer_load_dwordx2 v[{r0}:{r1}], v{addr}, {srd(SWS)}, s{soff} offen sc1")
        if i < PP - 1: a(f"s_sleep {opt('pst', 6)}")
    a(f"{lab}:")
    for i, (r0, r1) in enumerate(R):
        a(f"""
  s_waitcnt vmcnt({PP-1})
  v_cmp_ne_u32 vcc, s{sNON}, v{r0}
  v_cmp_ne_u32 s[{sM2}:{sM2+1}], s{sNON+1}, v{r1}
  s_or_b64 vcc, vcc, s[{sM2}:{sM2+1}]
  s_cbranch_scc0 {lab}_d
  buffer_load_dwordx2 v[{r0}:{r1}], v{addr}, {srd(SWS)}, s{soff} offen sc1""")
    a(f"""
  s_add_u32 s{sRETRY}, s{sRETRY}, 1
  s_cmp_lt_u32 s{sRETRY}, 100000
  s_cbranch_scc1 {lab}
{lab}_d:""")
    arrive(cnt, vT[6], vT[7])
    a(f"{lab}_w:")
    cwait(cnt, 1, vT[6], vT[7])
PB = 32
LDF = '' if opt('plain', 1) else ' sc1'
a(f"""
  s_lshl_b32 s{sT5}, s{sG}, 18
  s_mov_b32 s64, 0x11111111
  s_mov_b32 s65, 0x11111111
  s_mov_b32 s{sRETRY}, 0
  v_mov_b32 v{vT[4]}, {CNT + CG}
  s_cmp_lg_u32 s{sWV}, 0
  s_cbranch_scc1 L_gloop
""")
R_ = [(32, 33), (34, 35), (36, 37)][:PP]
for i, (r0, r1) in enumerate(R_):
    a(f"buffer_load_dwordx2 v[{r0}:{r1}], v{cSA}, {srd(SWS)}, s{sT4} offen sc1")
    if i < PP - 1: a(f"s_sleep {opt('pst', 6)}")
a("L_gp0:")
for i, (r0, r1) in enumerate(R_):
    a(f"""
  s_waitcnt vmcnt({PP-1})
  v_cmp_eq_u32 vcc, s{sNON}, v{r0}
  v_cmp_eq_u32 s[{sM2}:{sM2+1}], s{sNON+1}, v{r1}
  s_and_b64 vcc, vcc, s[{sM2}:{sM2+1}]
  s_lshr_b64 s[{sM2}:{sM2+1}], vcc, 1
  s_and_b64 vcc, vcc, s[{sM2}:{sM2+1}]
  s_lshr_b64 s[{sM2}:{sM2+1}], vcc, 2
  s_and_b64 vcc, vcc, s[{sM2}:{sM2+1}]
  v_mov_b32 v{vT[6]}, vcc_lo
  v_mov_b32 v{vT[7]}, vcc_hi
  {"" if opt('allatonce', 0) else f"ds_write_b64 v{vT[4]}, v[{vT[6]}:{vT[7]}]"}
  s_andn2_b64 s[{sM2}:{sM2+1}], s[64:65], vcc
  s_cbranch_scc0 L_gp1
  buffer_load_dwordx2 v[{r0}:{r1}], v{cSA}, {srd(SWS)}, s{sT4} offen sc1""")
a(f"""
  s_add_u32 s{sRETRY}, s{sRETRY}, 1
  s_cmp_lt_u32 s{sRETRY}, 100000
  s_cbranch_scc1 L_gp0
L_gp1:
  ds_write_b64 v{vT[4]}, v[{vT[6]}:{vT[7]}]
""")
stamp(28)
if STAMPS: a(f"v_writelane_b32 v{vSTAMP}, s{sRETRY}, 29")
a(f"""
L_gloop:
L_gread:
  ds_read_b64 v[{vT[6]}:{vT[7]}], v{vT[4]}
  s_waitcnt lgkmcnt(0)
  v_readfirstlane_b32 s{sM2}, v{vT[6]}
  v_readfirstlane_b32 s{sM2+1}, v{vT[7]}
  s_add_u32 s{sRETRY}, s{sRETRY}, 1
  s_cmp_gt_u32 s{sRETRY}, 400000
  s_cbranch_scc1 L_gdone
  s_and_b64 s[{sM2}:{sM2+1}], s[{sM2}:{sM2+1}], s[64:65]
  s_cbranch_scc1 L_gnew
  s_sleep 2
  s_branch L_gloop
L_gnew:
  s_andn2_b64 s[64:65], s[64:65], s[{sM2}:{sM2+1}]
""")
for p in range(16):
    lab = f"L_gl{p}"
    a(f"s_bitcmp1_b64 s[{sM2}:{sM2+1}], {4*p}\ns_cbranch_scc0 {lab}")
    a(f"s_add_u32 s{sT2}, s{sT5}, {p*16384}")
    for j in range(2):
        a(f"buffer_load_dwordx4 {v(PB+8*p+4*j,4)}, v{cGQ[j]}, {srd(SWS)}, s{sT2} offen{LDF}")
    a(f"{lab}:")
a(f"""
  s_cmp_lg_u64 s[64:65], 0
  s_cbranch_scc1 L_gloop
L_gdone:
""")
stamp(7)
a("s_waitcnt vmcnt(0)")
stamp(8)
SA_ = 160
a(f"s_mov_b32 s{sT2}, 0x3f80\ns_mov_b32 s{sT3}, 0x3f800000")
for p in range(16):
    for q in range(8):
        r = PB + 8 * p + q
        if p == 0: a(f"v_lshlrev_b32 v{SA_+2*q}, 16, v{r}\nv_and_b32 v{SA_+2*q+1}, 0xffff0000, v{r}")
        else: a(f"v_dot2_f32_bf16 v{SA_+2*q}, v{r}, s{sT2}, v{SA_+2*q}\nv_dot2_f32_bf16 v{SA_+2*q+1}, v{r}, s{sT3}, v{SA_+2*q+1}")
a("s_nop 3")
for q in range(8): a(f"v_cvt_pk_bf16_f32 v{PB+q}, v{SA_+2*q}, v{SA_+2*q+1}")
a(f"ds_write_b64 v{cLQ[0]}, {v(PB,2)}\nds_write_b64 v{cLQ[1]}, {v(PB+2,2)}")
a(f"""
  v_cmp_gt_u32 vcc, {342-256}, v0
  s_and_saveexec_b64 s[94:95], vcc
  ds_write_b64 v{cLQ[2]}, {v(PB+4,2)}
  ds_write_b64 v{cLQ[3]}, {v(PB+6,2)}
  s_mov_b64 exec, -1
  v_mul_u32_u24 v{vT[0]}, 80, v0
  v_add_u32 v{vT[0]}, {KVT+72}, v{vT[0]}
  v_mov_b32 v{vT[2]}, 0
  v_mov_b32 v{vT[3]}, 0
  v_cmp_gt_u32 vcc, 76, v0
  s_and_saveexec_b64 s[94:95], vcc
  ds_write_b64 v{vT[0]}, v[{vT[2]}:{vT[3]}]
  s_mov_b64 exec, -1
  s_mul_i32 s{sT2}, s{sTG}, 5120
  s_add_u32 s{sT2}, s{sT2}, {PQ}
  v_add_u32 v{vT[0]}, s{sT2}, v{cL16}
  v_bfe_u32 v{vT[3]}, v{vLANE}, 2, 2
  v_lshl_add_u32 v{vT[1]}, v{vG}, 2, v{vT[3]}
  v_and_b32 v{vT[2]}, 3, v{vLANE}
  s_movk_i32 s{sT3}, 144
  v_mul_u32_u24 v{vT[1]}, s{sT3}, v{vT[1]}
  v_lshl_add_u32 v{vRA[0]}, v{vT[2]}, 3, v{vT[1]}
  s_waitcnt lgkmcnt(0)
  s_barrier
""")
stamp(9)
KPHQ = 180; KOUT = 136; KNB = 32; SAVE = 200
for c in range(5): a(f"ds_read_b128 {v(KPHQ+4*c,4)}, v{vT[0]} offset:{c*1024}")
a(f"v_add_u32 v{vRA[1]}, 65536, v{vRA[0]}\nv_add_u32 v{vRA[2]}, 131072, v{vRA[0]}")
for t in range(5):
    for hh in range(2):
        o = wo_addr[(35, hh)] + 32 * t
        a(f"ds_read_b64_tr_b16 {v(SAVE+4*t+2*hh,2)}, v{vRA[o >> 16]} offset:{o & 0xffff}")
a("s_waitcnt lgkmcnt(0)")
num_and_store(KPHQ, KNB, KOUT, cKV, False)
OF = 32
FB = 176; NFB = 6
CACC = 220 - 4
SAVE2 = SAVE
CACC = 220
FB = 176; NFB = 5; SAVE2 = 196; CACC = 216
for i in range(20): a(f"v_mov_b32 v{SAVE2+i}, v{SAVE+i}")
pc_setup()
a(f"""
  v_lshlrev_b32 v{vT[5]}, 2, v{vN}
  v_lshlrev_b32 v{vT[9]}, 3, v{vLANE}
  s_lshl_b32 s{sT3}, s{sTB}, 12
  s_lshl_b32 s{sPEND}, s{sCB}, 9
  s_add_u32 s{sT3}, s{sT3}, s{sPEND}
  s_add_u32 s{sPEND}, s{sT3}, {WS_F2}
""")
a("s_barrier")
stamp(27)
poll_all("L_opoll", sPEND, vT[9], CO)
a(f"""
  buffer_load_dword v{vT[6]}, v{vT[5]}, {srd(SWS)}, s{sPB} offen{LDF}
  buffer_load_dword v{vT[7]}, v{vT[5]}, {srd(SWS)}, s{sPB} offen offset:64{LDF}
""")
stamp(11)
for ks in range(18):
    for tt in range(2):
        a(f"buffer_load_dwordx4 {v(OF+8*ks+4*tt,4)}, v{vT[ks//4]}, {srd(SWS)}, s{sT5 if tt==0 else sT4} offen offset:{(ks%4)*1024}{LDF}")
stamp(26)
a(f"s_cmp_eq_u32 s{sT0}, 1\ns_cbranch_scc1 L_pc_b1")
def phaseC(b):
    seq = [(ks, t) for ks in range(18) for t in range(5)]
    def rd(i):
        ks, t = seq[i]
        if b * 18 + ks == 35: return []
        return [f"ds_read_b64_tr_b16 {v(FB+4*(i%NFB)+2*hh,2)}, v{vRA[(wo_addr[(b*18+ks, hh)] + 32*t) >> 16]} offset:{(wo_addr[(b*18+ks, hh)] + 32*t) & 0xffff}" for hh in range(2)]
    DEPTH = 4
    cnt = []
    for i in range(DEPTH):
        r = rd(i); cnt.append(len(r))
        for x_ in r: a(x_)
    for i, (ks, t) in enumerate(seq):
        saved = (b * 18 + ks == 35)
        w = []
        if t == 0: w.append(f"vmcnt({34 - 2*ks})")
        if not saved: w.append(f"lgkmcnt({sum(cnt[i+1:])})")
        if w: a("s_waitcnt " + " ".join(w))
        nx = rd(i + DEPTH) if i + DEPTH < len(seq) else []
        cnt.append(len(nx))
        fr = (SAVE2 + 4 * t) if saved else (FB + 4 * (i % NFB))
        for tt in range(2):
            acc = CACC + 20 * tt + 4 * t
            a(f"v_mfma_f32_16x16x32_bf16 {v(acc,4)}, {v(fr,4)}, {v(OF+8*ks+4*tt,4)}, {v(acc,4) if ks else '0'}")
            if nx: a(nx[tt])
phaseC(0)
a("s_branch L_pc_done")
a("L_pc_b1:")
phaseC(1)
a("L_pc_done:")
stamp(12)
arrive(CKD, vT[10], vT[11])
E0 = 32
for i in range(20):
    a(f"v_cvt_pk_bf16_f32 v{E0+i}, v{CACC+2*i}, v{CACC+2*i+1}")
a(f"""
  s_cmp_eq_u32 s{sT0}, 1
  s_cselect_b64 vcc, -1, 0
  v_cndmask_b32 v{vT[6]}, v{vT[6]}, v{vT[7]}, vcc
  v_cvt_pk_bf16_f32 v{vT[6]}, v{vT[6]}, v{vT[6]}
  v_lshlrev_b32 v{vT[6]}, 16, v{vT[6]}
  v_mul_f32 v{vT[6]}, s{sL+2}, v{vT[6]}
  v_exp_f32 v{vT[6]}, v{vT[6]}
  v_add_f32 v{vT[6]}, 1.0, v{vT[6]}
  v_rcp_f32 v{vT[6]}, v{vT[6]}
  v_cvt_pk_bf16_f32 v{vT[6]}, v{vT[6]}, v{vT[6]}
  v_lshlrev_b32 v{vT[6]}, 16, v{vT[6]}
  v_sub_f32 v{vT[7]}, 1.0, v{vT[6]}
  v_cvt_pk_bf16_f32 v{vT[7]}, v{vT[7]}, v{vT[7]}
  v_lshlrev_b32 v{vT[7]}, 16, v{vT[7]}
  v_cndmask_b32 v{vT[8]}, v{vT[6]}, v{vT[7]}, vcc
  v_cndmask_b32 v{vT[10]}, v{vT[7]}, v{vT[6]}, vcc
""")
for i in range(10):
    a(f"v_cndmask_b32 v{E0+20+i}, v{E0+10+i}, v{E0+i}, vcc\nv_cndmask_b32 v{E0+32+i}, v{E0+i}, v{E0+10+i}, vcc")
a(f"""
  s_mul_i32 s{sT2}, s{sWV}, 3072
  v_add_u32 v{vT[1]}, s{sT2}, v{vT[0]}
  s_xor_b32 s{sT3}, s{sWV}, 2
  s_mul_i32 s{sT3}, s{sT3}, 3072
  v_add_u32 v{vT[2]}, s{sT3}, v{vT[0]}
""")
cwait(CKD, 8, vT[5], vT[9])
a(f"""
  ds_write_b128 v{vT[1]}, {v(E0+20,4)}
  ds_write_b128 v{vT[1]}, {v(E0+24,4)} offset:1024
  ds_write_b64 v{vT[1]}, {v(E0+28,2)} offset:2048
  v_mov_b32 v{vT[5]}, {CNT+CE}
  v_mov_b32 v{vT[9]}, 1
  s_waitcnt lgkmcnt(0)
  s_mov_b64 exec, 1
  ds_add_u32 v{vT[5]}, v{vT[9]}
  s_mov_b64 exec, -1
  s_lshl_b32 s{sT2}, s{sTB}, 6
  s_lshl_b32 s{sT3}, s{sT1}, 5
  s_add_u32 s{sT2}, s{sT2}, s{sT3}
  s_lshl_b32 s{sT3}, s{sT0}, 4
  s_add_u32 s{sT2}, s{sT2}, s{sT3}
  v_add_u32 v{vT[3]}, s{sT2}, v{vN}
  s_movk_i32 s{sT3}, 1152
  v_mul_lo_u32 v{vT[3]}, v{vT[3]}, s{sT3}
  v_lshl_add_u32 v{vT[3]}, v{vG}, 3, v{vT[3]}
  s_mul_i32 s{sT3}, s{sCB}, 144
  v_add_u32 v{vT[3]}, s{sT3}, v{vT[3]}
  v_cmp_lt_u32 vcc, 1, v{vG}
  v_mov_b32 v{vT[4]}, {BIG}
  v_cndmask_b32 v{vT[4]}, v{vT[3]}, v{vT[4]}, vcc
""")
W0 = 80
for i in range(10):
    r = E0 + 32 + i
    a(f"""
  v_lshlrev_b32 v{W0+2*i}, 16, v{r}
  v_and_b32 v{W0+2*i+1}, 0xffff0000, v{r}
  v_pk_mul_f32 {v(W0+2*i,2)}, {v(W0+2*i,2)}, {v(vT[8],2)} op_sel_hi:[1,0]
  v_cvt_pk_bf16_f32 v{r}, v{W0+2*i}, v{W0+2*i+1}
  v_lshlrev_b32 v{W0+2*i}, 16, v{r}
  v_and_b32 v{W0+2*i+1}, 0xffff0000, v{r}
""")
cwait(CE, 4, vT[5], vT[9])
a(f"""
  ds_read_b128 {v(E0+20,4)}, v{vT[2]}
  ds_read_b128 {v(E0+24,4)}, v{vT[2]} offset:1024
  ds_read_b64 {v(E0+28,2)}, v{vT[2]} offset:2048
  s_waitcnt lgkmcnt(0)
""")
for t in range(5):
    for h in range(2):
        i = 2 * t + h
        r = E0 + 20 + i; w = W0 + 20 + 2 * (i & 1)
        a(f"""
  v_lshlrev_b32 v{w}, 16, v{r}
  v_and_b32 v{w+1}, 0xffff0000, v{r}
  v_pk_mul_f32 {v(w,2)}, {v(w,2)}, {v(vT[10],2)} op_sel_hi:[1,0]
  v_cvt_pk_bf16_f32 v{r}, v{w}, v{w+1}
  v_lshlrev_b32 v{w}, 16, v{r}
  v_and_b32 v{w+1}, 0xffff0000, v{r}
  v_pk_add_f32 {v(w,2)}, {v(w,2)}, {v(W0+2*i,2)}
  v_cvt_pk_bf16_f32 v{E0+i}, v{w}, v{w+1}
""")
    a(f"buffer_store_dwordx2 {v(E0+2*t,2)}, v{vT[3] if t < 4 else vT[4]}, {srd(SOUT)}, 0 offen offset:{32*t}")
stamp(13)
a("s_branch L_fin")

a("L_loader:")
loader()
get_nonce()
stamp(4)
a(f"""
  v_bfe_u32 v{vT[0]}, v{vLANE}, 2, 2
  v_lshl_add_u32 v{vT[1]}, v{vG}, 2, v{vT[0]}
  v_and_b32 v{vT[2]}, 3, v{vLANE}
  s_movk_i32 s{sT3}, 144
  v_mul_u32_u24 v{vT[4]}, s{sT3}, v{vT[1]}
  s_mov_b32 s{sT3}, {sum(u << (8*c) for c, u in enumerate(KOFF8))}
  v_lshlrev_b32 v{vT[5]}, 3, v{vT[2]}
  v_lshrrev_b32 v{vT[5]}, v{vT[5]}, s{sT3}
  v_and_b32 v{vT[5]}, 0xff, v{vT[5]}
  v_lshl_add_u32 v{23}, v{vT[5]}, 3, v{vT[4]}
  v_add_u32 v{24}, 65536, v{23}
  v_lshlrev_b32 v{25}, 4, v{vG}
  v_add_u32 v{25}, {GW}, v{25}
  s_mov_b32 s{sT5}, s{sROT}
""")
GACC = [vT[0], vT[4]]
groups = [(0, 18)] if opt('qwait', 1) else [(0, 6), (6, 14), (14, 18)]
for gi, (g0_, g1_) in enumerate(groups):
    if gi == (0 if opt('qwait', 1) else 1):
        cwait(C1, 8, 12, 13)
        for i_ in range(18):
            if wq_time(i_) == 18: issue_q(i_)
    wo_ready()
    arrive(CWR, 12, 13)
    if opt('qearly', 0): cwait(CS0, opt('qearly', 0), 12, 13)
    elif opt('qwait', 1): cwait(CPF, opt('qwait', 1), 12, 13)
    a(f"s_waitcnt vmcnt({vm.wait_for(('q', g1_ - 1))})")
    arrive(CWA + 4 * gi, 12, 13); cwait(CWA + 4 * gi, 4, 12, 13)
    stamp(30 + 2 * gi)
    steps = [(ks, t) for ks in range(g0_, g1_) for t in range(6)]
    def rd(i):
        ks, t = steps[i]
        fb = QRING + 4 * (i % 8)
        if t == 5:
            return [f"s_lshl_b32 s{sT4}, s{sT5}, 6\nv_add_u32 v{14}, s{sT4}, v{25}\ns_add_u32 s{sT5}, s{sT5}, 1\ns_cmp_eq_u32 s{sT5}, 18\ns_cselect_b32 s{sT5}, 0, s{sT5}\nds_read_b128 {v(fb,4)}, v{14}"]
        return [f"ds_read_b64_tr_b16 {v(fb+2*hh,2)}, v{23 + ((wq_addr[ks] + hh*2304 + 8*t) >> 16)} offset:{(wq_addr[ks] + hh*2304 + 8*t) & 0xffff}" for hh in range(2)]
    D_ = 6
    cnt = []
    for i in range(D_):
        r = rd(i); cnt.append(len(r))
        for x_ in r: a(x_)
    QB0 = opt('qb0', 66)
    pendB = list(grp['B']) if opt('wolate', 0) == 3 else []
    for i, (ks, t) in enumerate(steps):
        a(f"s_waitcnt lgkmcnt({sum(cnt[i+1:])})")
        nx = rd(i + D_) if i + D_ < len(steps) else []
        cnt.append(len(nx))
        for tt in range(2):
            acc = GACC[tt] if t == 5 else QACC + 20 * tt + 4 * t
            a(f"v_mfma_f32_16x16x32_bf16 {v(acc,4)}, {v(QRING+4*(i%8),4)}, {v(QX0+8*ks+4*tt,4)}, {v(acc,4) if ks else '0'}")
            if tt < len(nx): a(nx[tt])
    stamp(31 + 2 * gi)
    arrive(CWD + 4 * gi, 12, 13)
stamp(7)
a(f"""
  v_cmp_eq_u32 vcc, 1, v{vG}
  v_cndmask_b32 v{vT[0]}, v{GACC[0]}, v{GACC[1]}, vcc
  v_lshlrev_b32 v{vT[2]}, 2, v{vLANE}
  v_cmp_gt_u32 vcc, 32, v{vLANE}
  v_mov_b32 v{vT[3]}, {BIG}
  v_cndmask_b32 v{vT[2]}, v{vT[3]}, v{vT[2]}, vcc
  s_lshl_b32 s{sT2}, s{sT}, 9
  s_lshl_b32 s{sT3}, s{sTG}, 7
  s_add_u32 s{sT2}, s{sT2}, s{sT3}
  s_add_u32 s{sT2}, s{sT2}, {WS_GATE}
  s_cmp_eq_u32 s{sG}, 0
  s_cselect_b32 s{sT2}, s{sT2}, {BIG}
  buffer_store_dword v{vT[0]}, v{vT[2]}, {srd(SWS)}, s{sT2} offen sc1
""")
for kb, tt in zip((KB0, KB1), (0, 1)):
    for t in range(5):
        s_ = QACC + 20 * tt + 4 * t
        a(f"v_cvt_pk_bf16_f32 v{kb+2*t}, v{s_}, v{s_+1}\nv_cvt_pk_bf16_f32 v{kb+2*t+1}, v{s_+2}, v{s_+3}")
    a(f"v_mov_b32 v{kb+10}, 0\nv_mov_b32 v{kb+11}, 0")
a2_reads(cA2)
cwait(CWD + 4 * (len(groups) - 1), 4)
a("s_waitcnt lgkmcnt(0)")
for m in stage2_mfmas(P0, A2L, KB0): a(m)
merge(softmax_list(P0, EPk, PH0), stage2_mfmas(P1, A2L, KB1), every=3)
a(f"s_mul_i32 s{sT2}, s{sTG}, 5120\ns_add_u32 s{sT2}, s{sT2}, {PQ}\nv_add_u32 v{vT[8]}, s{sT2}, v{cL16}")
for c in range(5): a(f"ds_write_b128 v{vT[8]}, {v(PH0+4*c,4)} offset:{c*1024}")
for x in softmax_list(P1, EPk, PH1): a(x)
if not opt('kwo', 1):
    cwait(CPS, 4)
    wo_items(grp['B'][:2], cW2)
early = grp['A'] + (grp['B'][2:] if not opt('kwo', 1) else [])
ne = len(early) - opt('wodefer', 0)
grp['Z'] = early[ne:] + grp['Z']
n_ = wo_items(early[:ne], cW2)
stamp(8)
a(f"s_waitcnt vmcnt({n_}) lgkmcnt(0)\ns_barrier")
stamp(9)
num_and_store(PH1, 32, 136, cKV, False)
wo_items(grp['Z'], cW2)
a("s_waitcnt vmcnt(0)\ns_barrier")
a("L_fin:")
if STAMPS:
    a(f"""
  s_and_b32 s{sT2}, s{sWV}, 3
  s_cmp_lg_u32 s{sT2}, 0
  s_cbranch_scc1 L_end
  s_waitcnt vmcnt(0)
  s_memrealtime s[94:95]
  s_waitcnt lgkmcnt(0)
  v_writelane_b32 v{vSTAMP}, s94, 14
  s_getreg_b32 s94, hwreg(HW_REG_XCC_ID)
  s_getreg_b32 s95, hwreg(HW_REG_HW_ID)
  v_writelane_b32 v{vSTAMP}, s94, 15
  v_writelane_b32 v{vSTAMP}, s95, 16
  v_lshlrev_b32 v{vT[0]}, 2, v{vLANE}
  DBGCODE
  s_lshl_b32 s{sT2}, s2, 9
  s_lshl_b32 s{sT3}, s{sROLE}, 8
  s_add_u32 s{sT2}, s{sT2}, s{sT3}
  s_add_u32 s{sT2}, s{sT2}, {WS_DBG}
  buffer_store_dword v{vSTAMP}, v{vT[0]}, {srd(SWS)}, s{sT2} offen
""")
a("L_end:\n  s_endpgm")
for i_, l_ in enumerate(a.lines):
    if 'DBGCODE' in l_:
        a.lines[i_] = (f"""  s_cmp_lg_u32 s{sROLE}, 0
  s_cbranch_scc1 L_nodbg
  v_not_b32 v{vT[1]}, v{vSTAMP}
  v_cmp_eq_u32 vcc, 0, v{vLANE}
  s_nop 1
  v_cndmask_b32 v{vT[1]}, v{vSTAMP}, v{vT[1]}, vcc
  v_add_u32 v{vT[2]}, 8, v{vT[0]}
  s_mov_b32 exec_lo, 0x7fff
  s_mov_b32 exec_hi, 0
  buffer_atomic_umax v{vT[1]}, v{vT[2]}, {srd(SDBG)}, 0 offen
  s_mov_b64 exec, -1
L_nodbg:""" if opt('dbg', 0) else "")

xr = opt('xr', 0)
for i_, l_ in enumerate(a.lines):
    if l_.strip() == 'XR':
        a.lines[i_] = {0: '', 1: f"  s_lshr_b32 s{sT2}, s{sT0}, 1\n  s_add_u32 s{sROT}, s{sROT}, s{sT2}",
                       2: f"  s_add_u32 s{sROT}, s{sROT}, s{sT0}",
                       3: f"  s_and_b32 s{sT2}, s{sT0}, 1\n  s_lshl_b32 s{sT2}, s{sT2}, 2\n  s_add_u32 s{sROT}, s{sROT}, s{sT2}"}[xr]
    if l_.strip() == 'XW':
        a.lines[i_] = '' if xr == 0 else f"  s_sub_u32 s{sT2}, s{sROT}, 9\n  s_cmp_ge_u32 s{sROT}, 9\n  s_cselect_b32 s{sROT}, s{sT2}, s{sROT}"
hdr = open('cdna_kernels/' + NAME + '.s.ref').read().split('; Override launch')[0]
out = kernel_file(a.text(), "grid=(256,1,1) block=(512,1,1) lds=163840", 256, hdr_comment=hdr)
outp = [x for x in sys.argv[1:] if not x.startswith('--') and not x.startswith('o:')]
open(outp[0] if outp else 'k.s', 'w').write(out)
```
